```python
import torch

def _softmax(x, axis=-1):
    return torch.softmax(x, dim=axis)
def _gelu(x):
    return torch.nn.functional.gelu(x, approximate="tanh")
def _silu(x):
    return torch.nn.functional.silu(x)
def _sigmoid(x):
    return torch.sigmoid(x)
def _layernorm(x, axis=-1, eps=1e-5):
    m = x.mean(dim=axis, keepdim=True)
    v = x.var(dim=axis, keepdim=True, unbiased=False)
    return (x - m) / torch.sqrt(v + eps)
def _scatter_add(tgt, idx, src, axis=0):
    return tgt.clone().index_add_(axis, idx, src)
def _segment_sum(src, seg, n):
    out = torch.zeros((n,) + src.shape[1:], dtype=src.dtype)
    return out.index_add_(0, seg, src)
def _pad(x, pw):
    flat = tuple(v for pair in reversed(pw) for v in pair)
    return torch.nn.functional.pad(x, flat)

kernel_name = 'sequential_preLN__gqa_block_cached__mixer_token_mlp__decode'

def setup_inputs():

    _w = (lambda a: (lambda t: t.to(torch.bfloat16) if t.is_floating_point() else t)(torch.as_tensor(a)))
    def _A_setup():
        B, Sq, D = 2, 1, 576
        Hq, Hkv, Sk, Dh = 32, 16, 8192, 128
        assert Hq % Hkv == 0, (Hq, Hkv)
        return {
            "x": _w((lambda *s: torch.randn(*s, dtype=torch.bfloat16) * 0.1)(B, Sq, D)),
            "k_cache": _w((lambda *s: torch.randn(*s, dtype=torch.bfloat16) * 1.6)(B, Hkv, Sk, Dh)),
            "v_cache": _w((lambda *s: torch.randn(*s, dtype=torch.bfloat16) * 1.6)(B, Hkv, Sk, Dh)),
            "wq": _w((lambda *s: torch.randn(*s, dtype=torch.bfloat16) * 1.6)(D, Hq * Dh) * (D ** -0.5)),
            "wo": _w((lambda *s: torch.randn(*s, dtype=torch.bfloat16) * 1.6)(Hq * Dh, D) * ((Hq * Dh) ** -0.5)),
        }
    _A_in = _A_setup()

    def _B_setup():
        B, S, D, F = 2, 1, 576, 4608
        return {
            "x": _w((lambda *s: torch.randn(*s, dtype=torch.bfloat16) * 0.1)(B, S, D)),
            "w1": _w((lambda *s: torch.randn(*s, dtype=torch.bfloat16) * 3.2)(S, F) * (S ** -0.5)),
            "b1": _w((lambda *s: torch.randn(*s, dtype=torch.bfloat16) * 3.2)(F) * 0.02),
            "w2": _w((lambda *s: torch.randn(*s, dtype=torch.bfloat16) * 0.8)(F, S) * (F ** -0.5)),
            "b2": _w((lambda *s: torch.randn(*s, dtype=torch.bfloat16) * 0.8)(S) * 0.02),
        }
    _B_in = _B_setup()

    return {
        "A_x": _A_in["x"],
        "A_k_cache": _A_in["k_cache"],
        "A_v_cache": _A_in["v_cache"],
        "A_wq": _A_in["wq"],
        "A_wo": _A_in["wo"],
        "B_x": _B_in["x"],
        "B_w1": _B_in["w1"],
        "B_b1": _B_in["b1"],
        "B_w2": _B_in["w2"],
        "B_b2": _B_in["b2"],
    }

def reference(A_x, A_k_cache, A_v_cache, A_wq, A_wo, B_x, B_w1, B_b1, B_w2, B_b2):
    def _A_ref(x, k_cache, v_cache, wq, wo):
        B, Sq, D = x.shape
        Hq, Dh = 32, 128
        Hkv = k_cache.shape[1]
        rep = Hq // Hkv
        q = (lambda x, *d: x.permute(*d))((x @ wq).reshape(B, Sq, Hq, Dh), 0, 2, 1, 3)
        k = (lambda x, n, axis: torch.repeat_interleave(x, n, dim=axis))(k_cache, rep, axis=1)
        v = (lambda x, n, axis: torch.repeat_interleave(x, n, dim=axis))(v_cache, rep, axis=1)
        scores = torch.einsum("bhqd,bhkd->bhqk", q, k) * (Dh ** -0.5)
        p = _softmax(scores, axis=-1)
        o = torch.einsum("bhqk,bhkd->bhqd", p, v)
        return (lambda x, *d: x.permute(*d))(o, 0, 2, 1, 3).reshape(B, Sq, Hq * Dh) @ wo

    def _B_ref(x, w1, b1, w2, b2):
        B, S, D = x.shape
        h = _layernorm(x, axis=-1)
        u = torch.einsum("bsd,sf->bdf", h, w1) + b1
        u = _gelu(u)
        y = torch.einsum("bdf,fs->bds", u, w2) + b2
        return (lambda x, *d: x.permute(*d))(y, 0, 2, 1)

    x = A_x
    h = x + _A_ref(_layernorm(x, axis=-1), A_k_cache, A_v_cache, A_wq, A_wo)
    h2 = h + _B_ref(_layernorm(h, axis=-1), B_w1, B_b1, B_w2, B_b2)
    return h2
```

```python
import re

TRANS = ("v_exp_f32", "v_log_f32", "v_rcp_f32", "v_rsq_f32", "v_sqrt_f32", "v_sin_f32", "v_cos_f32")


def regs_of(tok):
    tok = tok.strip()
    tok = tok.lstrip("-")
    m = re.fullmatch(r"abs\((.*)\)|\|(.*)\|", tok)
    if m:
        tok = m.group(1) or m.group(2)
    m = re.fullmatch(r"([vsa])\[(\d+):(\d+)\]", tok)
    if m:
        return {f"{m.group(1)}{i}" for i in range(int(m.group(2)), int(m.group(3)) + 1)}
    if re.fullmatch(r"[vsa]\d+", tok):
        return {tok}
    if tok in ("vcc", "vcc_lo", "vcc_hi"):
        return {"vcc"}
    if tok in ("exec", "exec_lo", "exec_hi"):
        return {"exec"}
    if tok == "m0":
        return {"m0"}
    return set()


class Ins:
    def __init__(self, text):
        self.text = text
        body = text.split(";")[0].strip()
        parts = body.split(None, 1)
        self.op = parts[0]
        rest = parts[1] if len(parts) > 1 else ""
        ops = []
        depth = 0
        cur = ""
        for ch in rest:
            if ch in "[(":
                depth += 1
            if ch in "])":
                depth -= 1
            if ch == "," and depth == 0:
                ops.append(cur.strip())
                cur = ""
            else:
                cur += ch
        if cur.strip():
            ops.append(cur.strip())
        self.mods = ""
        if ops:
            last = ops[-1].split(None, 1)
            ops[-1] = last[0]
            if len(last) > 1:
                self.mods = last[1]
        self.ops = ops
        op = self.op
        self.is_mfma = op.startswith("v_mfma")
        self.is_valu = op.startswith("v_") and not self.is_mfma
        self.is_trans = any(op.startswith(t) for t in TRANS)
        self.is_dpp = "_dpp" in op or "quad_perm" in self.mods or "row_" in self.mods
        self.is_permlane = op.startswith("v_permlane")
        self.is_readlane = op.startswith("v_readlane") or op.startswith("v_readfirstlane")
        self.is_vmem = op.startswith(("buffer_", "global_", "flat_"))
        self.is_ds = op.startswith("ds_")
        self.is_salu = op.startswith("s_")
        self.defs, self.uses = set(), set()
        R = [regs_of(o) for o in ops]
        if self.is_mfma:
            self.defs = R[0]
            self.srcA, self.srcB, self.srcC = R[1], R[2], R[3]
            self.uses = R[1] | R[2] | R[3]
        elif self.is_valu:
            if op.startswith("v_cmp"):
                self.defs = R[0]
                self.uses = set().union(*R[1:])
            elif self.is_permlane:
                self.defs = R[0] | R[1]
                self.uses = R[0] | R[1]
            elif op.startswith(("v_add_co", "v_sub_co", "v_addc_co", "v_subb_co")):
                self.defs = R[0] | R[1]
                self.uses = set().union(*R[2:])
            else:
                self.defs = R[0]
                self.uses = set().union(*R[1:]) if len(R) > 1 else set()
                if op.startswith(("v_fmac", "v_writelane", "v_dot2c")) or self.is_dpp:
                    self.uses |= R[0]
        elif self.is_vmem:
            if "store" in op or ("atomic" in op and "sc0" not in self.mods):
                self.uses = set().union(*R)
                if op.startswith("buffer_"):
                    self.store_data = R[0]
                else:
                    self.store_data = R[1]
            else:
                self.defs = R[0]
                self.uses = set().union(*R[1:])
                if "atomic" in op and op.startswith("buffer_"):
                    self.uses |= R[0]
        elif self.is_ds:
            if op.startswith(("ds_write", "ds_add_f32", "ds_add_u32")) and "rtn" not in op:
                self.uses = set().union(*R)
            else:
                self.defs = R[0]
                self.uses = set().union(*R[1:])
        elif self.is_salu:
            if op.startswith(("s_cmp", "s_cbranch", "s_branch", "s_waitcnt", "s_nop", "s_barrier", "s_endpgm",
                              "s_sleep", "s_setprio")):
                self.uses = set().union(*R) if R else set()
            else:
                self.defs = R[0] if R else set()
                self.uses = set().union(*R[1:]) if len(R) > 1 else set()

    def states(self):
        if self.op == "s_nop":
            return int(self.ops[0], 0) + 1
        return 1


def need(prod, cons):
    n = 0
    vdefs = {r for r in prod.defs if r[0] in "va" and r != "vcc"}
    sdefs = {r for r in prod.defs if r[0] == "s" or r == "vcc"}
    if prod.is_valu:
        if vdefs & cons.uses:
            if cons.is_mfma:
                n = max(n, 2)
            if cons.is_dpp or cons.is_permlane:
                n = max(n, 2)
            if cons.is_readlane:
                n = max(n, 1)
            if prod.is_trans and cons.is_valu and not cons.is_trans:
                n = max(n, 1)
            if prod.is_trans and not cons.is_valu:
                n = max(n, 1)
        if sdefs:
            cu = set(cons.uses)
            if cons.op.startswith("v_cndmask") and len(cons.ops) == 3:
                cu.add("vcc")
            if sdefs & cu:
                if cons.is_valu:
                    n = max(n, 4 if cons.op.startswith(("v_readlane", "v_writelane")) else 2)
                if cons.is_vmem:
                    n = max(n, 5)
                if cons.is_salu:
                    n = max(n, 2)
            if "vcc" in sdefs and cons.op in ("s_cbranch_vccz", "s_cbranch_vccnz"):
                n = max(n, 5)
    if prod.is_mfma:
        p = 8 if "32x32" in prod.op else 4
        raw = {4: 8, 8: 12}[p]
        ovl = {4: 6, 8: 10}[p]
        war = {4: 3, 8: 7}[p]
        if cons.is_mfma:
            if prod.defs & (cons.srcA | cons.srcB):
                n = max(n, raw)
            if prod.defs & cons.srcC and prod.defs != cons.srcC:
                n = max(n, ovl)
            if prod.defs & cons.defs and prod.defs != cons.srcC:
                n = max(n, raw)
        else:
            if prod.defs & (cons.uses | cons.defs):
                n = max(n, raw)
            if cons.is_valu and prod.srcC & cons.defs:
                n = max(n, war)
    if prod.is_vmem and hasattr(prod, "store_data") and len(prod.store_data) >= 3:
        if prod.store_data & cons.defs:
            n = max(n, 2)
    if prod.is_salu and "m0" in prod.defs and (cons.is_vmem and "lds" in cons.mods):
        n = max(n, 1)
    return n


MAXD = 12


class Asm:
    def __init__(self):
        self.items = []

    def __call__(self, text):
        for line in text.strip().split("\n"):
            line = line.strip()
            if line:
                self.items.append(line)

    def raw(self, text):
        self.items.append("#RAW " + text)

    def finish(self):
        out = []
        hist = []

        def worst_pending():
            worst = 0
            d = 0
            for p in reversed(hist):
                if p is None:
                    break
                w = 0
                if p.is_mfma:
                    w = 12 if "32x32" in p.op else 8
                elif p.is_valu:
                    w = 5 if any(r[0] == "s" or r == "vcc" for r in p.defs) else 2
                elif p.is_vmem and hasattr(p, "store_data") and len(p.store_data) >= 3:
                    w = 2
                worst = max(worst, w - d)
                d += p.states()
                if d >= MAXD:
                    break
            return worst

        def pad(n):
            while n > 0:
                k = min(n, 16)
                t = f"s_nop {k - 1}"
                out.append("    " + t)
                hist.append(Ins(t))
                n -= k

        for it in self.items:
            if it.startswith("#RAW "):
                out.append(it[5:])
                continue
            if it.startswith(";"):
                out.append("    " + it)
                continue
            if it.endswith(":"):
                pad(worst_pending())
                out.append(it)
                hist.append(None)
                continue
            if it.startswith("."):
                out.append(it)
                continue
            ins = Ins(it)
            req = 0
            d = 0
            for p in reversed(hist):
                if p is None:
                    break
                req = max(req, need(p, ins) - d)
                d += p.states()
                if d >= MAXD:
                    break
            if ins.op.startswith(("s_cbranch", "s_branch")):
                req = max(req, worst_pending() - 1)
            pad(req)
            out.append("    " + it)
            hist.append(ins)
        return "\n".join(out) + "\n"
```

```python
import struct
import sys
from asmlib import Asm

NAME = "sequential_preLN__gqa_block_cached__mixer_token_mlp__decode"

EPOCH = 0
QX = 0x10000
E1 = 0x60000
FIN = 0xC0000
TAB = 0xE0000
STAMP = 0x100000
WS_SPAN = 0x200000
L_Q = 0
L_TAG = 512
L_CNT = 520
L_TP = 576
L_TY = 896
L_P = 1024
L_PS = 5120
L_R = 8192
L_TAB = 26624
L_ST = 35840
LDS_BYTES = 36096

TAB_LO = 0x3900
TAB_N = 2304
LOG2E = 1.4426950408889634
FINAL_WG = (4, 133)


def f2u(x):
    return struct.unpack("<I", struct.pack("<f", x))[0]


def hx(x):
    return hex(f2u(x))


def gen(Tn=66, To=50, stamps=False, ring=6, pre_throttle=8, wo_throttle=0, q_sleep0=16, q_sleep=4,
        tail_sleep=1, prio=1):
    a = Asm()
    stamp_n = [0]

    def stamp(i):
        if stamps:
            a(f"s_memrealtime s[{70 + 2 * i}:{71 + 2 * i}]")

    def stamp_flush(first, last, slot_base):
        if not stamps:
            return
        a("s_waitcnt lgkmcnt(0)")
        a("s_mov_b64 exec, 1")
        a("s_lshl_b32 s48, s2, 8")
        a(f"s_add_u32 s48, s48, {STAMP}")
        a("v_mov_b32 v60, 0")
        for i in range(first, last + 1):
            a(f"v_mov_b32 v62, s{70 + 2 * i}")
            a(f"v_mov_b32 v63, s{71 + 2 * i}")
            a(f"buffer_store_dwordx2 v[62:63], v60, s[12:15], s48 offen offset:{(slot_base + i) * 8}")
            a("s_nop 1")
        a("s_mov_b64 exec, -1")

    def rb(dst, src):
        a(f"v_cvt_pk_bf16_f32 {dst}, 0, {src}")

    def red8(op, v):
        a(f"{op}_dpp {v}, {v}, {v} quad_perm:[1,0,3,2] row_mask:0xf bank_mask:0xf")
        a(f"{op}_dpp {v}, {v}, {v} quad_perm:[2,3,0,1] row_mask:0xf bank_mask:0xf")
        a(f"{op}_dpp {v}, {v}, {v} row_half_mirror row_mask:0xf bank_mask:0xf")

    def red16(op, v):
        red8(op, v)
        a(f"{op}_dpp {v}, {v}, {v} row_ror:8 row_mask:0xf bank_mask:0xf")

    def x16(op, v, t):
        a(f"v_mov_b32 {t}, {v}")
        a(f"v_permlane16_swap_b32 {v}, {t}")
        a(f"{op} {v}, {v}, {t}")

    def x32(op, v, t):
        a(f"v_mov_b32 {t}, {v}")
        a(f"v_permlane32_swap_b32 {v}, {t}")
        a(f"{op} {v}, {v}, {t}")

    def pack3(d, s):
        a(f"v_perm_b32 v{d}, v{s}, v{s + 3}, s64")
        a(f"v_perm_b32 v{d + 1}, v{s + 1}, v{s + 3}, s65")
        a(f"v_perm_b32 v{d + 2}, v{s + 2}, v{s + 3}, s66")

    def unpack4th(g):
        a(f"v_perm_b32 v{g + 3}, v{g + 2}, v{g + 1}, s67")
        a(f"v_perm_b32 v{g + 3}, v{g + 3}, v{g}, s68")

    def masks(base):
        a("v_and_b32 v62, 1, v0")
        a("v_cmp_eq_u32 vcc, 1, v62")
        a("v_mov_b32 v62, 0xffff")
        a("v_mov_b32 v63, 0xffff0000")
        a("v_cndmask_b32 v62, v62, v63, vcc")
        a("v_bfe_u32 v63, v0, 1, 2")
        for q in range(4):
            a(f"v_cmp_eq_u32 vcc, {q}, v63")
            a(f"v_cndmask_b32 v{base + q}, 0, v62, vcc")

    def gelu_evals(items, vc0, vc1, acc, sa):
        for (w1, b1, w2, u, t) in items:
            a(f"v_mul_f32 {u}, {sa}, {w1}")
        for (w1, b1, w2, u, t) in items:
            rb(u, u)
        for (w1, b1, w2, u, t) in items:
            a(f"v_add_f32 {u}, {u}, {b1}")
        for (w1, b1, w2, u, t) in items:
            rb(u, u)
        for (w1, b1, w2, u, t) in items:
            a(f"v_mul_f32 {t}, {u}, {u}")
        for (w1, b1, w2, u, t) in items:
            a(f"v_fma_f32 {t}, {t}, {vc1}, {vc0}")
        for (w1, b1, w2, u, t) in items:
            a(f"v_mul_f32 {t}, {t}, {u}")
        for (w1, b1, w2, u, t) in items:
            a(f"v_exp_f32 {t}, {t}")
        for (w1, b1, w2, u, t) in items:
            a(f"v_add_f32 {t}, 1.0, {t}")
        for (w1, b1, w2, u, t) in items:
            a(f"v_rcp_f32 {t}, {t}")
        for (w1, b1, w2, u, t) in items:
            a(f"v_mul_f32 {t}, {t}, {u}")
        for (w1, b1, w2, u, t) in items:
            rb(t, t)
        for (w1, b1, w2, u, t) in items:
            a(f"v_fmac_f32 {acc}, {t}, {w2}")

    BETA = 0.7978845608028654
    C0 = -2.0 * BETA * LOG2E
    C1 = C0 * 0.044715

    a.raw(f"; @launch grid=(256,1,1) block=(512,1,1) lds={LDS_BYTES}")
    a.raw('.amdgcn_target "amdgcn-amd-amdhsa--gfx950"')
    a.raw(".text")
    a.raw(f".globl {NAME}_kernel")
    a.raw(".p2align 8")
    a.raw(f".type {NAME}_kernel,@function")
    a.raw(f"{NAME}_kernel:")
    stamp(0)
    a("s_cmp_ge_u32 s2, 256")
    a("s_cbranch_scc1 L_end")
    a("s_load_dwordx16 s[16:31], s[0:1], 0")
    a("s_load_dwordx8 s[32:39], s[0:1], 64")
    a("s_load_dwordx2 s[40:41], s[0:1], 96")
    a("v_lshrrev_b32 v1, 6, v0")
    a("v_and_b32 v0, 63, v0")
    a("v_readfirstlane_b32 s3, v1")
    a("s_lshr_b32 s42, s2, 7")
    a("s_bfe_u32 s43, s2, 0x40003")
    a("s_and_b32 s44, s2, 7")
    a("s_and_b32 s48, s43, 7")
    a("s_cmp_eq_u32 s44, s48")
    a("s_cselect_b32 s45, 1, 0")
    a(f"s_cselect_b32 s49, {To}, {Tn}")
    a("s_cmp_gt_u32 s44, s48")
    a(f"s_cselect_b32 s50, {Tn - To}, 0")
    a(f"s_mul_i32 s51, s44, {Tn}")
    a("s_sub_u32 s51, s51, s50")
    a("s_mov_b32 s46, 0")
    a(f"s_cmp_eq_u32 s2, {FINAL_WG[0]}")
    a("s_cselect_b32 s46, 1, s46")
    a(f"s_cmp_eq_u32 s2, {FINAL_WG[1]}")
    a("s_cselect_b32 s46, 2, s46")
    a("s_mov_b32 s60, 0x00ff00ff")
    a("s_mov_b32 s61, 0xff00ff00")
    a(f"s_mov_b32 s62, {hx(LOG2E)}")
    a(f"s_mov_b32 s63, {hx(128 ** -0.5)}")
    a("s_mov_b32 s64, 0x07060501")
    a("s_mov_b32 s65, 0x07060502")
    a("s_mov_b32 s66, 0x07060503")
    a("s_mov_b32 s67, 0x04000c0c")
    a("s_mov_b32 s68, 0x0706000c")
    a("s_cmp_ge_u32 s3, 4")
    a("s_cbranch_scc1 L_helper")

    RING = 64
    a("s_lshr_b32 s52, s2, 3")
    a("s_lshl_b32 s52, s52, 9")
    a("s_add_u32 s52, s52, s51")
    a("s_add_u32 s53, s52, s49")
    a("s_lshl_b32 s53, s53, 12")
    a("s_add_u32 s52, s52, s3")
    a("s_lshl_b32 s52, s52, 12")
    a("s_sub_u32 s54, s49, s3")
    a("s_add_u32 s54, s54, 3")
    a("s_lshr_b32 s54, s54, 2")
    a("v_and_b32 v1, 3, v0")
    a("v_lshlrev_b32 v1, 10, v1")
    a("v_bfe_u32 v2, v0, 2, 2")
    a("v_lshlrev_b32 v2, 8, v2")
    a("v_add_u32 v1, v1, v2")
    a("v_lshrrev_b32 v2, 4, v0")
    a("v_lshlrev_b32 v2, 4, v2")
    a("v_add_u32 v1, v1, v2")
    a("v_lshlrev_b32 v2, 4, v0")
    a("s_waitcnt lgkmcnt(0)")
    a("s_mov_b32 s4, s18")
    a("s_mov_b32 s5, s19")
    a("s_mov_b32 s6, s53")
    a("s_mov_b32 s7, 0x20000")
    a("s_mov_b32 s8, s20")
    a("s_mov_b32 s9, s21")
    a("s_mov_b32 s10, s53")
    a("s_mov_b32 s11, 0x20000")

    def issue_tile(slot):
        kb = RING + 32 * slot
        for c in range(4):
            a(f"buffer_load_dwordx4 v[{kb + 4 * c}:{kb + 4 * c + 3}], v1, s[4:7], s52 offen offset:{64 * c} nt")
        for c in range(4):
            a(f"buffer_load_dwordx4 v[{kb + 16 + 4 * c}:{kb + 19 + 4 * c}], v2, s[8:11], s52 offen offset:{1024 * c} nt")
        a("s_add_u32 s52, s52, 16384")

    issue_tile(0)
    issue_tile(1)
    a("s_mov_b32 s12, s40")
    a("s_mov_b32 s13, s41")
    a(f"s_mov_b32 s14, {WS_SPAN}")
    a("s_mov_b32 s15, 0x20000")
    if prio:
        a(f"s_setprio {prio}")
    masks(4)
    for r in range(4):
        a(f"v_mov_b32 v{8 + r}, 0")
    a("v_mov_b32 v16, 0xff7fffff")
    a("v_mov_b32 v17, 0")
    a("v_bfe_u32 v3, v0, 3, 1")
    a("v_lshlrev_b32 v3, 8, v3")
    a("v_lshrrev_b32 v18, 4, v0")
    a("v_lshl_add_u32 v3, v18, 4, v3")
    for t in range(2, ring):
        a(f"s_waitcnt vmcnt({pre_throttle})")
        issue_tile(t)
    stamp(1)
    a("s_barrier")
    for c in range(4):
        a(f"ds_read_b128 v[{40 + 4 * c}:{43 + 4 * c}], v3 offset:{L_Q + 64 * c}")
    a("v_mov_b32 v18, 0")
    a(f"ds_read_b64 v[56:57], v18 offset:{L_TAG}")
    a("s_mov_b64 vcc, s[60:61]")
    a("s_waitcnt lgkmcnt(0)")
    a("v_readfirstlane_b32 s47, v56")
    a("v_readfirstlane_b32 s55, v57")
    stamp(2)
    a("L_loop:")
    for slot in range(ring):
        kb = RING + 32 * slot
        vb = kb + 16
        a(f"s_waitcnt vmcnt({8 * ring - 4})")
        a(f"v_mfma_f32_16x16x32_bf16 v[12:15], v[{kb}:{kb + 3}], v[40:43], 0")
        for c in range(1, 4):
            a(f"v_mfma_f32_16x16x32_bf16 v[12:15], v[{kb + 4 * c}:{kb + 4 * c + 3}], v[{40 + 4 * c}:{43 + 4 * c}], v[12:15]")
        a("s_sub_u32 s54, s54, 1")
        for r in range(4):
            rb(f"v{12 + r}", f"v{12 + r}")
        for r in range(4):
            a(f"v_mul_f32 v{12 + r}, s63, v{12 + r}")
        for r in range(4):
            rb(f"v{12 + r}", f"v{12 + r}")
        a("v_max3_f32 v18, v12, v13, v14")
        a("v_max3_f32 v18, v18, v15, v16")
        x32("v_max_f32", "v18", "v19")
        x16("v_max_f32", "v18", "v19")
        a("v_sub_f32 v20, v16, v18")
        a("v_mul_f32 v21, s62, v18")
        a("v_mul_f32 v20, s62, v20")
        a("v_mov_b32 v16, v18")
        a("v_exp_f32 v20, v20")
        for r in range(4):
            a(f"v_fma_f32 v{12 + r}, v{12 + r}, s62, -v21")
        for r in range(4):
            a(f"v_exp_f32 v{12 + r}, v{12 + r}")
        a("v_cndmask_b32_dpp v22, v20, v20, vcc row_ror:8 row_mask:0xf bank_mask:0xf")
        a("v_add_f32 v18, v12, v13")
        a("v_add_f32 v19, v14, v15")
        for r in range(4):
            a(f"v_cvt_pk_bf16_f32 v{12 + r}, v{12 + r}, v{12 + r}")
        a("v_add_f32 v18, v18, v19")
        for r in range(4):
            a(f"v_mul_f32 v{8 + r}, v22, v{8 + r}")
        a("v_fma_f32 v17, v17, v20, v18")
        for r in range(4):
            for q in range(4):
                a(f"v_and_b32 v{24 + 4 * r + q}, v{12 + r}, v{4 + q}")
        a(f"s_waitcnt vmcnt({8 * ring - 8})")
        for r in range(4):
            a(f"v_mfma_f32_16x16x32_bf16 v[8:11], v[{24 + 4 * r}:{27 + 4 * r}], v[{vb + 4 * r}:{vb + 4 * r + 3}], v[8:11]")
        a("s_cmp_eq_u32 s54, 0")
        a("s_cbranch_scc1 L_sdone")
        issue_tile(slot)
    a("s_branch L_loop")
    a("L_sdone:")
    stamp(3)
    x32("v_add_f32", "v17", "v19")
    x16("v_add_f32", "v17", "v19")
    a("v_cndmask_b32_dpp v18, v16, v16, vcc row_ror:8 row_mask:0xf bank_mask:0xf")
    a("v_cndmask_b32_dpp v19, v17, v17, vcc row_ror:8 row_mask:0xf bank_mask:0xf")
    a("s_lshl_b32 s48, s3, 10")
    a("v_lshl_add_u32 v20, v0, 4, s48")
    a("s_lshl_b32 s48, s3, 9")
    a("v_lshl_add_u32 v21, v0, 3, s48")
    a(f"ds_write_b128 v20, v[8:11] offset:{L_P}")
    a(f"ds_write_b64 v21, v[18:19] offset:{L_PS}")
    a("s_waitcnt lgkmcnt(0)")
    a("s_barrier")
    a("s_cmp_eq_u32 s3, 0")
    a("s_cbranch_scc0 L_after_pub")
    a("v_lshlrev_b32 v20, 4, v0")
    a("v_lshlrev_b32 v21, 3, v0")
    for w in range(4):
        a(f"ds_read_b64 v[{24 + 2 * w}:{25 + 2 * w}], v21 offset:{L_PS + 512 * w}")
    for w in range(1, 4):
        a(f"ds_read_b128 v[{32 + 4 * w}:{35 + 4 * w}], v20 offset:{L_P + 1024 * w}")
    a("s_lshl_b32 s48, s43, 5")
    a("s_lshl_b32 s49, s42, 3")
    a("s_add_u32 s48, s48, s49")
    a("s_add_u32 s48, s48, s44")
    a("s_mul_i32 s48, s48, 640")
    a(f"s_add_u32 s48, s48, {E1}")
    a("v_lshrrev_b32 v22, 5, v0")
    a(f"v_mul_u32_u24 v22, {16 * 640}, v22")
    a("v_and_b32 v23, 15, v0")
    a("v_lshl_add_u32 v23, v23, 5, v22")
    a("v_bfe_u32 v12, v0, 4, 1")
    a("v_lshl_add_u32 v23, v12, 4, v23")
    a("s_waitcnt lgkmcnt(3)")
    a("v_max_f32 v12, v24, v26")
    a("v_max3_f32 v12, v12, v28, v30")
    for w in range(4):
        a(f"v_sub_f32 v{24 + 2 * w}, v{24 + 2 * w}, v12")
    for w in range(4):
        a(f"v_mul_f32 v{24 + 2 * w}, s62, v{24 + 2 * w}")
    for w in range(4):
        a(f"v_exp_f32 v{24 + 2 * w}, v{24 + 2 * w}")
    a("v_mul_f32 v13, v24, v25")
    for r in range(4):
        a(f"v_mul_f32 v{8 + r}, v24, v{8 + r}")
    a("s_waitcnt lgkmcnt(0)")
    for w in range(1, 4):
        for r in range(4):
            a(f"v_fmac_f32 v{8 + r}, v{24 + 2 * w}, v{32 + 4 * w + r}")
    pack3(16, 8)
    a("v_mov_b32 v19, s47")
    a("buffer_store_dwordx4 v[16:19], v23, s[12:15], s48 offen sc1")
    for w in range(1, 4):
        a(f"v_fmac_f32 v13, v{24 + 2 * w}, v{25 + 2 * w}")
    a("v_mov_b32 v14, 0")
    a("v_mov_b32 v15, s47")
    a("s_mov_b32 exec_lo, 1")
    a("s_mov_b32 exec_hi, 1")
    a("buffer_store_dwordx4 v[12:15], v22, s[12:15], s48 offen offset:512 sc1")
    a("s_mov_b64 exec, -1")
    stamp(4)
    stamp_flush(0, 4, 0)
    a("L_after_pub:")
    a("s_cmp_lg_u32 s46, 0")
    a("s_cbranch_scc1 L_final")
    a("s_endpgm")

    a("L_helper:")
    a("s_sub_u32 s56, s3, 4")
    a("s_waitcnt lgkmcnt(0)")
    a("s_mov_b32 s12, s40")
    a("s_mov_b32 s13, s41")
    a(f"s_mov_b32 s14, {WS_SPAN}")
    a("s_mov_b32 s15, 0x20000")
    a("s_mov_b32 s8, s24")
    a("s_mov_b32 s9, s25")
    a("s_mov_b32 s10, 4718592")
    a("s_mov_b32 s11, 0x20000")

    def load_mlp_weights():
        a("s_mul_i32 s48, s56, 2304")
        a("v_mul_u32_u24 v1, 36, v0")
        for k, (sp, dst) in enumerate(((28, 8), (30, 20), (32, 30))):
            a(f"s_mov_b32 s4, s{sp}")
            a(f"s_mov_b32 s5, s{sp + 1}")
            a("s_mov_b32 s6, 9216")
            a("s_mov_b32 s7, 0x20000")
            a(f"buffer_load_dwordx4 v[{dst}:{dst + 3}], v1, s[4:7], s48 offen")
            a(f"buffer_load_dwordx4 v[{dst + 4}:{dst + 7}], v1, s[4:7], s48 offen offset:16")
            a(f"buffer_load_dword v{dst + 8}, v1, s[4:7], s48 offen offset:32")
        a("s_mov_b32 s4, s34")
        a("s_mov_b32 s5, s35")
        a("s_mov_b32 s6, 2")
        a("s_mov_b32 s7, 0x20000")
        a("v_mov_b32 v2, 0")
        a("buffer_load_ushort v94, v2, s[4:7], 0 offen")
        a("s_waitcnt vmcnt(0)")
        for (dst, out) in ((8, 40), (20, 58), (30, 76)):
            for k in range(9):
                a(f"v_lshlrev_b32 v{out + 2 * k}, 16, v{dst + k}")
                a(f"v_and_b32 v{out + 2 * k + 1}, 0xffff0000, v{dst + k}")
        a("v_lshlrev_b32 v94, 16, v94")

    def load_wo(label):
        a("s_cmp_eq_u32 s45, 0")
        a(f"s_cbranch_scc1 {label}")
        a("s_lshl_b32 s48, s43, 1")
        a("s_add_u32 s48, s48, s42")
        a(f"s_mul_i32 s48, s48, {128 * 1152}")
        a(f"s_mul_i32 s49, s56, {32 * 1152}")
        a("s_add_u32 s48, s48, s49")
        a("v_lshrrev_b32 v1, 4, v0")
        a(f"v_mul_u32_u24 v1, {4 * 1152}, v1")
        a("v_and_b32 v2, 15, v0")
        a("v_lshl_add_u32 v1, v2, 4, v1")
        i = 0
        for u in range(2):
            for e in range(4):
                a(f"s_add_u32 s49, s48, {(16 * u + e) * 1152}")
                for cg in range(5):
                    if cg == 4:
                        a("s_mov_b32 exec_lo, 0x00ff00ff")
                        a("s_mov_b32 exec_hi, 0x00ff00ff")
                    r = 96 + 4 * i
                    a(f"buffer_load_dwordx4 v[{r}:{r + 3}], v1, s[8:11], s49 offen offset:{256 * cg} nt")
                    if cg == 4:
                        a("s_mov_b64 exec, -1")
                    i += 1
                if wo_throttle and i > wo_throttle:
                    a(f"s_waitcnt vmcnt({wo_throttle})")
        a(f"{label}:")

    a("s_cmp_eq_u32 s56, 0")
    a("s_cbranch_scc1 L_qphase")
    load_mlp_weights()
    load_wo("L_nowo_a")
    a("s_barrier")
    a("s_branch L_table")

    a("L_qphase:")
    a("s_mov_b32 s4, s16")
    a("s_mov_b32 s5, s17")
    a("s_mov_b32 s6, 2304")
    a("s_mov_b32 s7, 0x20000")
    a("v_lshrrev_b32 v1, 5, v0")
    a("v_mul_u32_u24 v1, 1152, v1")
    a("v_and_b32 v2, 31, v0")
    a("v_mul_u32_u24 v2, 36, v2")
    a("v_add_u32 v1, v1, v2")
    a("v_mov_b32 v2, 0")
    a("buffer_load_dwordx4 v[12:15], v1, s[4:7], 0 offen")
    a("buffer_load_dwordx4 v[16:19], v1, s[4:7], 0 offen offset:16")
    a("buffer_load_dword v20, v1, s[4:7], 0 offen offset:32")
    a(f"buffer_load_dword v21, v2, s[12:15], 0 offen offset:{EPOCH} sc1")
    a("s_mov_b32 s4, s22")
    a("s_mov_b32 s5, s23")
    a("s_mov_b32 s6, 4718592")
    a("s_mov_b32 s7, 0x20000")
    a("s_lshl_b32 s48, s43, 1")
    a("s_add_u32 s48, s48, s42")
    a("s_lshl_b32 s48, s48, 8")
    a(f"s_mul_i32 s49, s44, {72 * 8192}")
    a("s_add_u32 s48, s48, s49")
    a("v_lshrrev_b32 v1, 4, v0")
    a(f"v_mul_u32_u24 v1, {18 * 8192}, v1")
    a("v_and_b32 v2, 15, v0")
    a("v_lshl_add_u32 v1, v2, 4, v1")
    for t in range(18):
        a(f"buffer_load_dwordx4 v[{96 + 4 * t}:{99 + 4 * t}], v1, s[4:7], s48 offen nt")
        a("s_add_u32 s48, s48, 8192")
    masks(4)
    a("s_waitcnt vmcnt(18)")
    a("v_readfirstlane_b32 s55, v21")
    for k in range(9):
        a(f"v_lshlrev_b32 v{40 + 2 * k}, 16, v{12 + k}")
        a(f"v_and_b32 v{41 + 2 * k}, 0xffff0000, v{12 + k}")
    a("s_add_u32 s55, s55, 1")
    a("s_mul_i32 s47, s55, 0x9E3779B1")
    a("v_add_f32 v22, v40, v41")
    for k in range(2, 18):
        a(f"v_add_f32 v22, v22, v{40 + k}")
    red16("v_add_f32", "v22")
    x16("v_add_f32", "v22", "v23")
    a(f"v_mul_f32 v22, {hx(1.0 / 576)}, v22")
    a("v_mov_b32 v24, 0")
    for k in range(18):
        a(f"v_sub_f32 v23, v{40 + k}, v22")
        a("v_fmac_f32 v24, v23, v23")
    red16("v_add_f32", "v24")
    x16("v_add_f32", "v24", "v23")
    a(f"v_mul_f32 v24, {hx(1.0 / 576)}, v24")
    rb("v22", "v22")
    rb("v24", "v24")
    a(f"v_add_f32 v24, {hx(1e-5)}, v24")
    rb("v24", "v24")
    a("v_sqrt_f32 v24, v24")
    rb("v24", "v24")
    a("v_rcp_f32 v24, v24")
    for k in range(18):
        a(f"v_sub_f32 v{40 + k}, v{40 + k}, v22")
    for k in range(18):
        rb(f"v{40 + k}", f"v{40 + k}")
    for k in range(18):
        a(f"v_mul_f32 v{40 + k}, v{40 + k}, v24")
    for k in range(9):
        a(f"v_cvt_pk_bf16_f32 v{12 + k}, v{40 + 2 * k}, v{41 + 2 * k}")
    a("v_bfe_u32 v1, v0, 3, 1")
    a("v_lshlrev_b32 v1, 5, v1")
    a("v_lshrrev_b32 v2, 4, v0")
    a("v_add_u32 v1, v1, v2")
    a("s_lshl_b32 s48, s44, 2")
    a("v_add_lshl_u32 v1, v1, s48, 2")
    for k in range(9):
        a(f"ds_bpermute_b32 v{24 + k}, v1, v{12 + k}")
    a("s_mov_b32 s48, 0x01000100")
    a("s_mov_b32 s49, 0x03020302")
    a("s_waitcnt lgkmcnt(0)")
    for t in range(18):
        ab = 36 + 4 * (t & 1)
        a(f"v_perm_b32 v33, v{24 + t // 2}, v{24 + t // 2}, s{48 + (t & 1)}")
        for q in range(4):
            a(f"v_and_b32 v{ab + q}, v33, v{4 + q}")
        a(f"s_waitcnt vmcnt({17 - t})")
        c = "0" if t == 0 else "v[8:11]"
        a(f"v_mfma_f32_16x16x32_bf16 v[8:11], v[{ab}:{ab + 3}], v[{96 + 4 * t}:{99 + 4 * t}], {c}")
    a("s_lshl_b32 s48, s43, 14")
    a("s_lshl_b32 s49, s42, 12")
    a("s_add_u32 s49, s49, s48")
    a("s_lshl_b32 s50, s44, 9")
    a("s_add_u32 s49, s49, s50")
    a(f"s_add_u32 s49, s49, {QX}")
    a("v_lshrrev_b32 v1, 5, v0")
    a("v_lshlrev_b32 v1, 13, v1")
    a("v_and_b32 v2, 31, v0")
    a("v_lshl_add_u32 v1, v2, 4, v1")
    a("v_mov_b32 v15, s47")
    pack3(12, 8)
    a("buffer_store_dwordx4 v[12:15], v1, s[12:15], s49 offen sc1")
    stamp(1)
    a("s_lshl_b32 s49, s42, 13")
    a("s_add_u32 s48, s48, s49")
    a(f"s_add_u32 s48, s48, {QX}")
    a("s_add_u32 s49, s48, 4096")
    a("v_lshlrev_b32 v1, 4, v0")
    a("s_mov_b32 s50, 0")
    if q_sleep0:
        a(f"s_sleep {q_sleep0}")
    a("L_qpoll:")
    for u in range(8):
        so = "s48" if u < 4 else "s49"
        a(f"buffer_load_dwordx4 v[{168 + 4 * u}:{171 + 4 * u}], v1, s[12:15], {so} offen offset:{1024 * (u & 3)} sc1")
    a("s_waitcnt vmcnt(0)")
    a("v_mov_b32 v2, 0")
    for u in range(8):
        a(f"v_xor_b32 v33, s47, v{171 + 4 * u}")
        a("v_or_b32 v2, v2, v33")
    a("v_cmp_ne_u32 vcc, 0, v2")
    a("s_cbranch_vccz L_qgot")
    a(f"s_sleep {q_sleep}")
    a("s_add_u32 s50, s50, 1")
    a("s_cmp_lt_u32 s50, 0x100000")
    a("s_cbranch_scc1 L_qpoll")
    a("L_qgot:")
    for u in range(8):
        unpack4th(168 + 4 * u)
    for hh in range(2):
        for e in range(4):
            g = 168 + 16 * hh + e
            a(f"v_add_f32 v{g}, v{g}, v{g + 4}")
            a(f"v_add_f32 v{g + 8}, v{g + 8}, v{g + 12}")
        for e in range(4):
            g = 168 + 16 * hh + e
            a(f"v_add_f32 v{g}, v{g}, v{g + 8}")
    for e in range(4):
        a(f"v_permlane32_swap_b32 v{168 + e}, v{184 + e}")
    for e in range(4):
        a(f"v_add_f32 v{168 + e}, v{168 + e}, v{184 + e}")
    a("v_cvt_pk_bf16_f32 v12, v168, v169")
    a("v_cvt_pk_bf16_f32 v13, v170, v171")
    a("v_lshrrev_b32 v1, 5, v0")
    a("v_lshlrev_b32 v1, 8, v1")
    a("v_and_b32 v2, 15, v0")
    a("v_lshl_add_u32 v1, v2, 4, v1")
    a("v_bfe_u32 v2, v0, 4, 1")
    a("v_lshl_add_u32 v1, v2, 3, v1")
    a(f"ds_write_b64 v1, v[12:13] offset:{L_Q}")
    a("v_mov_b32 v14, s47")
    a("v_mov_b32 v15, s55")
    a("v_mov_b32 v2, 0")
    a(f"ds_write_b64 v2, v[14:15] offset:{L_TAG}")
    a(f"ds_write_b32 v2, v2 offset:{L_CNT}")
    a("s_waitcnt lgkmcnt(0)")
    stamp(2)
    a("s_barrier")
    load_mlp_weights()
    load_wo("L_nowo_b")

    a("L_table:")
    a("v_mov_b32 v2, 0")
    a(f"ds_read_b64 v[8:9], v2 offset:{L_TAG}")
    a("s_and_b32 s48, s2, 127")
    a("s_mul_i32 s48, s48, 18")
    a(f"s_add_u32 s48, s48, {TAB_LO}")
    a("s_lshl_b32 s49, s42, 15")
    a("s_or_b32 s48, s48, s49")
    a("s_lshl_b32 s57, s48, 16")
    a(f"v_mov_b32 v38, {hx(C0)}")
    a(f"v_mov_b32 v39, {hx(C1)}")
    a("s_mul_i32 s48, s56, 72")
    a("v_mov_b32 v3, s48")
    a("s_mov_b32 s58, 18")
    a("s_waitcnt lgkmcnt(0)")
    a("v_readfirstlane_b32 s47, v8")
    a("v_readfirstlane_b32 s55, v9")
    a("L_tloop:")
    a("v_mov_b32 v36, 0")
    for g in range(6):
        items = [(f"v{40 + 3 * g + i}", f"v{58 + 3 * g + i}", f"v{76 + 3 * g + i}", f"v{8 + 2 * i}", f"v{9 + 2 * i}")
                 for i in range(3)]
        gelu_evals(items, "v38", "v39", "v36", "s57")
    red16("v_add_f32", "v36")
    x16("v_add_f32", "v36", "v37")
    x32("v_add_f32", "v36", "v37")
    a(f"ds_write_b32 v3, v36 offset:{L_TP}")
    a("v_add_u32 v3, 4, v3")
    a("s_add_u32 s57, s57, 0x10000")
    a("s_sub_u32 s58, s58, 1")
    a("s_cmp_lg_u32 s58, 0")
    a("s_cbranch_scc1 L_tloop")
    a("s_waitcnt lgkmcnt(0)")
    a("v_mov_b32 v8, 1")
    a("s_mov_b64 exec, 1")
    a(f"ds_add_rtn_u32 v9, v2, v8 offset:{L_CNT}")
    a("s_mov_b64 exec, -1")
    a("s_waitcnt lgkmcnt(0)")
    a("v_readfirstlane_b32 s48, v9")
    a("s_cmp_eq_u32 s48, 3")
    a("s_cbranch_scc0 L_tdone")
    a("v_lshlrev_b32 v3, 2, v0")
    a("s_mov_b64 exec, 0x3ffff")
    for w in range(4):
        a(f"ds_read_b32 v{8 + w}, v3 offset:{L_TP + 72 * w}")
    a("v_lshlrev_b32 v3, 1, v0")
    a("s_waitcnt lgkmcnt(0)")
    a("v_add_f32 v8, v8, v9")
    a("v_add_f32 v10, v10, v11")
    a("v_add_f32 v8, v8, v10")
    rb("v8", "v8")
    a("v_add_f32 v8, v8, v94")
    a("v_cvt_pk_bf16_f32 v8, v8, 0")
    a(f"ds_write_b16 v3, v8 offset:{L_TY}")
    a("s_mov_b64 exec, 7")
    a("v_mul_u32_u24 v3, 12, v0")
    a("s_waitcnt lgkmcnt(0)")
    for i in range(3):
        a(f"ds_read_b32 v{8 + i}, v3 offset:{L_TY + 4 * i}")
    a("v_mov_b32 v11, s47")
    a("v_lshlrev_b32 v3, 4, v0")
    a("s_lshl_b32 s48, s2, 7")
    a(f"s_add_u32 s48, s48, {TAB}")
    a("s_waitcnt lgkmcnt(0)")
    a("buffer_store_dwordx4 v[8:11], v3, s[12:15], s48 offen sc1")
    a("s_mov_b64 exec, -1")
    a("L_tdone:")
    stamp(3)
    a("s_cmp_eq_u32 s46, 0")
    a("s_cbranch_scc1 L_nogather")
    a("s_lshl_b32 s48, s56, 13")
    a(f"s_add_u32 s48, s48, {TAB}")
    a("v_lshlrev_b32 v1, 7, v0")
    a("s_mov_b32 s50, 0")
    a("L_gpoll:")
    for u in range(3):
        a(f"buffer_load_dwordx4 v[{8 + 4 * u}:{11 + 4 * u}], v1, s[12:15], s48 offen offset:{16 * u} sc1")
    a("s_waitcnt vmcnt(0)")
    a("v_xor_b32 v2, s47, v11")
    a("v_xor_b32 v3, s47, v15")
    a("v_or_b32 v2, v2, v3")
    a("v_xor_b32 v3, s47, v19")
    a("v_or_b32 v2, v2, v3")
    a("v_cmp_ne_u32 vcc, 0, v2")
    a("s_cbranch_vccz L_ggot")
    a("s_sleep 16")
    a("s_add_u32 s50, s50, 1")
    a("s_cmp_lt_u32 s50, 0x100000")
    a("s_cbranch_scc1 L_gpoll")
    a("L_ggot:")
    a("s_mul_i32 s48, s56, 2304")
    a("v_mul_u32_u24 v1, 36, v0")
    a("v_add_u32 v1, s48, v1")
    for u in range(3):
        for i in range(3):
            a(f"ds_write_b32 v1, v{8 + 4 * u + i} offset:{L_TAB + 12 * u + 4 * i}")
    a("L_nogather:")
    masks(4)
    a("s_lshl_b32 s48, s43, 1")
    a("s_add_u32 s48, s48, s42")
    a(f"s_mul_i32 s49, s48, {16 * 640}")
    a(f"s_add_u32 s49, s49, {E1}")
    a("v_and_b32 v1, 15, v0")
    a("v_mul_u32_u24 v1, 640, v1")
    a("v_lshrrev_b32 v2, 4, v0")
    a("s_lshl_b32 s50, s56, 3")
    a("v_add_lshl_u32 v2, v2, s50, 4")
    a("v_add_u32 v2, v1, v2")
    a("s_waitcnt vmcnt(0) lgkmcnt(0)")
    stamp(4)
    a("s_barrier")
    a("s_cmp_lg_u32 s46, 0")
    a("s_cbranch_scc1 L_final")
    a("s_cmp_eq_u32 s45, 0")
    a("s_cbranch_scc0 L_owner")
    if stamps:
        a("s_cmp_eq_u32 s56, 0")
        a("s_cbranch_scc0 L_end")
        stamp_flush(0, 4, 8)
    a("s_endpgm")

    a("L_owner:")
    a("s_mov_b32 s50, 0")
    a("L_opoll:")
    a("buffer_load_dwordx4 v[8:11], v1, s[12:15], s49 offen offset:512 sc1")
    a("buffer_load_dwordx4 v[12:15], v2, s[12:15], s49 offen sc1")
    a("buffer_load_dwordx4 v[16:19], v2, s[12:15], s49 offen offset:64 sc1")
    a("s_waitcnt vmcnt(0)")
    a("v_xor_b32 v20, s47, v11")
    a("v_xor_b32 v21, s47, v15")
    a("v_or_b32 v20, v20, v21")
    a("v_xor_b32 v21, s47, v19")
    a("v_or_b32 v20, v20, v21")
    a("v_cmp_ne_u32 vcc, 0, v20")
    a("s_cbranch_vccz L_ogot")
    if tail_sleep:
        a(f"s_sleep {tail_sleep}")
    a("s_add_u32 s50, s50, 1")
    a("s_cmp_lt_u32 s50, 0x100000")
    a("s_cbranch_scc1 L_opoll")
    a("L_ogot:")
    stamp(5)
    a("v_mov_b32 v10, v8")
    unpack4th(12)
    red8("v_max_f32", "v10")
    unpack4th(16)
    a("v_sub_f32 v8, v8, v10")
    a("v_mul_f32 v8, s62, v8")
    a("v_exp_f32 v8, v8")
    a("v_mul_f32 v9, v8, v9")
    for e in range(8):
        a(f"v_mul_f32 v{12 + e}, v8, v{12 + e}")
    for name in ("quad_perm:[1,0,3,2]", "quad_perm:[2,3,0,1]", "row_half_mirror"):
        a(f"v_add_f32_dpp v9, v9, v9 {name} row_mask:0xf bank_mask:0xf")
        for e in range(8):
            a(f"v_add_f32_dpp v{12 + e}, v{12 + e}, v{12 + e} {name} row_mask:0xf bank_mask:0xf")
    a("v_rcp_f32 v9, v9")
    for e in range(8):
        a(f"v_mul_f32 v{12 + e}, v9, v{12 + e}")
    for e in range(8):
        a(f"v_cvt_pk_bf16_f32 v{12 + e}, v{12 + e}, v{12 + e}")
    for t in range(8):
        ab = 40 + 4 * t
        for q in range(4):
            a(f"v_and_b32 v{ab + q}, v{12 + t}, v{4 + q}")
        for cg in range(5):
            r = 96 + 4 * (5 * t + cg)
            d = 72 + 4 * cg
            c = "0" if t == 0 else f"v[{d}:{d + 3}]"
            a(f"v_mfma_f32_16x16x32_bf16 v[{d}:{d + 3}], v[{ab}:{ab + 3}], v[{r}:{r + 3}], {c}")
    a("s_mul_i32 s50, s56, 4608")
    a("v_lshrrev_b32 v1, 5, v0")
    a("v_mul_u32_u24 v1, 2304, v1")
    a("v_and_b32 v2, 15, v0")
    a("v_lshl_add_u32 v1, v2, 5, v1")
    a("v_bfe_u32 v2, v0, 4, 1")
    a("v_lshl_add_u32 v1, v2, 4, v1")
    a("v_add_u32 v1, s50, v1")
    a("s_mul_i32 s50, s56, 48")
    a("v_add_u32 v2, s50, v0")
    a("v_mul_u32_u24 v3, 24, v2")
    for cg in range(4):
        a(f"ds_write_b128 v1, v[{72 + 4 * cg}:{75 + 4 * cg}] offset:{L_R + 512 * cg}")
    a("s_mov_b32 exec_lo, 0x00ff00ff")
    a("s_mov_b32 exec_hi, 0x00ff00ff")
    a(f"ds_write_b128 v1, v[88:91] offset:{L_R + 2048}")
    a("s_mov_b64 exec, -1")
    a("s_waitcnt lgkmcnt(0)")
    a("s_barrier")
    a("s_mov_b32 exec_hi, 0xffff")
    for w in range(4):
        for i in range(3):
            a(f"ds_read_b64 v[{8 + 6 * w + 2 * i}:{9 + 6 * w + 2 * i}], v3 offset:{L_R + 4608 * w + 8 * i}")
    a("s_lshr_b32 s50, s56, 1")
    a("s_lshl_b32 s50, s50, 5")
    a("s_add_u32 s50, s50, s48")
    a("s_mul_i32 s50, s50, 1536")
    a("s_and_b32 s51, s56, 1")
    a("s_mul_i32 s51, s51, 768")
    a("s_add_u32 s50, s50, s51")
    a(f"s_add_u32 s50, s50, {FIN}")
    a("v_lshlrev_b32 v1, 4, v0")
    a("s_waitcnt lgkmcnt(6)")
    for i in range(6):
        a(f"v_add_f32 v{8 + i}, v{8 + i}, v{14 + i}")
    a("s_waitcnt lgkmcnt(0)")
    for i in range(6):
        a(f"v_add_f32 v{20 + i}, v{20 + i}, v{26 + i}")
    for i in range(6):
        a(f"v_add_f32 v{8 + i}, v{8 + i}, v{20 + i}")
    for i in range(3):
        a(f"v_cvt_pk_bf16_f32 v{32 + i}, v{8 + 2 * i}, v{9 + 2 * i}")
    a("v_mov_b32 v35, s47")
    a("buffer_store_dwordx4 v[32:35], v1, s[12:15], s50 offen sc1")
    a("s_mov_b64 exec, -1")
    stamp(6)
    if stamps:
        a("s_cmp_eq_u32 s56, 0")
        a("s_cbranch_scc0 L_end")
        stamp_flush(0, 6, 8)
    a("s_endpgm")

    a("L_final:")
    a("s_cmp_ge_u32 s3, 6")
    a("s_cbranch_scc1 L_end")
    a("s_sub_u32 s46, s46, 1")
    masks(4)
    a("v_and_b32 v1, 15, v0")
    a("v_cmp_gt_u32 vcc, 6, v1")
    a("v_mov_b32 v2, 0x3f803f80")
    a("v_cndmask_b32 v2, 0, v2, vcc")
    for q in range(4):
        a(f"v_and_b32 v{4 + q}, v2, v{4 + q}")
    a("s_mul_i32 s52, s46, 1152")
    a("s_mul_i32 s48, s3, 192")
    a("s_add_u32 s52, s52, s48")
    a("v_mul_u32_u24 v3, 12, v1")
    a("v_lshrrev_b32 v2, 4, v0")
    a("v_lshl_add_u32 v3, v2, 3, v3")
    a("s_mov_b32 s4, s16")
    a("s_mov_b32 s5, s17")
    a("s_mov_b32 s6, 2304")
    a("s_mov_b32 s7, 0x20000")
    a("s_mov_b32 s8, s36")
    a("s_mov_b32 s9, s37")
    a("s_mov_b32 s10, 2304")
    a("s_mov_b32 s11, 0x20000")
    a("buffer_load_dwordx2 v[56:57], v3, s[4:7], s52 offen")
    a(f"s_mul_i32 s48, s46, {32 * 1536}")
    a("s_lshl_b32 s49, s3, 8")
    a("s_add_u32 s48, s48, s49")
    a(f"s_add_u32 s48, s48, {FIN}")
    a("v_mul_u32_u24 v2, 1536, v2")
    a("v_lshl_add_u32 v2, v1, 4, v2")
    for r in range(4):
        a(f"v_mov_b32 v{8 + r}, 0")
    a("s_mov_b32 s53, 0xff")
    a("s_mov_b32 s50, 0")
    a("L_fpoll:")
    for pg in range(8):
        a(f"s_bitcmp1_b32 s53, {pg}")
        a(f"s_cbranch_scc0 L_fskip{pg}")
        a(f"s_add_u32 s49, s48, {pg * 4 * 1536}")
        a(f"buffer_load_dwordx4 v[{64 + 4 * pg}:{67 + 4 * pg}], v2, s[12:15], s49 offen sc1")
        a(f"L_fskip{pg}:")
    a("s_waitcnt vmcnt(0)")
    for pg in range(8):
        a(f"s_bitcmp1_b32 s53, {pg}")
        a(f"s_cbranch_scc0 L_fnext{pg}")
        a(f"v_cmp_ne_u32 vcc, s47, v{67 + 4 * pg}")
        a(f"s_cbranch_vccnz L_fnext{pg}")
        a(f"v_mov_b32 v{67 + 4 * pg}, 0")
        a(f"s_bitset0_b32 s53, {pg}")
        a(f"v_mfma_f32_16x16x32_bf16 v[8:11], v[4:7], v[{64 + 4 * pg}:{67 + 4 * pg}], v[8:11]")
        a(f"L_fnext{pg}:")
    a("s_cmp_eq_u32 s53, 0")
    a("s_cbranch_scc1 L_fgot")
    if tail_sleep:
        a(f"s_sleep {tail_sleep}")
    a("s_add_u32 s50, s50, 1")
    a("s_cmp_lt_u32 s50, 0x100000")
    a("s_cbranch_scc1 L_fpoll")
    a("L_fgot:")
    stamp(5)
    a("v_lshlrev_b32 v12, 16, v56")
    a("v_and_b32 v13, 0xffff0000, v56")
    a("v_lshlrev_b32 v14, 16, v57")
    a("v_and_b32 v15, 0xffff0000, v57")
    for r in range(4):
        rb(f"v{8 + r}", f"v{8 + r}")
    for r in range(4):
        a(f"v_add_f32 v{12 + r}, v{12 + r}, v{8 + r}")
    a("v_cmp_gt_u32 vcc, 32, v0")
    a("v_cmp_gt_u32 s[58:59], 16, v0")
    for r in range(4):
        rb(f"v{12 + r}", f"v{12 + r}")
    a("s_mov_b64 s[50:51], vcc")
    a("v_cndmask_b32 v12, 0, v12, s[50:51]")
    a("v_cndmask_b32 v13, 0, v13, s[50:51]")
    a("v_cndmask_b32 v14, 0, v14, s[58:59]")
    a("v_cndmask_b32 v15, 0, v15, s[58:59]")
    a("s_lshl_b32 s48, s3, 3")
    a("v_mov_b32 v1, s48")
    a("v_mov_b32 v2, 0")

    def ln_round(src, dst, lds_off):
        a(f"v_add_f32 v16, v{src}, v{src + 1}")
        a(f"v_mul_f32 v17, v{src}, v{src}")
        a(f"v_add_f32 v18, v{src + 2}, v{src + 3}")
        a(f"v_fmac_f32 v17, v{src + 1}, v{src + 1}")
        a("v_add_f32 v16, v16, v18")
        a(f"v_fmac_f32 v17, v{src + 2}, v{src + 2}")
        a(f"v_fmac_f32 v17, v{src + 3}, v{src + 3}")
        for name in ("quad_perm:[1,0,3,2]", "quad_perm:[2,3,0,1]", "row_half_mirror", "row_ror:8"):
            a(f"v_add_f32_dpp v16, v16, v16 {name} row_mask:0xf bank_mask:0xf")
            a(f"v_add_f32_dpp v17, v17, v17 {name} row_mask:0xf bank_mask:0xf")
        a("v_mov_b32 v18, v16")
        a("v_mov_b32 v19, v17")
        a("v_permlane16_swap_b32 v16, v18")
        a("v_permlane16_swap_b32 v17, v19")
        a("v_add_f32 v16, v16, v18")
        a("v_add_f32 v17, v17, v19")
        a("s_mov_b64 exec, 1")
        a(f"ds_write_b64 v1, v[16:17] offset:{lds_off}")
        a("s_mov_b64 exec, -1")
        a("s_waitcnt lgkmcnt(0)")
        a("s_barrier")
        for i in range(3):
            a(f"ds_read_b128 v[{24 + 4 * i}:{27 + 4 * i}], v2 offset:{lds_off + 16 * i}")
        a("s_waitcnt lgkmcnt(0)")
        a("v_add_f32 v16, v24, v26")
        a("v_add_f32 v17, v25, v27")
        a("v_add_f32 v18, v28, v30")
        a("v_add_f32 v19, v29, v31")
        a("v_add_f32 v24, v32, v34")
        a("v_add_f32 v25, v33, v35")
        a("v_add_f32 v16, v16, v18")
        a("v_add_f32 v17, v17, v19")
        a("v_add_f32 v16, v16, v24")
        a("v_add_f32 v17, v17, v25")
        a(f"v_mul_f32 v16, {hx(1.0 / 576)}, v16")
        a(f"v_mul_f32 v17, {hx(1.0 / 576)}, v17")
        a("v_fma_f32 v17, -v16, v16, v17")
        a("v_max_f32 v17, 0, v17")
        rb("v16", "v16")
        rb("v17", "v17")
        a(f"v_add_f32 v17, {hx(1e-5)}, v17")
        for r in range(4):
            a(f"v_sub_f32 v{dst + r}, v{src + r}, v16")
        rb("v17", "v17")
        a("v_sqrt_f32 v17, v17")
        for r in range(4):
            rb(f"v{dst + r}", f"v{dst + r}")
        rb("v17", "v17")
        a("v_rcp_f32 v17, v17")
        for r in range(4):
            a(f"v_mul_f32 v{dst + r}, v{dst + r}, v17")
        for r in range(4):
            rb(f"v{dst + r}", f"v{dst + r}")

    ln_round(12, 20, L_ST)
    a("v_cndmask_b32 v20, 0, v20, s[50:51]")
    a("v_cndmask_b32 v21, 0, v21, s[50:51]")
    a("v_cndmask_b32 v22, 0, v22, s[58:59]")
    a("v_cndmask_b32 v23, 0, v23, s[58:59]")
    ln_round(20, 40, L_ST + 64)
    for r in range(4):
        a(f"v_bfe_u32 v{44 + r}, v{40 + r}, 16, 15")
    for r in range(4):
        a(f"v_subrev_u32 v{44 + r}, {TAB_LO}, v{44 + r}")
    for r in range(4):
        a(f"v_lshrrev_b32 v{48 + r}, 31, v{40 + r}")
    for r in range(4):
        a(f"v_mul_u32_u24 v{48 + r}, {TAB_N}, v{48 + r}")
    a(f"s_movk_i32 s48, {TAB_N}")
    for r in range(4):
        a(f"v_cmp_le_u32 s[{86 + 2 * r}:{87 + 2 * r}], s48, v{44 + r}")
    for r in range(4):
        a(f"v_min_u32 v{44 + r}, {TAB_N - 1}, v{44 + r}")
    for r in range(4):
        a(f"v_add_lshl_u32 v{44 + r}, v{44 + r}, v{48 + r}, 1")
    for r in range(4):
        a(f"ds_read_u16 v{48 + r}, v{44 + r} offset:{L_TAB}")
    a("s_and_b64 s[86:87], s[86:87], s[50:51]")
    a("s_and_b64 s[88:89], s[88:89], s[50:51]")
    a("s_and_b64 s[90:91], s[90:91], s[58:59]")
    a("s_and_b64 s[92:93], s[92:93], s[58:59]")
    a("s_or_b64 s[94:95], s[86:87], s[88:89]")
    a("s_or_b64 s[96:97], s[90:91], s[92:93]")
    a("s_or_b64 s[94:95], s[94:95], s[96:97]")
    a("s_waitcnt lgkmcnt(0)")
    for r in range(4):
        a(f"v_lshlrev_b32 v{48 + r}, 16, v{48 + r}")
    a("s_cbranch_scc1 L_slow")
    a("L_slow_ret:")
    for r in range(4):
        a(f"v_add_f32 v{12 + r}, v{12 + r}, v{48 + r}")
    a("v_cvt_pk_bf16_f32 v16, v12, v13")
    a("v_cvt_pk_bf16_f32 v17, v14, v15")
    a("s_mov_b64 exec, 0xffff")
    a("buffer_store_dwordx2 v[16:17], v3, s[8:11], s52 offen")
    a("s_mov_b64 exec, 0xffff0000")
    a("buffer_store_dword v16, v3, s[8:11], s52 offen")
    a("s_mov_b64 exec, -1")
    stamp(6)
    a("s_or_b32 s48, s46, s3")
    a("s_cmp_eq_u32 s48, 0")
    a("s_cbranch_scc0 L_noepoch")
    a("v_mov_b32 v16, s55")
    a("s_mov_b64 exec, 1")
    a(f"buffer_store_dword v16, v2, s[12:15], 0 offen offset:{EPOCH} sc1")
    a("s_mov_b64 exec, -1")
    a("L_noepoch:")
    if stamps:
        a("s_cmp_eq_u32 s3, 1")
        a("s_cbranch_scc0 L_end")
        stamp_flush(5, 6, 16)
    a("L_end:")
    a("s_endpgm")

    a("L_slow:")
    a(f"v_mov_b32 v38, {hx(C0)}")
    a(f"v_mov_b32 v39, {hx(C1)}")
    a("s_mov_b32 s4, s34")
    a("s_mov_b32 s5, s35")
    a("s_mov_b32 s6, 2")
    a("s_mov_b32 s7, 0x20000")
    a("buffer_load_ushort v36, v2, s[4:7], 0 offen")
    a("v_lshlrev_b32 v1, 4, v0")
    a("s_waitcnt vmcnt(0)")
    a("v_lshlrev_b32 v36, 16, v36")
    for r in range(4):
        m = f"s[{86 + 2 * r}:{87 + 2 * r}]"
        a(f"L_slow_r{r}:")
        a(f"s_cmp_eq_u64 {m}, 0")
        a(f"s_cbranch_scc1 L_slow_n{r}")
        a(f"s_ff1_i32_b64 s54, {m}")
        a(f"s_bitset0_b64 {m}, s54")
        a(f"v_readlane_b32 s57, v{40 + r}, s54")
        a("v_mov_b32 v37, 0")
        a("s_mov_b32 s53, 0")
        a(f"L_slow_l{r}:")
        for k, (sp, dst) in enumerate(((28, 64), (30, 68), (32, 72))):
            a(f"s_mov_b32 s4, s{sp}")
            a(f"s_mov_b32 s5, s{sp + 1}")
            a("s_mov_b32 s6, 9216")
            a("s_mov_b32 s7, 0x20000")
            a(f"buffer_load_dwordx4 v[{dst}:{dst + 3}], v1, s[4:7], s53 offen")
        a("s_waitcnt vmcnt(0)")
        for (src, out) in ((64, 80), (68, 88), (72, 96)):
            for k in range(4):
                a(f"v_lshlrev_b32 v{out + 2 * k}, 16, v{src + k}")
                a(f"v_and_b32 v{out + 2 * k + 1}, 0xffff0000, v{src + k}")
        items = [(f"v{80 + i}", f"v{88 + i}", f"v{96 + i}", f"v{104 + 2 * i}", f"v{105 + 2 * i}") for i in range(8)]
        gelu_evals(items, "v38", "v39", "v37", "s57")
        a("s_add_u32 s53, s53, 1024")
        a("s_cmp_lt_u32 s53, 9216")
        a(f"s_cbranch_scc1 L_slow_l{r}")
        red16("v_add_f32", "v37")
        x16("v_add_f32", "v37", "v35")
        x32("v_add_f32", "v37", "v35")
        rb("v37", "v37")
        a("v_add_f32 v37, v37, v36")
        rb("v37", "v37")
        a("s_lshl_b64 exec, 1, s54")
        a(f"v_mov_b32 v{48 + r}, v37")
        a("s_mov_b64 exec, -1")
        a(f"s_branch L_slow_r{r}")
        a(f"L_slow_n{r}:")
    a("s_branch L_slow_ret")

    a.raw('.section .rodata,"a"')
    a.raw(".p2align 6")
    a.raw(f".amdhsa_kernel {NAME}_kernel")
    a.raw("  .amdhsa_next_free_vgpr 256")
    a.raw("  .amdhsa_next_free_sgpr 102")
    a.raw("  .amdhsa_accum_offset 256")
    a.raw("  .amdhsa_group_segment_fixed_size 0")
    a.raw("  .amdhsa_kernarg_size 104")
    a.raw("  .amdhsa_user_sgpr_count 2")
    a.raw("  .amdhsa_user_sgpr_kernarg_segment_ptr 1")
    a.raw("  .amdhsa_system_sgpr_workgroup_id_x 1")
    a.raw("  .amdhsa_float_denorm_mode_32 3")
    a.raw(".end_amdhsa_kernel")
    return a.finish()


HEADER = open("cdna_kernels/" + NAME + ".s.ref").read().split("; Override launch geometry")[0]

if __name__ == "__main__":
    out = sys.argv[1] if len(sys.argv) > 1 else "k1.s"
    kw = eval(sys.argv[2]) if len(sys.argv) > 2 else {}
    open(out, "w").write(HEADER + gen(**kw))
```

```python
import struct
import sys
from asmlib import Asm

NAME = "sequential_preLN__gqa_block_cached__mixer_token_mlp__decode"

EPOCH = 0
QX = 0x10000
E1 = 0x60000
FIN = 0xC0000
TAB = 0xE0000
STAMP = 0x100000
WS_SPAN = 0x200000
L_Q = 0
L_TAG = 512
L_CNT = 520
L_FLAG = 524
L_CNT2 = 528
L_DONE = 532
L_NEXT = 536
L_TP = 576
L_TY = 928
L_P = 1024
L_PS = 5120
L_R = 8192
L_TAB = 26624
L_ST = 37376
LDS_BYTES = 37632

TAB_LO = 0x3900
TAB_N = 2304
TPW = 21
LOG2E = 1.4426950408889634
BETA = 0.7978845608028654
C0 = -2.0 * BETA * LOG2E
C1 = C0 * 0.044715
FINAL_WG = (4, 133)
RING = 64
W1, B1, W2 = 36, 56, 76
SPIN = 0x100000


def f2u(x):
    return struct.unpack("<I", struct.pack("<f", x))[0]


def hx(x):
    return hex(f2u(x))


class Gen:
    def __init__(self, Tn=66, To=50, stamps=False, dbg=False, ring=6, pre_throttle=8, first_tiles=1,
                 q_sleep0=16, q_sleep=4, tail_sleep=1, prio=0, hprio=3, code_pf=True, mimic=True, mlp_pol="",
                 b0=1, no_mlp=False, no_wo=False, no_table=False, h0_mlp_late=True, tprio=1, trace=False, look=2, mlp_delay=0, gather_sleep0=64, gather_sleep=32, dynprio=True, early=True, h0_mlp_early=True, done_sleep=1, h0_first=True, half_thr=None, pollcnt=False, no_qwait=False, kvpol=' nt', kpol=None, vpol=None):
        self.__dict__.update(locals())
        self.a = Asm()

    def stamp(self, i):
        if self.stamps or self.dbg:
            self.a(f"s_memrealtime s[{70 + 2 * i}:{71 + 2 * i}]")

    def stamp_flush(self, first, last, slot_base):
        if not self.stamps:
            return
        a = self.a
        a("s_waitcnt lgkmcnt(0)")
        a("s_mov_b64 exec, 1")
        a("s_lshl_b32 s48, s2, 8")
        a(f"s_add_u32 s48, s48, {STAMP}")
        a("v_mov_b32 v60, 0")
        for i in range(first, last + 1):
            a(f"v_mov_b32 v62, s{70 + 2 * i}")
            a(f"v_mov_b32 v63, s{71 + 2 * i}")
            a(f"buffer_store_dwordx2 v[62:63], v60, s[12:15], s48 offen offset:{(slot_base + i) * 8}")
            a("s_nop 1")
        a("s_mov_b64 exec, -1")

    def trace_pt(self):
        if not self.trace:
            return
        a = self.a
        a("s_memrealtime s[96:97]")
        a("s_waitcnt lgkmcnt(0)")
        a("s_mov_b32 m0, s59")
        a("v_writelane_b32 v58, s96, m0")
        a("s_add_u32 s59, s59, 1")

    def rb(self, dst, src):
        self.a(f"v_cvt_pk_bf16_f32 {dst}, 0, {src}")

    def srd(self, base, ptr, size):
        a = self.a
        a(f"s_mov_b32 s{base}, s{ptr}")
        a(f"s_mov_b32 s{base + 1}, s{ptr + 1}")
        a(f"s_mov_b32 s{base + 2}, {size}")
        a(f"s_mov_b32 s{base + 3}, 0x20000")

    def dpp(self, op, v, ctrl):
        self.a(f"{op}_dpp {v}, {v}, {v} {ctrl} row_mask:0xf bank_mask:0xf")

    def red8(self, op, v):
        for c in ("quad_perm:[1,0,3,2]", "quad_perm:[2,3,0,1]", "row_half_mirror"):
            self.dpp(op, v, c)

    def red16(self, op, v):
        self.red8(op, v)
        self.dpp(op, v, "row_ror:8")

    def xrow(self, n, op, v, t):
        self.a(f"v_mov_b32 {t}, {v}")
        self.a(f"v_permlane{n}_swap_b32 {v}, {t}")
        self.a(f"{op} {v}, {v}, {t}")

    def pack3(self, d, s):
        for i in range(3):
            self.a(f"v_perm_b32 v{d + i}, v{s + i}, v{s + 3}, s{64 + i}")

    def unpack4th(self, g):
        self.a(f"v_perm_b32 v{g + 3}, v{g + 2}, v{g + 1}, s67")
        self.a(f"v_perm_b32 v{g + 3}, v{g + 3}, v{g}, s68")

    def masks(self, base, t0, t1):
        a = self.a
        a(f"v_and_b32 v{t0}, 1, v0")
        a(f"v_cmp_eq_u32 vcc, 1, v{t0}")
        a(f"v_mov_b32 v{t0}, 0xffff")
        a(f"v_mov_b32 v{t1}, 0xffff0000")
        a(f"v_cndmask_b32 v{t0}, v{t0}, v{t1}, vcc")
        a(f"v_bfe_u32 v{t1}, v0, 1, 2")
        for q in range(4):
            a(f"v_cmp_eq_u32 vcc, {q}, v{t1}")
            a(f"v_cndmask_b32 v{base + q}, 0, v{t0}, vcc")

    def tags_bad(self, regs, acc, t):
        a = self.a
        a(f"v_xor_b32 v{acc}, s47, v{regs[0]}")
        for r in regs[1:]:
            a(f"v_xor_b32 v{t}, s47, v{r}")
            a(f"v_or_b32 v{acc}, v{acc}, v{t}")
        a(f"v_cmp_ne_u32 vcc, 0, v{acc}")

    def retry(self, loop, sleep, cnt="s50"):
        a = self.a
        if sleep:
            a(f"s_sleep {sleep}")
        a(f"s_add_u32 {cnt}, {cnt}, 1")
        a(f"s_cmp_lt_u32 {cnt}, {SPIN}")
        a(f"s_cbranch_scc1 {loop}")

    def wait_flag(self, name, vz, vt, off=L_FLAG, sleep=1):
        a = self.a
        a("s_mov_b32 s50, 0")
        a(f"L_{name}:")
        a(f"ds_read_b32 v{vt}, v{vz} offset:{off}")
        a("s_waitcnt lgkmcnt(0)")
        a(f"v_readfirstlane_b32 s48, v{vt}")
        a("s_cmp_lg_u32 s48, 0")
        a(f"s_cbranch_scc1 L_{name}_ok")
        if sleep:
            a(f"s_sleep {sleep}")
        a("s_add_u32 s50, s50, 1")
        a(f"s_cmp_lt_u32 s50, {SPIN * 16}")
        a(f"s_cbranch_scc1 L_{name}")
        a(f"L_{name}_ok:")

    def gelu_pk(self, items, c0, c1, one, acc, sa):
        a = self.a
        P = lambda r: f"v[{r}:{r + 1}]"

        def rnd(sel):
            if self.mimic:
                for it in items:
                    r = it[sel]
                    self.rb(f"v{r}", f"v{r}")
                    self.rb(f"v{r + 1}", f"v{r + 1}")

        for (w1, b1, w2, u, t) in items:
            a(f"v_pk_mul_f32 {P(u)}, {sa}, {P(w1)} op_sel_hi:[0,1]")
        rnd(3)
        for (w1, b1, w2, u, t) in items:
            a(f"v_pk_add_f32 {P(u)}, {P(u)}, {P(b1)}")
        rnd(3)
        for (w1, b1, w2, u, t) in items:
            a(f"v_pk_mul_f32 {P(t)}, {P(u)}, {P(u)}")
        for (w1, b1, w2, u, t) in items:
            a(f"v_pk_fma_f32 {P(t)}, {P(t)}, {P(c1)}, {P(c0)}")
        for (w1, b1, w2, u, t) in items:
            a(f"v_pk_mul_f32 {P(t)}, {P(t)}, {P(u)}")
        for (w1, b1, w2, u, t) in items:
            a(f"v_exp_f32 v{t}, v{t}")
            a(f"v_exp_f32 v{t + 1}, v{t + 1}")
        for (w1, b1, w2, u, t) in items:
            a(f"v_pk_add_f32 {P(t)}, {P(t)}, {P(one)}")
        for (w1, b1, w2, u, t) in items:
            a(f"v_rcp_f32 v{t}, v{t}")
            a(f"v_rcp_f32 v{t + 1}, v{t + 1}")
        for (w1, b1, w2, u, t) in items:
            a(f"v_pk_mul_f32 {P(t)}, {P(t)}, {P(u)}")
        rnd(4)
        for (w1, b1, w2, u, t) in items:
            a(f"v_pk_fma_f32 {P(acc)}, {P(t)}, {P(w2)}, {P(acc)}")

    def gelu_consts(self, base):
        for i in range(2):
            self.a(f"v_mov_b32 v{base + i}, {hx(C0)}")
            self.a(f"v_mov_b32 v{base + 2 + i}, {hx(C1)}")
            self.a(f"v_mov_b32 v{base + 4 + i}, 1.0")

    def issue_mlp(self, ndw, rawofs):
        a = self.a
        if self.no_mlp:
            return
        for sp, D in ((28, W1), (30, B1), (32, W2)):
            dst = D + rawofs
            self.srd(4, sp, 9216)
            o = 0
            while o < ndw:
                n = 4 if ndw - o >= 4 else 2
                a(f"buffer_load_dwordx{n} v[{dst + o}:{dst + o + n - 1}], v1, s[4:7], s48 offen offset:{4 * o}{self.mlp_pol}")
                o += n

    def unpack_mlp(self, ndw, rawofs):
        a = self.a
        for D in (W1, B1, W2):
            for i in range(ndw):
                src = D + rawofs + i
                for j in range(i + 1, ndw):
                    assert D + rawofs + j not in (D + 2 * i, D + 2 * i + 1)
                assert D + 2 * i != src
                a(f"v_lshlrev_b32 v{D + 2 * i}, 16, v{src}")
                a(f"v_and_b32 v{D + 2 * i + 1}, 0xffff0000, v{src}")

    def load_wo(self, label, after):
        a = self.a
        a("s_cmp_eq_u32 s45, 0")
        a(f"s_cbranch_scc1 {label}")
        if self.no_wo:
            a(f"s_branch {after}")
            a(f"{label}:")
            return
        self.srd(8, 24, 4718592)
        a("s_lshl_b32 s48, s43, 1")
        a("s_add_u32 s48, s48, s42")
        a(f"s_mul_i32 s48, s48, {128 * 1152}")
        a(f"s_mul_i32 s49, s56, {32 * 1152}")
        a("s_add_u32 s48, s48, s49")
        a("v_lshrrev_b32 v1, 4, v0")
        a(f"v_mul_u32_u24 v1, {4 * 1152}, v1")
        a("v_and_b32 v2, 15, v0")
        a("v_lshl_add_u32 v1, v2, 4, v1")
        for u in range(2):
            for e in range(4):
                a(f"s_add_u32 s49, s48, {(16 * u + e) * 1152}")
                for cg in range(4):
                    r = 96 + 4 * (5 * (4 * u + e) + cg)
                    a(f"buffer_load_dwordx4 v[{r}:{r + 3}], v1, s[8:11], s49 offen offset:{256 * cg} nt")
        a("s_mov_b32 exec_lo, 0x00ff00ff")
        a("s_mov_b32 exec_hi, 0x00ff00ff")
        for u in range(2):
            for e in range(4):
                a(f"s_add_u32 s49, s48, {(16 * u + e) * 1152}")
                r = 96 + 4 * (5 * (4 * u + e) + 4)
                a(f"buffer_load_dwordx4 v[{r}:{r + 3}], v1, s[8:11], s49 offen offset:1024 nt")
        a("s_mov_b64 exec, -1")
        a(f"s_branch {after}")
        a(f"{label}:")

    def prologue(self):
        a = self.a
        Tn, To = self.Tn, self.To
        self.stamp(0)
        if self.stamps:
            for i in range(72, 86, 2):
                a(f"s_mov_b64 s[{i}:{i + 1}], 0")
        a("s_cmp_ge_u32 s2, 256")
        a("s_cbranch_scc1 L_end")
        a("s_load_dwordx16 s[16:31], s[0:1], 0")
        a("s_load_dwordx8 s[32:39], s[0:1], 64")
        a("s_load_dwordx2 s[40:41], s[0:1], 96")
        a("v_lshrrev_b32 v1, 6, v0")
        a("v_and_b32 v0, 63, v0")
        a("s_lshr_b32 s42, s2, 7")
        a("v_readfirstlane_b32 s3, v1")
        a("s_bfe_u32 s43, s2, 0x40003")
        a("s_and_b32 s44, s2, 7")
        a("s_mov_b32 s7, 0x20000")
        a("s_mov_b32 s11, 0x20000")
        a("s_cmp_eq_u32 s3, 4")
        a("s_cbranch_scc1 L_h0_start")
        a("s_and_b32 s48, s43, 7")
        a("s_cmp_eq_u32 s44, s48")
        a(f"s_cselect_b32 s49, {To}, {Tn}")
        a("s_cmp_gt_u32 s44, s48")
        a(f"s_cselect_b32 s50, {Tn - To}, 0")
        a(f"s_mul_i32 s51, s44, {Tn}")
        a("s_sub_u32 s51, s51, s50")
        a("s_lshr_b32 s52, s2, 3")
        a("s_lshl_b32 s52, s52, 9")
        a("s_add_u32 s52, s52, s51")
        a("s_add_u32 s6, s52, s49")
        a("s_lshl_b32 s6, s6, 12")
        a("s_mov_b32 s10, s6")
        a("s_lshl_b32 s51, s52, 12")
        a("s_add_u32 s52, s52, s3")
        a("s_lshl_b32 s52, s52, 12")
        a("v_and_b32 v1, 3, v0")
        a("v_lshlrev_b32 v1, 10, v1")
        a("v_bfe_u32 v2, v0, 2, 2")
        a("v_lshl_add_u32 v1, v2, 8, v1")
        a("v_lshrrev_b32 v2, 4, v0")
        a("v_lshl_add_u32 v1, v2, 4, v1")
        a("v_lshlrev_b32 v2, 4, v0")
        a("s_cmp_gt_u32 s3, 4")
        a("s_waitcnt lgkmcnt(0)")
        a("s_mov_b32 s4, s18")
        a("s_mov_b32 s5, s19")
        a("s_mov_b32 s8, s20")
        a("s_mov_b32 s9, s21")
        a("s_cbranch_scc1 L_join")
        if not self.h0_first:
            self.issue_tile(0, grab=False)
        a("s_branch L_join")
        a("L_h0_start:")
        a(f"s_setprio {self.hprio}")
        a("v_mov_b32 v1, 0")
        a("v_mov_b32 v2, 0")
        a("v_lshrrev_b32 v8, 5, v0")
        a("v_mul_u32_u24 v8, 1152, v8")
        a("v_and_b32 v10, 31, v0")
        a("v_mul_u32_u24 v10, 36, v10")
        a("v_add_u32 v8, v8, v10")
        a("v_lshrrev_b32 v9, 4, v0")
        a(f"v_mul_u32_u24 v9, {18 * 8192}, v9")
        a("v_and_b32 v10, 15, v0")
        a("v_lshl_add_u32 v9, v10, 4, v9")
        a("s_lshl_b32 s48, s43, 1")
        a("s_add_u32 s48, s48, s42")
        a("s_lshl_b32 s48, s48, 8")
        a(f"s_mul_i32 s49, s44, {72 * 8192}")
        a("s_add_u32 s48, s48, s49")
        a("s_mov_b32 s6, 2304")
        a("s_mov_b32 s10, 4718592")
        a("s_waitcnt lgkmcnt(0)")
        a("s_mov_b32 s4, s16")
        a("s_mov_b32 s5, s17")
        a("s_mov_b32 s8, s22")
        a("s_mov_b32 s9, s23")
        a(f"s_load_dword s55, s[40:41], {EPOCH}")
        a("buffer_load_dwordx4 v[12:15], v8, s[4:7], 0 offen")
        a("buffer_load_dwordx4 v[16:19], v8, s[4:7], 0 offen offset:16")
        a("buffer_load_dword v20, v8, s[4:7], 0 offen offset:32")
        for t in range(18):
            a(f"buffer_load_dwordx4 v[{96 + 4 * t}:{99 + 4 * t}], v9, s[8:11], s48 offen nt")
            a("s_add_u32 s48, s48, 8192")
        a("L_join:")
        for i in range(4):
            a(f"v_mov_b32 v{4 + i}, 0")
        a(f"ds_write_b128 v4, v[4:7] offset:{L_CNT - 8}")
        a("s_nop 1")
        a("v_mov_b32 v6, 4")
        a(f"ds_write_b96 v4, v[4:6] offset:{L_CNT2}")
        a("s_and_b32 s48, s43, 7")
        a("s_cmp_eq_u32 s44, s48")
        a("s_cselect_b32 s45, 1, 0")
        a(f"s_mov_b32 s14, {WS_SPAN}")
        a("s_mov_b32 s15, 0x20000")
        self.consts()
        a("s_waitcnt lgkmcnt(0)")
        a("s_mov_b32 s12, s40")
        a("s_mov_b32 s13, s41")
        a("s_barrier")
        a("s_cmp_lt_u32 s3, 4")
        a("s_cbranch_scc1 L_stream")

    def consts(self):
        a = self.a
        a("s_mov_b32 s46, 0")
        a(f"s_cmp_eq_u32 s2, {FINAL_WG[0]}")
        a("s_cselect_b32 s46, 1, s46")
        a(f"s_cmp_eq_u32 s2, {FINAL_WG[1]}")
        a("s_cselect_b32 s46, 2, s46")
        a("s_mov_b32 s60, 0x00ff00ff")
        a("s_mov_b32 s61, 0xff00ff00")
        a(f"s_mov_b32 s62, {hx(LOG2E)}")
        a(f"s_mov_b32 s63, {hx(128 ** -0.5)}")
        a("s_mov_b32 s64, 0x07060501")
        a("s_mov_b32 s65, 0x07060502")
        a("s_mov_b32 s66, 0x07060503")
        a("s_mov_b32 s67, 0x04000c0c")
        a("s_mov_b32 s68, 0x0706000c")

    def helper_start(self):
        a = self.a
        a(f"s_setprio {self.hprio}")
        a("s_sub_u32 s56, s3, 4")
        a("s_load_dword s69, s[34:35], 0")
        a("s_cmp_eq_u32 s56, 0")
        a("s_cbranch_scc1 L_qphase")
        if self.code_pf:
            a("s_getpc_b64 s[50:51]")
            a("L_pc:")
            a(f"s_sub_u32 s50, s50, L_pc-{NAME}_kernel")
            a("s_subb_u32 s51, s51, 0")
            a("s_sub_u32 s48, s56, 1")
            a("s_lshl_b32 s48, s48, 13")
            a("v_lshlrev_b32 v1, 7, v0")
            a("v_add_u32 v1, s48, v1")
            a(f"v_min_u32 v1, L_code_end-{NAME}_kernel-4, v1")
            a("global_load_dword v8, v1, s[50:51]")
        self.load_wo("L_nowo_a", "L_pre_b2")
        for _ in range(self.mlp_delay):
            a("s_sleep 16")
        a("s_mul_i32 s48, s56, 2560")
        a("s_sub_u32 s48, s48, 1024")
        a("v_mul_u32_u24 v1, 40, v0")
        self.issue_mlp(10, 10)
        a("s_waitcnt vmcnt(0)")
        self.unpack_mlp(10, 10)
        a("s_branch L_table")

    def qphase(self):
        a = self.a
        rb = self.rb
        X = 168
        a("L_qphase:")
        nm = 0
        self.masks(4, 22, 23)
        a("s_waitcnt vmcnt(18)")
        self.stamp(7)
        for k in range(9):
            a(f"v_lshlrev_b32 v{X + 2 * k}, 16, v{12 + k}")
            a(f"v_and_b32 v{X + 1 + 2 * k}, 0xffff0000, v{12 + k}")
        a("s_add_u32 s55, s55, 1")
        a("s_mul_i32 s47, s55, 0x9E3779B1")
        a(f"v_add_f32 v22, v{X}, v{X + 1}")
        a(f"v_add_f32 v23, v{X + 2}, v{X + 3}")
        for k in range(4, 18, 2):
            a(f"v_add_f32 v22, v22, v{X + k}")
            a(f"v_add_f32 v23, v23, v{X + k + 1}")
        a("v_add_f32 v22, v22, v23")
        self.red16("v_add_f32", "v22")
        self.xrow(16, "v_add_f32", "v22", "v23")
        a(f"v_mul_f32 v22, {hx(1.0 / 576)}, v22")
        a("v_mov_b32 v24, 0")
        a("v_mov_b32 v25, 0")
        for k in range(0, 18, 2):
            a(f"v_sub_f32 v23, v{X + k}, v22")
            a(f"v_sub_f32 v26, v{X + k + 1}, v22")
            a("v_fmac_f32 v24, v23, v23")
            a("v_fmac_f32 v25, v26, v26")
        a("v_add_f32 v24, v24, v25")
        self.red16("v_add_f32", "v24")
        self.xrow(16, "v_add_f32", "v24", "v23")
        a(f"v_mul_f32 v24, {hx(1.0 / 576)}, v24")
        rb("v22", "v22")
        rb("v24", "v24")
        a(f"v_add_f32 v24, {hx(1e-5)}, v24")
        rb("v24", "v24")
        a("v_sqrt_f32 v24, v24")
        for k in range(18):
            a(f"v_sub_f32 v{X + k}, v{X + k}, v22")
        rb("v24", "v24")
        a("v_rcp_f32 v24, v24")
        for k in range(18):
            rb(f"v{X + k}", f"v{X + k}")
        for k in range(18):
            a(f"v_mul_f32 v{X + k}, v{X + k}, v24")
        for k in range(9):
            a(f"v_cvt_pk_bf16_f32 v{12 + k}, v{X + 2 * k}, v{X + 1 + 2 * k}")
        a("v_bfe_u32 v1, v0, 3, 1")
        a("v_lshlrev_b32 v1, 5, v1")
        a("v_lshrrev_b32 v2, 4, v0")
        a("v_add_u32 v1, v1, v2")
        a("s_lshl_b32 s48, s44, 2")
        a("v_add_lshl_u32 v1, v1, s48, 2")
        for k in range(9):
            a(f"ds_bpermute_b32 v{24 + k}, v1, v{12 + k}")
        a("s_mov_b32 s48, 0x01000100")
        a("s_mov_b32 s49, 0x03020302")
        a("s_waitcnt lgkmcnt(0)")
        for t in range(18):
            ab = 36 + 4 * (t & 1)
            a(f"v_perm_b32 v33, v{24 + t // 2}, v{24 + t // 2}, s{48 + (t & 1)}")
            for q in range(4):
                a(f"v_and_b32 v{ab + q}, v33, v{4 + q}")
            a(f"s_waitcnt vmcnt({17 - t})")
            c = "0" if t == 0 else "v[8:11]"
            a(f"v_mfma_f32_16x16x32_bf16 v[8:11], v[{ab}:{ab + 3}], v[{96 + 4 * t}:{99 + 4 * t}], {c}")
        a("s_lshl_b32 s48, s43, 14")
        a("s_lshl_b32 s49, s42, 12")
        a("s_add_u32 s49, s49, s48")
        a("s_lshl_b32 s50, s44, 9")
        a("s_add_u32 s49, s49, s50")
        a(f"s_add_u32 s49, s49, {QX}")
        a("v_lshrrev_b32 v1, 5, v0")
        a("v_lshlrev_b32 v1, 13, v1")
        a("v_and_b32 v2, 31, v0")
        a("v_lshl_add_u32 v1, v2, 4, v1")
        a("v_mov_b32 v15, s47")
        self.pack3(12, 8)
        a("buffer_store_dwordx4 v[12:15], v1, s[12:15], s49 offen sc1")
        self.stamp(1)
        if self.h0_mlp_early:
            a("s_cmp_lg_u32 s45, 0")
            a("s_cbranch_scc1 L_h0_nomlp")
            a("s_mov_b32 s48, 0")
            a("v_mul_u32_u24 v1, 24, v0")
            self.issue_mlp(6, 14)
            a("L_h0_nomlp:")
        a("s_lshl_b32 s48, s43, 14")
        a("s_lshl_b32 s49, s42, 13")
        a("s_add_u32 s48, s48, s49")
        a(f"s_add_u32 s48, s48, {QX}")
        a("s_add_u32 s49, s48, 4096")
        a("v_lshlrev_b32 v1, 4, v0")
        a("s_mov_b32 s50, 0")
        if self.q_sleep0:
            a(f"s_sleep {self.q_sleep0}")
        a("L_qpoll:")
        for u in range(8):
            so = "s48" if u < 4 else "s49"
            a(f"buffer_load_dwordx4 v[{8 + 4 * u}:{11 + 4 * u}], v1, s[12:15], {so} offen offset:{1024 * (u & 3)} sc1")
        a("s_waitcnt vmcnt(0)")
        self.tags_bad([11 + 4 * u for u in range(8)], 2, 3)
        a("s_cbranch_vccz L_qgot")
        self.retry("L_qpoll", self.q_sleep)
        a("L_qgot:")
        if self.pollcnt:
            a("s_mul_i32 s84, s50, 100")
            a("s_add_u32 s84, s84, s70")
            a("s_addc_u32 s85, s71, 0")
        for u in range(8):
            self.unpack4th(8 + 4 * u)
        for hh in range(2):
            for e in range(4):
                g = 8 + 16 * hh + e
                a(f"v_add_f32 v{g}, v{g}, v{g + 4}")
                a(f"v_add_f32 v{g + 8}, v{g + 8}, v{g + 12}")
            for e in range(4):
                g = 8 + 16 * hh + e
                a(f"v_add_f32 v{g}, v{g}, v{g + 8}")
        for e in range(4):
            a(f"v_permlane32_swap_b32 v{8 + e}, v{24 + e}")
        for e in range(4):
            a(f"v_add_f32 v{8 + e}, v{8 + e}, v{24 + e}")
        a("v_cvt_pk_bf16_f32 v12, v8, v9")
        a("v_cvt_pk_bf16_f32 v13, v10, v11")
        a("v_lshrrev_b32 v1, 5, v0")
        a("v_lshlrev_b32 v1, 8, v1")
        a("v_and_b32 v2, 15, v0")
        a("v_lshl_add_u32 v1, v2, 4, v1")
        a("v_bfe_u32 v2, v0, 4, 1")
        a("v_lshl_add_u32 v1, v2, 3, v1")
        a(f"ds_write_b64 v1, v[12:13] offset:{L_Q}")
        a("v_mov_b32 v14, s47")
        a("v_mov_b32 v15, s55")
        a("v_mov_b32 v2, 0")
        a("v_mov_b32 v3, 1")
        a(f"ds_write_b64 v2, v[14:15] offset:{L_TAG}")
        a("s_waitcnt lgkmcnt(0)")
        a(f"ds_write_b32 v2, v3 offset:{L_FLAG}")
        self.stamp(2)
        self.load_wo("L_nowo_b", "L_pre_b2")
        if not self.h0_mlp_early:
            a("s_mov_b32 s48, 0")
            a("v_mul_u32_u24 v1, 24, v0")
            self.issue_mlp(6, 14)
            a("s_waitcnt vmcnt(0)")
        self.unpack_mlp(6, 14)

    def table(self):
        a = self.a
        rb = self.rb
        a("L_table:")
        a(f"s_setprio {self.tprio}")
        a("s_lshr_b32 s48, s2, 3")
        a("s_mul_i32 s48, s48, 7")
        a("s_add_u32 s48, s48, s44")
        a("s_and_b32 s49, s43, 7")
        a("s_cmp_gt_u32 s44, s49")
        a("s_cselect_b32 s49, 1, 0")
        a("s_sub_u32 s54, s48, s49")
        a(f"s_mul_i32 s53, s54, {TPW}")
        self.gelu_consts(28)
        a(f"s_mul_i32 s48, s56, {4 * TPW}")
        a("v_mov_b32 v3, s48")
        a(f"s_mov_b32 s57, {1 if self.no_table else TPW}")
        a("L_tloop:")
        a(f"s_cmp_ge_u32 s53, {TAB_N}")
        a(f"s_cselect_b32 s48, {0x8000 - TAB_N}, 0")
        a("s_add_u32 s48, s48, s53")
        a(f"s_add_u32 s48, s48, {TAB_LO}")
        a("s_lshl_b32 s58, s48, 16")
        a("v_mov_b32 v26, 0")
        a("v_mov_b32 v27, 0")
        for (p0, n) in ((0, 3), (3, 3), (6, 4)):
            if p0 == 6:
                a("s_cmp_eq_u32 s56, 0")
                a("s_cbranch_scc1 L_tskip")
            items = [(W1 + 2 * (p0 + i), B1 + 2 * (p0 + i), W2 + 2 * (p0 + i), 8 + 4 * i, 10 + 4 * i) for i in range(n)]
            self.gelu_pk(items, 28, 30, 32, 26, "s[58:59]")
        a("L_tskip:")
        a("v_add_f32 v26, v26, v27")
        self.red16("v_add_f32", "v26")
        self.xrow(16, "v_add_f32", "v26", "v27")
        self.xrow(32, "v_add_f32", "v26", "v27")
        a(f"ds_write_b32 v3, v26 offset:{L_TP}")
        a("v_add_u32 v3, 4, v3")
        a("s_add_u32 s53, s53, 1")
        a("s_sub_u32 s57, s57, 1")
        a("s_cmp_lg_u32 s57, 0")
        a("s_cbranch_scc1 L_tloop")
        a("v_mov_b32 v2, 0")
        self.wait_flag("tflag", 2, 8)
        a(f"ds_read_b64 v[10:11], v2 offset:{L_TAG}")
        a("v_mov_b32 v8, 1")
        a("s_mov_b64 exec, 1")
        a(f"ds_add_rtn_u32 v9, v2, v8 offset:{L_CNT}")
        a("s_mov_b64 exec, -1")
        a("s_waitcnt lgkmcnt(0)")
        a("v_readfirstlane_b32 s47, v10")
        a("v_readfirstlane_b32 s55, v11")
        a("v_readfirstlane_b32 s48, v9")
        a("s_cmp_eq_u32 s48, 3")
        a("s_cbranch_scc0 L_tdone")
        a("v_lshlrev_b32 v3, 2, v0")
        a(f"s_mov_b64 exec, {hex((1 << TPW) - 1)}")
        for w in range(4):
            a(f"ds_read_b32 v{8 + w}, v3 offset:{L_TP + 4 * TPW * w}")
        a("v_lshlrev_b32 v3, 1, v0")
        a("s_lshl_b32 s48, s69, 16")
        a("s_waitcnt lgkmcnt(0)")
        a("v_add_f32 v8, v8, v9")
        a("v_add_f32 v10, v10, v11")
        a("v_add_f32 v8, v8, v10")
        rb("v8", "v8")
        a("v_add_f32 v8, s48, v8")
        a("v_cvt_pk_bf16_f32 v8, v8, 0")
        a(f"ds_write_b16 v3, v8 offset:{L_TY}")
        a("s_mov_b64 exec, 15")
        a("v_mul_u32_u24 v3, 12, v0")
        a("s_waitcnt lgkmcnt(0)")
        for i in range(3):
            a(f"ds_read_b32 v{8 + i}, v3 offset:{L_TY + 4 * i}")
        a("v_mov_b32 v11, s47")
        a("v_lshlrev_b32 v3, 4, v0")
        a("s_lshl_b32 s48, s54, 6")
        a(f"s_add_u32 s48, s48, {TAB}")
        a("s_waitcnt lgkmcnt(0)")
        a("buffer_store_dwordx4 v[8:11], v3, s[12:15], s48 offen sc1")
        a("s_mov_b64 exec, -1")
        a("L_tdone:")
        self.stamp(3)
        a("s_cmp_eq_u32 s46, 0")
        a("s_cbranch_scc1 L_nogather")
        a("s_mul_i32 s48, s56, 3584")
        a(f"s_add_u32 s48, s48, {TAB}")
        a("v_lshlrev_b32 v1, 4, v0")
        a("s_mov_b32 s50, 0")
        a(f"s_sleep {self.gather_sleep0}")
        a("L_gpoll:")
        a("v_mov_b32 v23, s47")
        for u in range(3):
            a(f"buffer_load_dwordx4 v[{8 + 4 * u}:{11 + 4 * u}], v1, s[12:15], s48 offen offset:{1024 * u} sc1")
        a("s_mov_b32 exec_hi, 0")
        a("buffer_load_dwordx4 v[20:23], v1, s[12:15], s48 offen offset:3072 sc1")
        a("s_mov_b32 exec_hi, -1")
        a("s_waitcnt vmcnt(0)")
        self.tags_bad([11, 15, 19, 23], 2, 3)
        a("s_cbranch_vccz L_ggot")
        self.retry("L_gpoll", self.gather_sleep)
        a("L_ggot:")
        a("s_mul_i32 s48, s56, 2688")
        a("v_mul_u32_u24 v1, 12, v0")
        a("v_add_u32 v1, s48, v1")
        for u in range(4):
            if u == 3:
                a("s_mov_b32 exec_hi, 0")
            for i in range(3):
                a(f"ds_write_b32 v1, v{8 + 4 * u + i} offset:{L_TAB + 768 * u + 4 * i}")
        a("s_mov_b32 exec_hi, -1")
        a("s_waitcnt lgkmcnt(0)")
        self.stamp(4)
        a("s_branch L_final")
        a("L_nogather:")
        if self.stamps:
            a("s_cmp_eq_u32 s56, 0")
            a("s_cbranch_scc0 L_end")
            a("s_setprio 0")
            a("v_mov_b32 v2, 0")
            self.wait_flag("stdone", 2, 3, L_DONE, 8)
            self.stamp_flush(0, 7, 8)
        a("s_endpgm")

    def grab(self):
        a = self.a
        a("s_mov_b64 exec, 1")
        a(f"ds_add_rtn_u32 v59, v60, v61 offset:{L_NEXT}")
        a("s_mov_b64 exec, -1")

    def issue_tile(self, slot, grab=True, mid=None):
        a = self.a
        kb = RING + 32 * slot
        if grab:
            a("s_waitcnt lgkmcnt(0)")
            a("v_readfirstlane_b32 s48, v59")
            self.grab()
            a("s_lshl_b32 s52, s48, 12")
            a("s_add_u32 s52, s52, s51")
            a("s_cmp_lt_u32 s48, s49")
            a("s_addc_u32 s54, s54, 0")
        for c in range(4):
            a(f"buffer_load_dwordx4 v[{kb + 4 * c}:{kb + 4 * c + 3}], v1, s[4:7], s52 offen offset:{64 * c}{self.kvpol if self.kpol is None else self.kpol}")
        if mid is not None:
            a(f"s_waitcnt vmcnt({mid})")
        for c in range(4):
            a(f"buffer_load_dwordx4 v[{kb + 16 + 4 * c}:{kb + 19 + 4 * c}], v2, s[8:11], s52 offen offset:{1024 * c}{self.kvpol if self.vpol is None else self.vpol}")

    def stream(self):
        a = self.a
        rb = self.rb
        ring = self.ring
        L = self.look
        a("L_stream:")
        if self.h0_first:
            self.issue_tile(0, grab=False)
        if self.trace:
            a("s_mov_b32 s59, 0")
            a("v_mov_b32 v58, 0")
        self.trace_pt()
        a("v_mov_b32 v60, 0")
        a("v_mov_b32 v61, 1")
        self.grab()
        a("s_mov_b32 s54, 1")
        if self.half_thr is not None:
            a(f"s_waitcnt vmcnt({self.half_thr})")
        self.issue_tile(1, mid=self.half_thr)
        self.trace_pt()
        self.masks(4, 18, 19)
        for r in range(4):
            a(f"v_mov_b32 v{8 + r}, 0")
        a("v_mov_b32 v16, 0xff7fffff")
        a("v_mov_b32 v17, 0")
        a("v_bfe_u32 v3, v0, 3, 1")
        a("v_lshlrev_b32 v3, 8, v3")
        a("v_lshrrev_b32 v18, 4, v0")
        a("v_lshl_add_u32 v3, v18, 4, v3")
        a("v_mov_b32 v18, 0")
        if self.no_qwait:
            a(f"s_mov_b32 s53, 0")
            a("s_branch L_qskip")
        for t in range(2, ring):
            a(f"s_waitcnt vmcnt({self.pre_throttle if self.half_thr is None else self.half_thr})")
            if self.early and t > L:
                a(f"ds_read_b32 v19, v18 offset:{L_FLAG}")
                a(f"s_mov_b32 s53, {t - L}")
                a("s_waitcnt lgkmcnt(0)")
                a("v_readfirstlane_b32 s48, v19")
                a("s_cmp_lg_u32 s48, 0")
                a("s_cbranch_scc1 L_qwait_ok")
            self.issue_tile(t, mid=self.half_thr)
            self.trace_pt()
        a(f"s_mov_b32 s53, {ring - L}")
        self.wait_flag("qwait", 18, 19)
        a("L_qskip:")
        self.stamp(1)
        for c in range(4):
            a(f"ds_read_b128 v[{40 + 4 * c}:{43 + 4 * c}], v3 offset:{L_Q + 64 * c}")
        a(f"ds_read_b64 v[56:57], v18 offset:{L_TAG}")
        a("s_mov_b64 vcc, s[60:61]")
        a("s_waitcnt lgkmcnt(0)")
        a("v_readfirstlane_b32 s47, v56")
        a("v_readfirstlane_b32 s55, v57")
        self.stamp(2)
        a("L_loop:")
        for slot in range(ring):
            kb = RING + 32 * slot
            vb = kb + 16
            if slot < ring - L:
                a("s_cmp_lg_u32 s53, 0")
                a(f"s_cbranch_scc1 L_noissue{slot}")
            self.issue_tile((slot + L) % ring)
            if slot < ring - L:
                a("s_add_u32 s53, s53, 1")
                a(f"L_noissue{slot}:")
                a("s_sub_u32 s53, s53, 1")
            a(f"s_waitcnt vmcnt({8 * L + 4})")
            if self.dynprio:
                a("s_setprio 3")
            a(f"v_mfma_f32_16x16x32_bf16 v[12:15], v[{kb}:{kb + 3}], v[40:43], 0")
            for c in range(1, 4):
                a(f"v_mfma_f32_16x16x32_bf16 v[12:15], v[{kb + 4 * c}:{kb + 4 * c + 3}], v[{40 + 4 * c}:{43 + 4 * c}], v[12:15]")
            a("s_sub_u32 s54, s54, 1")
            for r in range(4):
                rb(f"v{12 + r}", f"v{12 + r}")
            for r in range(4):
                a(f"v_mul_f32 v{12 + r}, s63, v{12 + r}")
            for r in range(4):
                rb(f"v{12 + r}", f"v{12 + r}")
            a("v_max3_f32 v18, v12, v13, v14")
            a("v_max3_f32 v18, v18, v15, v16")
            self.xrow(32, "v_max_f32", "v18", "v19")
            self.xrow(16, "v_max_f32", "v18", "v19")
            a("v_sub_f32 v20, v16, v18")
            a("v_mul_f32 v21, s62, v18")
            a("v_mul_f32 v20, s62, v20")
            a("v_mov_b32 v16, v18")
            a("v_exp_f32 v20, v20")
            for r in range(4):
                a(f"v_fma_f32 v{12 + r}, v{12 + r}, s62, -v21")
            for r in range(4):
                a(f"v_exp_f32 v{12 + r}, v{12 + r}")
            a("v_cndmask_b32_dpp v22, v20, v20, vcc row_ror:8 row_mask:0xf bank_mask:0xf")
            a("v_add_f32 v18, v12, v13")
            a("v_add_f32 v19, v14, v15")
            for r in range(4):
                a(f"v_cvt_pk_bf16_f32 v{12 + r}, v{12 + r}, v{12 + r}")
            a("v_add_f32 v18, v18, v19")
            for r in range(4):
                a(f"v_mul_f32 v{8 + r}, v22, v{8 + r}")
            a("v_fma_f32 v17, v17, v20, v18")
            for r in range(4):
                for q in range(4):
                    a(f"v_and_b32 v{24 + 4 * r + q}, v{12 + r}, v{4 + q}")
            a(f"s_waitcnt vmcnt({8 * L})")
            for r in range(4):
                a(f"v_mfma_f32_16x16x32_bf16 v[8:11], v[{24 + 4 * r}:{27 + 4 * r}], v[{vb + 4 * r}:{vb + 4 * r + 3}], v[8:11]")
            self.trace_pt()
            a("s_cmp_eq_u32 s54, 0")
            a("s_cbranch_scc1 L_sdone")
            if self.dynprio:
                a("s_setprio 0")
        a("s_branch L_loop")
        a("L_sdone:")
        self.stamp(3)
        if self.no_qwait:
            a("v_mov_b32 v18, 0")
            a(f"ds_read_b64 v[56:57], v18 offset:{L_TAG}")
            a("s_waitcnt lgkmcnt(0)")
            a("v_readfirstlane_b32 s47, v56")
            a("v_readfirstlane_b32 s55, v57")
        self.xrow(32, "v_add_f32", "v17", "v19")
        self.xrow(16, "v_add_f32", "v17", "v19")
        a("v_cndmask_b32_dpp v18, v16, v16, vcc row_ror:8 row_mask:0xf bank_mask:0xf")
        a("v_cndmask_b32_dpp v19, v17, v17, vcc row_ror:8 row_mask:0xf bank_mask:0xf")
        a("s_lshl_b32 s48, s3, 10")
        a("v_lshl_add_u32 v20, v0, 4, s48")
        a("s_lshl_b32 s48, s3, 9")
        a("v_lshl_add_u32 v21, v0, 3, s48")
        a(f"ds_write_b128 v20, v[8:11] offset:{L_P}")
        a(f"ds_write_b64 v21, v[18:19] offset:{L_PS}")
        a("v_mov_b32 v22, 0")
        a("v_mov_b32 v23, 1")
        a("s_mov_b64 exec, 1")
        a(f"ds_add_rtn_u32 v24, v22, v23 offset:{L_CNT2}")
        a("s_mov_b64 exec, -1")
        a("v_lshlrev_b32 v20, 4, v0")
        a("v_lshlrev_b32 v21, 3, v0")
        a("s_waitcnt lgkmcnt(0)")
        a("v_readfirstlane_b32 s48, v24")
        a("s_cmp_eq_u32 s48, 3")
        a("s_cbranch_scc0 L_after_pub")
        for w in range(4):
            a(f"ds_read_b64 v[{24 + 2 * w}:{25 + 2 * w}], v21 offset:{L_PS + 512 * w}")
        for w in range(4):
            a(f"ds_read_b128 v[{32 + 4 * w}:{35 + 4 * w}], v20 offset:{L_P + 1024 * w}")
        a("s_lshl_b32 s48, s43, 5")
        a("s_lshl_b32 s49, s42, 3")
        a("s_add_u32 s48, s48, s49")
        a("s_add_u32 s48, s48, s44")
        a("s_mul_i32 s48, s48, 640")
        a(f"s_add_u32 s48, s48, {E1}")
        a("v_lshrrev_b32 v22, 5, v0")
        a(f"v_mul_u32_u24 v22, {16 * 640}, v22")
        a("v_and_b32 v23, 15, v0")
        a("v_lshl_add_u32 v23, v23, 5, v22")
        a("v_bfe_u32 v12, v0, 4, 1")
        a("v_lshl_add_u32 v23, v12, 4, v23")
        a("s_waitcnt lgkmcnt(4)")
        a("v_max_f32 v12, v24, v26")
        a("v_max3_f32 v12, v12, v28, v30")
        for w in range(4):
            a(f"v_sub_f32 v{24 + 2 * w}, v{24 + 2 * w}, v12")
        for w in range(4):
            a(f"v_mul_f32 v{24 + 2 * w}, s62, v{24 + 2 * w}")
        for w in range(4):
            a(f"v_exp_f32 v{24 + 2 * w}, v{24 + 2 * w}")
        a("v_mul_f32 v13, v24, v25")
        a("s_waitcnt lgkmcnt(0)")
        for r in range(4):
            a(f"v_mul_f32 v{8 + r}, v24, v{32 + r}")
        for w in range(1, 4):
            for r in range(4):
                a(f"v_fmac_f32 v{8 + r}, v{24 + 2 * w}, v{32 + 4 * w + r}")
        self.pack3(16, 8)
        a("v_mov_b32 v19, s47")
        a("buffer_store_dwordx4 v[16:19], v23, s[12:15], s48 offen sc1")
        for w in range(1, 4):
            a(f"v_fmac_f32 v13, v{24 + 2 * w}, v{25 + 2 * w}")
        a("v_mov_b32 v14, 0")
        a("v_mov_b32 v15, s47")
        a("s_mov_b32 exec_lo, 1")
        a("s_mov_b32 exec_hi, 1")
        a("buffer_store_dwordx4 v[12:15], v22, s[12:15], s48 offen offset:512 sc1")
        a("s_mov_b64 exec, -1")
        a("v_mov_b32 v20, 0")
        a("v_mov_b32 v21, 1")
        a(f"ds_write_b32 v20, v21 offset:{L_DONE}")
        self.stamp(4)
        self.stamp_flush(0, 4, 0)
        a("L_after_pub:")
        if self.trace:
            a("v_mov_b32 v60, 0")
            self.wait_flag("trdone", 60, 61, L_DONE, 4)
            a("s_lshl_b32 s48, s2, 2")
            a("s_add_u32 s48, s48, s3")
            a("s_lshl_b32 s48, s48, 8")
            a(f"s_add_u32 s48, s48, {STAMP + 0x20000}")
            a("v_lshlrev_b32 v57, 2, v0")
            a("buffer_store_dword v58, v57, s[12:15], s48 offen")
        a("s_cmp_lg_u32 s46, 0")
        a("s_cbranch_scc1 L_final")
        a("s_endpgm")

    def owner(self):
        a = self.a
        a("L_pre_b2:")
        a("v_mov_b32 v3, 0")
        self.wait_flag("oflag", 3, 8)
        a(f"ds_read_b64 v[10:11], v3 offset:{L_TAG}")
        self.masks(4, 8, 9)
        a("s_lshl_b32 s57, s43, 1")
        a("s_add_u32 s57, s57, s42")
        a(f"s_mul_i32 s49, s57, {16 * 640}")
        a(f"s_add_u32 s49, s49, {E1}")
        a("v_and_b32 v1, 15, v0")
        a("v_mul_u32_u24 v1, 640, v1")
        a("v_lshrrev_b32 v2, 4, v0")
        a("s_lshl_b32 s50, s56, 3")
        a("v_add_lshl_u32 v2, v2, s50, 4")
        a("v_add_u32 v2, v1, v2")
        a("s_waitcnt vmcnt(0) lgkmcnt(0)")
        a("v_readfirstlane_b32 s47, v10")
        self.stamp(4)
        self.wait_flag("odone", 3, 8, L_DONE, self.done_sleep)
        a("s_mov_b32 s50, 0")
        a("L_opoll:")
        a("buffer_load_dwordx4 v[8:11], v1, s[12:15], s49 offen offset:512 sc1")
        a("buffer_load_dwordx4 v[12:15], v2, s[12:15], s49 offen sc1")
        a("buffer_load_dwordx4 v[16:19], v2, s[12:15], s49 offen offset:64 sc1")
        a("s_waitcnt vmcnt(0)")
        self.tags_bad([11, 15, 19], 20, 21)
        a("s_cbranch_vccz L_ogot")
        self.retry("L_opoll", self.tail_sleep)
        a("L_ogot:")
        self.stamp(5)
        a("v_mov_b32 v10, v8")
        self.unpack4th(12)
        self.red8("v_max_f32", "v10")
        self.unpack4th(16)
        a("v_sub_f32 v8, v8, v10")
        a("v_mul_f32 v8, s62, v8")
        a("v_exp_f32 v8, v8")
        a("v_mul_f32 v9, v8, v9")
        for e in range(8):
            a(f"v_mul_f32 v{12 + e}, v8, v{12 + e}")
        for c in ("quad_perm:[1,0,3,2]", "quad_perm:[2,3,0,1]", "row_half_mirror"):
            self.dpp("v_add_f32", "v9", c)
            for e in range(8):
                self.dpp("v_add_f32", f"v{12 + e}", c)
        a("v_rcp_f32 v9, v9")
        for e in range(8):
            a(f"v_mul_f32 v{12 + e}, v9, v{12 + e}")
        for e in range(8):
            a(f"v_cvt_pk_bf16_f32 v{12 + e}, v{12 + e}, v{12 + e}")
        for t in range(8):
            ab = 40 + 4 * t
            for q in range(4):
                a(f"v_and_b32 v{ab + q}, v{12 + t}, v{4 + q}")
            for cg in range(5):
                r = 96 + 4 * (5 * t + cg)
                d = 72 + 4 * cg
                c = "0" if t == 0 else f"v[{d}:{d + 3}]"
                a(f"v_mfma_f32_16x16x32_bf16 v[{d}:{d + 3}], v[{ab}:{ab + 3}], v[{r}:{r + 3}], {c}")
        a("s_mul_i32 s50, s56, 4608")
        a("v_lshrrev_b32 v1, 5, v0")
        a("v_mul_u32_u24 v1, 2304, v1")
        a("v_and_b32 v2, 15, v0")
        a("v_lshl_add_u32 v1, v2, 5, v1")
        a("v_bfe_u32 v2, v0, 4, 1")
        a("v_lshl_add_u32 v1, v2, 4, v1")
        a("v_add_u32 v1, s50, v1")
        a("s_mul_i32 s50, s56, 48")
        a("v_add_u32 v2, s50, v0")
        a("v_mul_u32_u24 v3, 24, v2")
        for cg in range(4):
            a(f"ds_write_b128 v1, v[{72 + 4 * cg}:{75 + 4 * cg}] offset:{L_R + 512 * cg}")
        a("s_mov_b32 exec_lo, 0x00ff00ff")
        a("s_mov_b32 exec_hi, 0x00ff00ff")
        a(f"ds_write_b128 v1, v[88:91] offset:{L_R + 2048}")
        a("s_mov_b64 exec, -1")
        a("s_waitcnt lgkmcnt(0)")
        a("s_barrier")
        a("s_mov_b32 exec_hi, 0xffff")
        for w in range(4):
            for i in range(3):
                a(f"ds_read_b64 v[{8 + 6 * w + 2 * i}:{9 + 6 * w + 2 * i}], v3 offset:{L_R + 4608 * w + 8 * i}")
        a("s_lshr_b32 s50, s56, 1")
        a("s_lshl_b32 s50, s50, 5")
        a("s_add_u32 s50, s50, s57")
        a("s_mul_i32 s50, s50, 1536")
        a("s_and_b32 s51, s56, 1")
        a("s_mul_i32 s51, s51, 768")
        a("s_add_u32 s50, s50, s51")
        a(f"s_add_u32 s50, s50, {FIN}")
        a("v_lshlrev_b32 v1, 4, v0")
        a("s_waitcnt lgkmcnt(6)")
        for i in range(6):
            a(f"v_add_f32 v{8 + i}, v{8 + i}, v{14 + i}")
        a("s_waitcnt lgkmcnt(0)")
        for i in range(6):
            a(f"v_add_f32 v{20 + i}, v{20 + i}, v{26 + i}")
        for i in range(6):
            a(f"v_add_f32 v{8 + i}, v{8 + i}, v{20 + i}")
        for i in range(3):
            a(f"v_cvt_pk_bf16_f32 v{32 + i}, v{8 + 2 * i}, v{9 + 2 * i}")
        a("v_mov_b32 v35, s47")
        a("buffer_store_dwordx4 v[32:35], v1, s[12:15], s50 offen sc1")
        a("s_mov_b64 exec, -1")
        self.stamp(6)
        if self.stamps:
            a("s_cmp_eq_u32 s56, 0")
            a("s_cbranch_scc0 L_end")
            self.stamp_flush(0, 7, 8)
        a("s_endpgm")

    def ln_round(self, src, dst, lds_off):
        a = self.a
        rb = self.rb
        a(f"v_add_f32 v16, v{src}, v{src + 1}")
        a(f"v_mul_f32 v17, v{src}, v{src}")
        a(f"v_add_f32 v18, v{src + 2}, v{src + 3}")
        a(f"v_fmac_f32 v17, v{src + 1}, v{src + 1}")
        a("v_add_f32 v16, v16, v18")
        a(f"v_fmac_f32 v17, v{src + 2}, v{src + 2}")
        a(f"v_fmac_f32 v17, v{src + 3}, v{src + 3}")
        for c in ("quad_perm:[1,0,3,2]", "quad_perm:[2,3,0,1]", "row_half_mirror", "row_ror:8"):
            self.dpp("v_add_f32", "v16", c)
            self.dpp("v_add_f32", "v17", c)
        a("v_mov_b32 v18, v16")
        a("v_mov_b32 v19, v17")
        a("v_permlane16_swap_b32 v16, v18")
        a("v_permlane16_swap_b32 v17, v19")
        a("v_add_f32 v16, v16, v18")
        a("v_add_f32 v17, v17, v19")
        a("s_mov_b64 exec, 1")
        a(f"ds_write_b64 v1, v[16:17] offset:{lds_off}")
        a("s_mov_b64 exec, -1")
        a("s_waitcnt lgkmcnt(0)")
        a("s_barrier")
        for i in range(3):
            a(f"ds_read_b128 v[{24 + 4 * i}:{27 + 4 * i}], v2 offset:{lds_off + 16 * i}")
        a("s_waitcnt lgkmcnt(0)")
        a("v_add_f32 v16, v24, v26")
        a("v_add_f32 v17, v25, v27")
        a("v_add_f32 v18, v28, v30")
        a("v_add_f32 v19, v29, v31")
        a("v_add_f32 v24, v32, v34")
        a("v_add_f32 v25, v33, v35")
        a("v_add_f32 v16, v16, v18")
        a("v_add_f32 v17, v17, v19")
        a("v_add_f32 v16, v16, v24")
        a("v_add_f32 v17, v17, v25")
        a(f"v_mul_f32 v16, {hx(1.0 / 576)}, v16")
        a(f"v_mul_f32 v17, {hx(1.0 / 576)}, v17")
        a("v_fma_f32 v17, -v16, v16, v17")
        a("v_max_f32 v17, 0, v17")
        rb("v16", "v16")
        rb("v17", "v17")
        a(f"v_add_f32 v17, {hx(1e-5)}, v17")
        for r in range(4):
            a(f"v_sub_f32 v{dst + r}, v{src + r}, v16")
        rb("v17", "v17")
        a("v_sqrt_f32 v17, v17")
        for r in range(4):
            rb(f"v{dst + r}", f"v{dst + r}")
        rb("v17", "v17")
        a("v_rcp_f32 v17, v17")
        for r in range(4):
            a(f"v_mul_f32 v{dst + r}, v{dst + r}, v17")
        for r in range(4):
            rb(f"v{dst + r}", f"v{dst + r}")

    def final(self):
        a = self.a
        rb = self.rb
        a("L_final:")
        a("s_cmp_ge_u32 s3, 6")
        a("s_cbranch_scc1 L_end")
        a("s_sub_u32 s46, s46, 1")
        self.masks(4, 8, 9)
        a("v_and_b32 v1, 15, v0")
        a("v_cmp_gt_u32 vcc, 6, v1")
        a("v_mov_b32 v2, 0x3f803f80")
        a("v_cndmask_b32 v2, 0, v2, vcc")
        for q in range(4):
            a(f"v_and_b32 v{4 + q}, v2, v{4 + q}")
        a("s_mul_i32 s52, s46, 1152")
        a("s_mul_i32 s48, s3, 192")
        a("s_add_u32 s52, s52, s48")
        a("v_mul_u32_u24 v3, 12, v1")
        a("v_lshrrev_b32 v2, 4, v0")
        a("v_lshl_add_u32 v3, v2, 3, v3")
        self.srd(4, 16, 2304)
        self.srd(8, 36, 2304)
        a("buffer_load_dwordx2 v[56:57], v3, s[4:7], s52 offen")
        a("v_mul_u32_u24 v2, 1536, v2")
        a("v_lshl_add_u32 v2, v1, 4, v2")
        for r in range(4):
            a(f"v_mov_b32 v{8 + r}, 0")
        a("v_mov_b32 v12, 0")
        self.wait_flag("fdone", 12, 13, L_DONE, self.done_sleep)
        a(f"s_mul_i32 s48, s46, {32 * 1536}")
        a("s_lshl_b32 s49, s3, 8")
        a("s_add_u32 s48, s48, s49")
        a(f"s_add_u32 s48, s48, {FIN}")
        a("s_mov_b32 s53, 0xff")
        a("s_mov_b32 s50, 0")
        a("L_fpoll:")
        for pg in range(8):
            a(f"s_bitcmp1_b32 s53, {pg}")
            a(f"s_cbranch_scc0 L_fskip{pg}")
            a(f"s_add_u32 s49, s48, {pg * 4 * 1536}")
            a(f"buffer_load_dwordx4 v[{64 + 4 * pg}:{67 + 4 * pg}], v2, s[12:15], s49 offen sc1")
            a(f"L_fskip{pg}:")
        a("s_waitcnt vmcnt(0)")
        for pg in range(8):
            a(f"s_bitcmp1_b32 s53, {pg}")
            a(f"s_cbranch_scc0 L_fnext{pg}")
            a(f"v_cmp_ne_u32 vcc, s47, v{67 + 4 * pg}")
            a(f"s_cbranch_vccnz L_fnext{pg}")
            a(f"v_mov_b32 v{67 + 4 * pg}, 0")
            a(f"s_bitset0_b32 s53, {pg}")
            a(f"v_mfma_f32_16x16x32_bf16 v[8:11], v[4:7], v[{64 + 4 * pg}:{67 + 4 * pg}], v[8:11]")
            a(f"L_fnext{pg}:")
        a("s_cmp_eq_u32 s53, 0")
        a("s_cbranch_scc1 L_fgot")
        self.retry("L_fpoll", self.tail_sleep)
        a("L_fgot:")
        self.stamp(5)
        a("v_lshlrev_b32 v12, 16, v56")
        a("v_and_b32 v13, 0xffff0000, v56")
        a("v_lshlrev_b32 v14, 16, v57")
        a("v_and_b32 v15, 0xffff0000, v57")
        for r in range(4):
            rb(f"v{8 + r}", f"v{8 + r}")
        for r in range(4):
            a(f"v_add_f32 v{12 + r}, v{12 + r}, v{8 + r}")
        a("s_mov_b32 s50, -1")
        a("s_mov_b32 s51, 0")
        a("s_mov_b64 s[58:59], 0xffff")
        for r in range(4):
            rb(f"v{12 + r}", f"v{12 + r}")
        a("v_cndmask_b32 v12, 0, v12, s[50:51]")
        a("v_cndmask_b32 v13, 0, v13, s[50:51]")
        a("v_cndmask_b32 v14, 0, v14, s[58:59]")
        a("v_cndmask_b32 v15, 0, v15, s[58:59]")
        a("s_lshl_b32 s48, s3, 3")
        a("v_mov_b32 v1, s48")
        a("v_mov_b32 v2, 0")
        self.ln_round(12, 20, L_ST)
        a("v_cndmask_b32 v20, 0, v20, s[50:51]")
        a("v_cndmask_b32 v21, 0, v21, s[50:51]")
        a("v_cndmask_b32 v22, 0, v22, s[58:59]")
        a("v_cndmask_b32 v23, 0, v23, s[58:59]")
        self.ln_round(20, 40, L_ST + 64)
        for r in range(4):
            a(f"v_bfe_u32 v{44 + r}, v{40 + r}, 16, 15")
        for r in range(4):
            a(f"v_subrev_u32 v{44 + r}, {TAB_LO}, v{44 + r}")
        for r in range(4):
            a(f"v_lshrrev_b32 v{48 + r}, 31, v{40 + r}")
        for r in range(4):
            a(f"v_mul_u32_u24 v{48 + r}, {TAB_N}, v{48 + r}")
        a(f"s_movk_i32 s48, {TAB_N}")
        for r in range(4):
            a(f"v_cmp_le_u32 s[{86 + 2 * r}:{87 + 2 * r}], s48, v{44 + r}")
        for r in range(4):
            a(f"v_min_u32 v{44 + r}, {TAB_N - 1}, v{44 + r}")
        for r in range(4):
            a(f"v_add_u32 v{44 + r}, v{44 + r}, v{48 + r}")
        for r in range(4):
            a(f"v_mul_u32_u24 v{48 + r}, 49933, v{44 + r}")
        for r in range(4):
            a(f"v_lshrrev_b32 v{48 + r}, 20, v{48 + r}")
        for r in range(4):
            a(f"v_mad_u32_u24 v{44 + r}, v{48 + r}, 3, v{44 + r}")
        for r in range(4):
            a(f"v_lshlrev_b32 v{44 + r}, 1, v{44 + r}")
        for r in range(4):
            a(f"ds_read_u16 v{48 + r}, v{44 + r} offset:{L_TAB}")
        a("s_and_b64 s[86:87], s[86:87], s[50:51]")
        a("s_and_b64 s[88:89], s[88:89], s[50:51]")
        a("s_and_b64 s[90:91], s[90:91], s[58:59]")
        a("s_and_b64 s[92:93], s[92:93], s[58:59]")
        a("s_or_b64 s[94:95], s[86:87], s[88:89]")
        a("s_or_b64 s[96:97], s[90:91], s[92:93]")
        a("s_or_b64 s[94:95], s[94:95], s[96:97]")
        a("s_waitcnt lgkmcnt(0)")
        for r in range(4):
            a(f"v_lshlrev_b32 v{48 + r}, 16, v{48 + r}")
        a("s_cbranch_scc1 L_slow")
        a("L_slow_ret:")
        for r in range(4):
            a(f"v_add_f32 v{12 + r}, v{12 + r}, v{48 + r}")
        a("v_cvt_pk_bf16_f32 v16, v12, v13")
        a("v_cvt_pk_bf16_f32 v17, v14, v15")
        a("s_mov_b64 exec, 0xffff")
        a("buffer_store_dwordx2 v[16:17], v3, s[8:11], s52 offen")
        a("s_mov_b64 exec, 0xffff0000")
        a("buffer_store_dword v16, v3, s[8:11], s52 offen")
        a("s_mov_b64 exec, -1")
        self.stamp(6)
        a("s_or_b32 s48, s46, s3")
        a("s_cmp_eq_u32 s48, 0")
        a("s_cbranch_scc0 L_noepoch")
        a("v_mov_b32 v16, s55")
        a("s_mov_b64 exec, 1")
        a(f"buffer_store_dword v16, v2, s[12:15], 0 offen offset:{EPOCH} sc1")
        a("s_mov_b64 exec, -1")
        a("L_noepoch:")
        if self.dbg:
            a("s_cmp_eq_u32 s3, 0")
            a("s_cbranch_scc0 L_end")
            a("s_waitcnt lgkmcnt(0)")
            self.srd(4, 38, 256)
            a("s_lshl_b32 s48, s46, 5")
            a("s_mov_b64 exec, 1")
            for i in range(1, 7):
                a(f"s_sub_u32 s49, s{70 + 2 * i}, s70")
                a("v_mov_b32 v16, s49")
                a(f"buffer_store_dword v16, v2, s[4:7], s48 offen offset:{4 * i}")
            a("s_mov_b64 exec, -1")
        if self.stamps:
            a("s_cmp_eq_u32 s3, 1")
            a("s_cbranch_scc0 L_end")
            self.stamp_flush(5, 6, 16)
        a("L_end:")
        a("s_endpgm")

    def slow(self):
        a = self.a
        rb = self.rb
        a("L_slow:")
        self.gelu_consts(28)
        a("s_load_dword s69, s[34:35], 0")
        a("v_lshlrev_b32 v1, 4, v0")
        a("s_waitcnt lgkmcnt(0)")
        a("s_lshl_b32 s69, s69, 16")
        for r in range(4):
            m = f"s[{86 + 2 * r}:{87 + 2 * r}]"
            a(f"L_slow_r{r}:")
            a(f"s_cmp_eq_u64 {m}, 0")
            a(f"s_cbranch_scc1 L_slow_n{r}")
            a(f"s_ff1_i32_b64 s54, {m}")
            a(f"s_bitset0_b64 {m}, s54")
            a(f"v_readlane_b32 s58, v{40 + r}, s54")
            a("v_mov_b32 v26, 0")
            a("v_mov_b32 v27, 0")
            a("s_mov_b32 s53, 0")
            a(f"L_slow_l{r}:")
            for sp, dst in ((28, 64), (30, 68), (32, 72)):
                self.srd(4, sp, 9216)
                a(f"buffer_load_dwordx4 v[{dst}:{dst + 3}], v1, s[4:7], s53 offen")
            a("s_waitcnt vmcnt(0)")
            for (src, out) in ((64, 80), (68, 88), (72, 96)):
                for k in range(4):
                    a(f"v_lshlrev_b32 v{out + 2 * k}, 16, v{src + k}")
                    a(f"v_and_b32 v{out + 2 * k + 1}, 0xffff0000, v{src + k}")
            items = [(80 + 2 * i, 88 + 2 * i, 96 + 2 * i, 104 + 4 * i, 106 + 4 * i) for i in range(4)]
            self.gelu_pk(items, 28, 30, 32, 26, "s[58:59]")
            a("s_add_u32 s53, s53, 1024")
            a("s_cmp_lt_u32 s53, 9216")
            a(f"s_cbranch_scc1 L_slow_l{r}")
            a("v_add_f32 v26, v26, v27")
            self.red16("v_add_f32", "v26")
            self.xrow(16, "v_add_f32", "v26", "v27")
            self.xrow(32, "v_add_f32", "v26", "v27")
            rb("v26", "v26")
            a("v_add_f32 v26, s69, v26")
            rb("v26", "v26")
            a("s_lshl_b64 exec, 1, s54")
            a(f"v_mov_b32 v{48 + r}, v26")
            a("s_mov_b64 exec, -1")
            a(f"s_branch L_slow_r{r}")
            a(f"L_slow_n{r}:")
        a("s_branch L_slow_ret")
        a("L_code_end:")

    def build(self):
        a = self.a
        a.raw(f"; @launch grid=(256,1,1) block=(512,1,1) lds={LDS_BYTES}")
        a.raw('.amdgcn_target "amdgcn-amd-amdhsa--gfx950"')
        a.raw(".text")
        a.raw(f".globl {NAME}_kernel")
        a.raw(".p2align 8")
        a.raw(f".type {NAME}_kernel,@function")
        a.raw(f"{NAME}_kernel:")
        self.prologue()
        self.helper_start()
        self.stream()
        self.qphase()
        self.table()
        self.owner()
        self.final()
        self.slow()
        a.raw('.section .rodata,"a"')
        a.raw(".p2align 6")
        a.raw(f".amdhsa_kernel {NAME}_kernel")
        a.raw("  .amdhsa_next_free_vgpr 256")
        a.raw("  .amdhsa_next_free_sgpr 102")
        a.raw("  .amdhsa_accum_offset 256")
        a.raw("  .amdhsa_group_segment_fixed_size 0")
        a.raw("  .amdhsa_kernarg_size 104")
        a.raw("  .amdhsa_user_sgpr_count 2")
        a.raw("  .amdhsa_user_sgpr_kernarg_segment_ptr 1")
        a.raw("  .amdhsa_system_sgpr_workgroup_id_x 1")
        a.raw("  .amdhsa_float_denorm_mode_32 3")
        a.raw(".end_amdhsa_kernel")
        return a.finish()


HEADER = open("cdna_kernels/" + NAME + ".s.ref").read().split("; Override launch geometry")[0]

if __name__ == "__main__":
    out = sys.argv[1] if len(sys.argv) > 1 else "k.s"
    kw = eval(sys.argv[2]) if len(sys.argv) > 2 else {}
    open(out, "w").write(HEADER + Gen(**kw).build())
```

```python
import struct
import sys
from asmlib import Asm

NAME = "sequential_preLN__gqa_block_cached__mixer_token_mlp__decode"

EPOCH = 0
QX = 0x10000
E1 = 0x60000
FIN = 0xC0000
TAB = 0xE0000
STAMP = 0x100000
WS_SPAN = 0x200000
L_Q = 0
L_TAG = 512
L_CNT = 520
L_FLAG = 524
L_CNT2 = 528
L_DONE = 532
L_NEXT = 536
L_TP = 576
L_TY = 928
L_P = 1024
L_PS = 5120
L_R = 8192
L_ST = 26624
L_TAB = 0x7200
L_TABN = L_TAB + 0x10000
LDS_BYTES = L_TABN + 4608 + 256

TAB_LO = 0x3900
TAB_N = 2304
TPW = 21
LOG2E = 1.4426950408889634
BETA = 0.7978845608028654
C0 = -2.0 * BETA * LOG2E
C1 = C0 * 0.044715
FINAL_WG = (4, 133)
RING = 64
W1, B1, W2 = 36, 56, 76
SPIN = 0x100000


def f2u(x):
    return struct.unpack("<I", struct.pack("<f", x))[0]


def hx(x):
    return hex(f2u(x))


class Gen:
    def __init__(self, Tn=66, To=50, stamps=False, dbg=False, ring=6, pre_throttle=8, first_tiles=1,
                 q_sleep0=32, q_sleep=4, tail_sleep=1, prio=0, hprio=3, code_pf=True, mimic=True, mlp_pol="",
                 b0=1, no_mlp=False, no_wo=False, no_table=False, h0_mlp_late=True, tprio=1, trace=False, look=2, mlp_delay=6, gather_sleep0=64, gather_sleep=32, dynprio=True, early=True, h0_mlp_early=False, done_sleep=1, h0_first=True, half_thr=4, pollcnt=False, no_qwait=False, kvpol=' nt', kpol=None, vpol=None, dry=True, odiag=False, probe=None):
        self.__dict__.update(locals())
        self.a = Asm()

    def stamp(self, i):
        if self.stamps or self.dbg or self.probe:
            self.a(f"s_memrealtime s[{70 + 2 * i}:{71 + 2 * i}]")

    def stamp_flush(self, first, last, slot_base):
        if not self.stamps:
            return
        a = self.a
        a("s_waitcnt lgkmcnt(0)")
        a("s_mov_b64 exec, 1")
        a("s_lshl_b32 s48, s2, 8")
        a(f"s_add_u32 s48, s48, {STAMP}")
        a("v_mov_b32 v60, 0")
        for i in range(first, last + 1):
            a(f"v_mov_b32 v62, s{70 + 2 * i}")
            a(f"v_mov_b32 v63, s{71 + 2 * i}")
            a(f"buffer_store_dwordx2 v[62:63], v60, s[12:15], s48 offen offset:{(slot_base + i) * 8}")
            a("s_nop 1")
        a("s_mov_b64 exec, -1")

    def trace_pt(self):
        if not self.trace:
            return
        a = self.a
        a("s_memrealtime s[96:97]")
        a("s_waitcnt lgkmcnt(0)")
        a("s_mov_b32 m0, s59")
        a("v_writelane_b32 v58, s96, m0")
        a("s_add_u32 s59, s59, 1")

    def rb(self, dst, src):
        self.a(f"v_cvt_pk_bf16_f32 {dst}, 0, {src}")

    def srd(self, base, ptr, size):
        a = self.a
        a(f"s_mov_b32 s{base}, s{ptr}")
        a(f"s_mov_b32 s{base + 1}, s{ptr + 1}")
        a(f"s_mov_b32 s{base + 2}, {size}")
        a(f"s_mov_b32 s{base + 3}, 0x20000")

    def dpp(self, op, v, ctrl):
        self.a(f"{op}_dpp {v}, {v}, {v} {ctrl} row_mask:0xf bank_mask:0xf")

    def red8(self, op, v):
        for c in ("quad_perm:[1,0,3,2]", "quad_perm:[2,3,0,1]", "row_half_mirror"):
            self.dpp(op, v, c)

    def red16(self, op, v):
        self.red8(op, v)
        self.dpp(op, v, "row_ror:8")

    def xrow(self, n, op, v, t):
        self.a(f"v_mov_b32 {t}, {v}")
        self.a(f"v_permlane{n}_swap_b32 {v}, {t}")
        self.a(f"{op} {v}, {v}, {t}")

    def pack3(self, d, s):
        for i in range(3):
            self.a(f"v_perm_b32 v{d + i}, v{s + i}, v{s + 3}, s{64 + i}")

    def unpack4th(self, g):
        self.a(f"v_perm_b32 v{g + 3}, v{g + 2}, v{g + 1}, s67")
        self.a(f"v_perm_b32 v{g + 3}, v{g + 3}, v{g}, s68")

    def masks(self, base, t0, t1):
        a = self.a
        a(f"v_and_b32 v{t0}, 1, v0")
        a(f"v_cmp_eq_u32 vcc, 1, v{t0}")
        a(f"v_mov_b32 v{t0}, 0xffff")
        a(f"v_mov_b32 v{t1}, 0xffff0000")
        a(f"v_cndmask_b32 v{t0}, v{t0}, v{t1}, vcc")
        a(f"v_bfe_u32 v{t1}, v0, 1, 2")
        for q in range(4):
            a(f"v_cmp_eq_u32 vcc, {q}, v{t1}")
            a(f"v_cndmask_b32 v{base + q}, 0, v{t0}, vcc")

    def tags_bad(self, regs, acc, t):
        a = self.a
        a(f"v_xor_b32 v{acc}, s47, v{regs[0]}")
        for r in regs[1:]:
            a(f"v_xor_b32 v{t}, s47, v{r}")
            a(f"v_or_b32 v{acc}, v{acc}, v{t}")
        a(f"v_cmp_ne_u32 vcc, 0, v{acc}")

    def retry(self, loop, sleep, cnt="s50"):
        a = self.a
        if sleep:
            a(f"s_sleep {sleep}")
        a(f"s_add_u32 {cnt}, {cnt}, 1")
        a(f"s_cmp_lt_u32 {cnt}, {SPIN}")
        a(f"s_cbranch_scc1 {loop}")

    def wait_flag(self, name, vz, vt, off=L_FLAG, sleep=1):
        a = self.a
        a("s_mov_b32 s50, 0")
        a(f"L_{name}:")
        a(f"ds_read_b32 v{vt}, v{vz} offset:{off}")
        a("s_waitcnt lgkmcnt(0)")
        a(f"v_readfirstlane_b32 s48, v{vt}")
        a("s_cmp_lg_u32 s48, 0")
        a(f"s_cbranch_scc1 L_{name}_ok")
        if sleep:
            a(f"s_sleep {sleep}")
        a("s_add_u32 s50, s50, 1")
        a(f"s_cmp_lt_u32 s50, {SPIN * 16}")
        a(f"s_cbranch_scc1 L_{name}")
        a(f"L_{name}_ok:")

    def gelu_pk(self, items, c0, c1, one, acc, sa):
        a = self.a
        P = lambda r: f"v[{r}:{r + 1}]"

        def rnd(sel):
            if self.mimic:
                for it in items:
                    r = it[sel]
                    self.rb(f"v{r}", f"v{r}")
                    self.rb(f"v{r + 1}", f"v{r + 1}")

        for (w1, b1, w2, u, t) in items:
            a(f"v_pk_mul_f32 {P(u)}, {sa}, {P(w1)} op_sel_hi:[0,1]")
        rnd(3)
        for (w1, b1, w2, u, t) in items:
            a(f"v_pk_add_f32 {P(u)}, {P(u)}, {P(b1)}")
        rnd(3)
        for (w1, b1, w2, u, t) in items:
            a(f"v_pk_mul_f32 {P(t)}, {P(u)}, {P(u)}")
        for (w1, b1, w2, u, t) in items:
            a(f"v_pk_fma_f32 {P(t)}, {P(t)}, {P(c1)}, {P(c0)}")
        for (w1, b1, w2, u, t) in items:
            a(f"v_pk_mul_f32 {P(t)}, {P(t)}, {P(u)}")
        for (w1, b1, w2, u, t) in items:
            a(f"v_exp_f32 v{t}, v{t}")
            a(f"v_exp_f32 v{t + 1}, v{t + 1}")
        for (w1, b1, w2, u, t) in items:
            a(f"v_pk_add_f32 {P(t)}, {P(t)}, {P(one)}")
        for (w1, b1, w2, u, t) in items:
            a(f"v_rcp_f32 v{t}, v{t}")
            a(f"v_rcp_f32 v{t + 1}, v{t + 1}")
        for (w1, b1, w2, u, t) in items:
            a(f"v_pk_mul_f32 {P(t)}, {P(t)}, {P(u)}")
        rnd(4)
        for (w1, b1, w2, u, t) in items:
            a(f"v_pk_fma_f32 {P(acc)}, {P(t)}, {P(w2)}, {P(acc)}")

    def gelu_consts(self, base):
        for i in range(2):
            self.a(f"v_mov_b32 v{base + i}, {hx(C0)}")
            self.a(f"v_mov_b32 v{base + 2 + i}, {hx(C1)}")
            self.a(f"v_mov_b32 v{base + 4 + i}, 1.0")

    def issue_mlp(self, ndw, rawofs):
        a = self.a
        if self.no_mlp:
            return
        a("v_lshlrev_b32 v1, 4, v0")
        a("v_lshlrev_b32 v2, 3, v0")
        for sp, D in ((28, W1), (30, B1), (32, W2)):
            dst = D + rawofs
            self.srd(4, sp, 9216)
            o = 0
            while o < ndw:
                n = 4 if ndw - o >= 4 else 2
                a(f"buffer_load_dwordx{n} v[{dst + o}:{dst + o + n - 1}], v{1 if n == 4 else 2}, s[4:7], s48 offen offset:{256 * o}{self.mlp_pol}")
                o += n

    def unpack_mlp(self, ndw, rawofs):
        a = self.a
        for D in (W1, B1, W2):
            for i in range(ndw):
                src = D + rawofs + i
                for j in range(i + 1, ndw):
                    assert D + rawofs + j not in (D + 2 * i, D + 2 * i + 1)
                assert D + 2 * i != src
                a(f"v_lshlrev_b32 v{D + 2 * i}, 16, v{src}")
                a(f"v_and_b32 v{D + 2 * i + 1}, 0xffff0000, v{src}")

    def load_wo(self, label, after):
        a = self.a
        a("s_cmp_eq_u32 s45, 0")
        a(f"s_cbranch_scc1 {label}")
        if self.no_wo:
            a(f"s_branch {after}")
            a(f"{label}:")
            return
        self.srd(8, 24, 4718592)
        a("s_lshl_b32 s48, s43, 1")
        a("s_add_u32 s48, s48, s42")
        a(f"s_mul_i32 s48, s48, {128 * 1152}")
        a(f"s_mul_i32 s49, s56, {32 * 1152}")
        a("s_add_u32 s48, s48, s49")
        a("v_lshrrev_b32 v1, 4, v0")
        a(f"v_mul_u32_u24 v1, {4 * 1152}, v1")
        a("v_and_b32 v2, 15, v0")
        a("v_lshl_add_u32 v1, v2, 4, v1")
        for u in range(2):
            for e in range(4):
                a(f"s_add_u32 s49, s48, {(16 * u + e) * 1152}")
                for cg in range(4):
                    r = 96 + 4 * (5 * (4 * u + e) + cg)
                    a(f"buffer_load_dwordx4 v[{r}:{r + 3}], v1, s[8:11], s49 offen offset:{256 * cg} nt")
        a("s_mov_b32 exec_lo, 0x00ff00ff")
        a("s_mov_b32 exec_hi, 0x00ff00ff")
        for u in range(2):
            for e in range(4):
                a(f"s_add_u32 s49, s48, {(16 * u + e) * 1152}")
                r = 96 + 4 * (5 * (4 * u + e) + 4)
                a(f"buffer_load_dwordx4 v[{r}:{r + 3}], v1, s[8:11], s49 offen offset:1024 nt")
        a("s_mov_b64 exec, -1")
        a(f"s_branch {after}")
        a(f"{label}:")

    def prologue(self):
        a = self.a
        Tn, To = self.Tn, self.To
        self.stamp(0)
        if self.stamps:
            for i in range(72, 86, 2):
                a(f"s_mov_b64 s[{i}:{i + 1}], 0")
        a("s_cmp_ge_u32 s2, 256")
        a("s_cbranch_scc1 L_end")
        a("s_load_dwordx16 s[16:31], s[0:1], 0")
        a("s_load_dwordx8 s[32:39], s[0:1], 64")
        a("s_load_dwordx2 s[40:41], s[0:1], 96")
        a("v_lshrrev_b32 v1, 6, v0")
        a("v_and_b32 v0, 63, v0")
        a("s_lshr_b32 s42, s2, 7")
        a("v_readfirstlane_b32 s3, v1")
        a("s_bfe_u32 s43, s2, 0x40003")
        a("s_and_b32 s44, s2, 7")
        a("s_mov_b32 s7, 0x20000")
        a("s_mov_b32 s11, 0x20000")
        a("s_cmp_eq_u32 s3, 4")
        a("s_cbranch_scc1 L_h0_start")
        a("s_and_b32 s48, s43, 7")
        a("s_cmp_eq_u32 s44, s48")
        a(f"s_cselect_b32 s49, {To}, {Tn}")
        a("s_cmp_gt_u32 s44, s48")
        a(f"s_cselect_b32 s50, {Tn - To}, 0")
        a(f"s_mul_i32 s51, s44, {Tn}")
        a("s_sub_u32 s51, s51, s50")
        a("s_lshr_b32 s52, s2, 3")
        a("s_lshl_b32 s52, s52, 9")
        a("s_add_u32 s52, s52, s51")
        a("s_add_u32 s6, s52, s49")
        a("s_lshl_b32 s6, s6, 12")
        a("s_mov_b32 s10, s6")
        a("s_lshl_b32 s51, s52, 12")
        a("s_add_u32 s52, s52, s3")
        a("s_lshl_b32 s52, s52, 12")
        a("v_and_b32 v1, 3, v0")
        a("v_lshlrev_b32 v1, 10, v1")
        a("v_bfe_u32 v2, v0, 2, 2")
        a("v_lshl_add_u32 v1, v2, 8, v1")
        a("v_lshrrev_b32 v2, 4, v0")
        a("v_lshl_add_u32 v1, v2, 4, v1")
        a("v_lshlrev_b32 v2, 4, v0")
        a("s_cmp_gt_u32 s3, 4")
        a("s_waitcnt lgkmcnt(0)")
        a("s_mov_b32 s4, s18")
        a("s_mov_b32 s5, s19")
        a("s_mov_b32 s8, s20")
        a("s_mov_b32 s9, s21")
        a("s_cbranch_scc1 L_join")
        if not self.h0_first:
            self.issue_tile(0, grab=False)
        a("s_branch L_join")
        a("L_h0_start:")
        a(f"s_setprio {self.hprio}")
        a("v_mov_b32 v1, 0")
        a("v_mov_b32 v2, 0")
        a("v_lshrrev_b32 v8, 5, v0")
        a("v_mul_u32_u24 v8, 1152, v8")
        a("v_and_b32 v10, 31, v0")
        a("v_mul_u32_u24 v10, 36, v10")
        a("v_add_u32 v8, v8, v10")
        a("v_lshrrev_b32 v9, 4, v0")
        a(f"v_mul_u32_u24 v9, {18 * 8192}, v9")
        a("v_and_b32 v10, 15, v0")
        a("v_lshl_add_u32 v9, v10, 4, v9")
        a("s_lshl_b32 s48, s43, 1")
        a("s_add_u32 s48, s48, s42")
        a("s_lshl_b32 s48, s48, 8")
        a(f"s_mul_i32 s49, s44, {72 * 8192}")
        a("s_add_u32 s48, s48, s49")
        a("s_mov_b32 s6, 2304")
        a("s_mov_b32 s10, 4718592")
        a("s_waitcnt lgkmcnt(0)")
        a("s_mov_b32 s4, s16")
        a("s_mov_b32 s5, s17")
        a("s_mov_b32 s8, s22")
        a("s_mov_b32 s9, s23")
        a(f"s_load_dword s55, s[40:41], {EPOCH}")
        a("buffer_load_dwordx4 v[12:15], v8, s[4:7], 0 offen")
        a("buffer_load_dwordx4 v[16:19], v8, s[4:7], 0 offen offset:16")
        a("buffer_load_dword v20, v8, s[4:7], 0 offen offset:32")
        for t in range(18):
            a(f"buffer_load_dwordx4 v[{96 + 4 * t}:{99 + 4 * t}], v9, s[8:11], s48 offen nt")
            a("s_add_u32 s48, s48, 8192")
        a("L_join:")
        for i in range(4):
            a(f"v_mov_b32 v{4 + i}, 0")
        a(f"ds_write_b128 v4, v[4:7] offset:{L_CNT - 8}")
        a("s_nop 1")
        a("v_mov_b32 v6, 4")
        a(f"ds_write_b96 v4, v[4:6] offset:{L_CNT2}")
        a("s_and_b32 s48, s43, 7")
        a("s_cmp_eq_u32 s44, s48")
        a("s_cselect_b32 s45, 1, 0")
        a(f"s_mov_b32 s14, {WS_SPAN}")
        a("s_mov_b32 s15, 0x20000")
        self.consts()
        a("s_waitcnt lgkmcnt(0)")
        a("s_mov_b32 s12, s40")
        a("s_mov_b32 s13, s41")
        a("s_barrier")
        a("s_cmp_lt_u32 s3, 4")
        a("s_cbranch_scc1 L_stream")

    def consts(self):
        a = self.a
        a("s_mov_b32 s46, 0")
        a(f"s_cmp_eq_u32 s2, {FINAL_WG[0]}")
        a("s_cselect_b32 s46, 1, s46")
        a(f"s_cmp_eq_u32 s2, {FINAL_WG[1]}")
        a("s_cselect_b32 s46, 2, s46")
        a("s_mov_b32 s60, 0x00ff00ff")
        a("s_mov_b32 s61, 0xff00ff00")
        a(f"s_mov_b32 s62, {hx(LOG2E)}")
        a(f"s_mov_b32 s63, {hx(128 ** -0.5)}")
        a("s_mov_b32 s64, 0x07060501")
        a("s_mov_b32 s65, 0x07060502")
        a("s_mov_b32 s66, 0x07060503")
        a("s_mov_b32 s67, 0x04000c0c")
        a("s_mov_b32 s68, 0x0706000c")
        a("s_mov_b32 s98, 0")

    def helper_start(self):
        a = self.a
        a(f"s_setprio {self.hprio}")
        a("s_sub_u32 s56, s3, 4")
        a("s_load_dword s69, s[34:35], 0")
        a("s_cmp_eq_u32 s56, 0")
        a("s_cbranch_scc1 L_qphase")
        if self.code_pf:
            a("s_getpc_b64 s[50:51]")
            a("L_pc:")
            a(f"s_sub_u32 s50, s50, L_pc-{NAME}_kernel")
            a("s_subb_u32 s51, s51, 0")
            a("s_sub_u32 s48, s56, 1")
            a("s_lshl_b32 s48, s48, 13")
            a("v_lshlrev_b32 v1, 7, v0")
            a("v_add_u32 v1, s48, v1")
            a(f"v_min_u32 v1, L_code_end-{NAME}_kernel-4, v1")
            a("global_load_dword v8, v1, s[50:51]")
        self.load_wo("L_nowo_a", "L_pre_b2")
        for _ in range(self.mlp_delay):
            a("s_sleep 16")
        a("s_mul_i32 s48, s56, 2560")
        a("s_sub_u32 s48, s48, 1024")
        self.issue_mlp(10, 10)
        a("s_waitcnt vmcnt(0)")
        self.unpack_mlp(10, 10)
        a("s_branch L_table")

    def qphase(self):
        a = self.a
        rb = self.rb
        X = 168
        a("L_qphase:")
        nm = 0
        self.masks(4, 22, 23)
        a("s_waitcnt vmcnt(18)")
        self.stamp(7)
        for k in range(9):
            a(f"v_lshlrev_b32 v{X + 2 * k}, 16, v{12 + k}")
            a(f"v_and_b32 v{X + 1 + 2 * k}, 0xffff0000, v{12 + k}")
        a("s_add_u32 s55, s55, 1")
        a("s_mul_i32 s47, s55, 0x9E3779B1")
        a(f"v_add_f32 v22, v{X}, v{X + 1}")
        a(f"v_add_f32 v23, v{X + 2}, v{X + 3}")
        for k in range(4, 18, 2):
            a(f"v_add_f32 v22, v22, v{X + k}")
            a(f"v_add_f32 v23, v23, v{X + k + 1}")
        a("v_add_f32 v22, v22, v23")
        self.red16("v_add_f32", "v22")
        self.xrow(16, "v_add_f32", "v22", "v23")
        a(f"v_mul_f32 v22, {hx(1.0 / 576)}, v22")
        a("v_mov_b32 v24, 0")
        a("v_mov_b32 v25, 0")
        for k in range(0, 18, 2):
            a(f"v_sub_f32 v23, v{X + k}, v22")
            a(f"v_sub_f32 v26, v{X + k + 1}, v22")
            a("v_fmac_f32 v24, v23, v23")
            a("v_fmac_f32 v25, v26, v26")
        a("v_add_f32 v24, v24, v25")
        self.red16("v_add_f32", "v24")
        self.xrow(16, "v_add_f32", "v24", "v23")
        a(f"v_mul_f32 v24, {hx(1.0 / 576)}, v24")
        rb("v22", "v22")
        rb("v24", "v24")
        a(f"v_add_f32 v24, {hx(1e-5)}, v24")
        rb("v24", "v24")
        a("v_sqrt_f32 v24, v24")
        for k in range(18):
            a(f"v_sub_f32 v{X + k}, v{X + k}, v22")
        rb("v24", "v24")
        a("v_rcp_f32 v24, v24")
        for k in range(18):
            rb(f"v{X + k}", f"v{X + k}")
        for k in range(18):
            a(f"v_mul_f32 v{X + k}, v{X + k}, v24")
        for k in range(9):
            a(f"v_cvt_pk_bf16_f32 v{12 + k}, v{X + 2 * k}, v{X + 1 + 2 * k}")
        a("v_bfe_u32 v1, v0, 3, 1")
        a("v_lshlrev_b32 v1, 5, v1")
        a("v_lshrrev_b32 v2, 4, v0")
        a("v_add_u32 v1, v1, v2")
        a("s_lshl_b32 s48, s44, 2")
        a("v_add_lshl_u32 v1, v1, s48, 2")
        for k in range(9):
            a(f"ds_bpermute_b32 v{24 + k}, v1, v{12 + k}")
        a("s_mov_b32 s48, 0x01000100")
        a("s_mov_b32 s49, 0x03020302")
        a("s_waitcnt lgkmcnt(0)")
        for t in range(18):
            ab = 36 + 4 * (t & 1)
            a(f"v_perm_b32 v33, v{24 + t // 2}, v{24 + t // 2}, s{48 + (t & 1)}")
            for q in range(4):
                a(f"v_and_b32 v{ab + q}, v33, v{4 + q}")
            a(f"s_waitcnt vmcnt({17 - t})")
            c = "0" if t == 0 else "v[8:11]"
            a(f"v_mfma_f32_16x16x32_bf16 v[8:11], v[{ab}:{ab + 3}], v[{96 + 4 * t}:{99 + 4 * t}], {c}")
        a("s_lshl_b32 s48, s43, 14")
        a("s_lshl_b32 s49, s42, 12")
        a("s_add_u32 s49, s49, s48")
        a("s_lshl_b32 s50, s44, 9")
        a("s_add_u32 s49, s49, s50")
        a(f"s_add_u32 s49, s49, {QX}")
        a("v_lshrrev_b32 v1, 5, v0")
        a("v_lshlrev_b32 v1, 13, v1")
        a("v_and_b32 v2, 31, v0")
        a("v_lshl_add_u32 v1, v2, 4, v1")
        a("v_mov_b32 v15, s47")
        self.pack3(12, 8)
        a("buffer_store_dwordx4 v[12:15], v1, s[12:15], s49 offen sc1")
        self.stamp(1)
        if self.h0_mlp_early:
            a("s_cmp_lg_u32 s45, 0")
            a("s_cbranch_scc1 L_h0_nomlp")
            a("s_mov_b32 s48, 0")
            self.issue_mlp(6, 14)
            a("L_h0_nomlp:")
        a("s_lshl_b32 s48, s43, 14")
        a("s_lshl_b32 s49, s42, 13")
        a("s_add_u32 s48, s48, s49")
        a(f"s_add_u32 s48, s48, {QX}")
        a("s_add_u32 s49, s48, 4096")
        a("v_lshlrev_b32 v1, 4, v0")
        a("s_mov_b32 s50, 0")
        if self.q_sleep0:
            a(f"s_sleep {self.q_sleep0}")
        a("L_qpoll:")
        for u in range(8):
            so = "s48" if u < 4 else "s49"
            a(f"buffer_load_dwordx4 v[{8 + 4 * u}:{11 + 4 * u}], v1, s[12:15], {so} offen offset:{1024 * (u & 3)} sc1")
        a("s_waitcnt vmcnt(0)")
        self.tags_bad([11 + 4 * u for u in range(8)], 2, 3)
        a("s_cbranch_vccz L_qgot")
        self.retry("L_qpoll", self.q_sleep)
        a("L_qgot:")
        if self.pollcnt:
            a("s_mul_i32 s84, s50, 100")
            a("s_add_u32 s84, s84, s70")
            a("s_addc_u32 s85, s71, 0")
        for u in range(8):
            self.unpack4th(8 + 4 * u)
        for hh in range(2):
            for e in range(4):
                g = 8 + 16 * hh + e
                a(f"v_add_f32 v{g}, v{g}, v{g + 4}")
                a(f"v_add_f32 v{g + 8}, v{g + 8}, v{g + 12}")
            for e in range(4):
                g = 8 + 16 * hh + e
                a(f"v_add_f32 v{g}, v{g}, v{g + 8}")
        for e in range(4):
            a(f"v_permlane32_swap_b32 v{8 + e}, v{24 + e}")
        for e in range(4):
            a(f"v_add_f32 v{8 + e}, v{8 + e}, v{24 + e}")
        a("v_cvt_pk_bf16_f32 v12, v8, v9")
        a("v_cvt_pk_bf16_f32 v13, v10, v11")
        a("v_lshrrev_b32 v1, 5, v0")
        a("v_lshlrev_b32 v1, 8, v1")
        a("v_and_b32 v2, 15, v0")
        a("v_lshl_add_u32 v1, v2, 4, v1")
        a("v_bfe_u32 v2, v0, 4, 1")
        a("v_lshl_add_u32 v1, v2, 3, v1")
        a(f"ds_write_b64 v1, v[12:13] offset:{L_Q}")
        a("v_mov_b32 v14, s47")
        a("v_mov_b32 v15, s55")
        a("v_mov_b32 v2, 0")
        a("v_mov_b32 v3, 1")
        a(f"ds_write_b64 v2, v[14:15] offset:{L_TAG}")
        a("s_waitcnt lgkmcnt(0)")
        a(f"ds_write_b32 v2, v3 offset:{L_FLAG}")
        self.stamp(2)
        self.load_wo("L_nowo_b", "L_pre_b2")
        if not self.h0_mlp_early:
            a("s_mov_b32 s48, 0")
            self.issue_mlp(6, 14)
            a("s_waitcnt vmcnt(0)")
        self.unpack_mlp(6, 14)

    def table(self):
        a = self.a
        rb = self.rb
        a("L_table:")
        a(f"s_setprio {self.tprio}")
        a("s_lshr_b32 s48, s2, 3")
        a("s_mul_i32 s48, s48, 7")
        a("s_add_u32 s48, s48, s44")
        a("s_and_b32 s49, s43, 7")
        a("s_cmp_gt_u32 s44, s49")
        a("s_cselect_b32 s49, 1, 0")
        a("s_sub_u32 s54, s48, s49")
        a(f"s_mul_i32 s53, s54, {TPW}")
        self.gelu_consts(28)
        a(f"s_mul_i32 s48, s56, {4 * TPW}")
        a("v_mov_b32 v3, s48")
        a(f"s_mov_b32 s57, {1 if self.no_table else TPW}")
        a("L_tloop:")
        a(f"s_cmp_ge_u32 s53, {TAB_N}")
        a(f"s_cselect_b32 s48, {0x8000 - TAB_N}, 0")
        a("s_add_u32 s48, s48, s53")
        a(f"s_add_u32 s48, s48, {TAB_LO}")
        a("s_lshl_b32 s58, s48, 16")
        a("v_mov_b32 v26, 0")
        a("v_mov_b32 v27, 0")
        for (p0, n) in ((0, 3), (3, 3), (6, 4)):
            if p0 == 6:
                a("s_cmp_eq_u32 s56, 0")
                a("s_cbranch_scc1 L_tskip")
            items = [(W1 + 2 * (p0 + i), B1 + 2 * (p0 + i), W2 + 2 * (p0 + i), 8 + 4 * i, 10 + 4 * i) for i in range(n)]
            self.gelu_pk(items, 28, 30, 32, 26, "s[58:59]")
        a("L_tskip:")
        a("v_add_f32 v26, v26, v27")
        self.red16("v_add_f32", "v26")
        self.xrow(16, "v_add_f32", "v26", "v27")
        self.xrow(32, "v_add_f32", "v26", "v27")
        a(f"ds_write_b32 v3, v26 offset:{L_TP}")
        a("v_add_u32 v3, 4, v3")
        a("s_add_u32 s53, s53, 1")
        a("s_sub_u32 s57, s57, 1")
        a("s_cmp_lg_u32 s57, 0")
        a("s_cbranch_scc1 L_tloop")
        a("v_mov_b32 v2, 0")
        self.wait_flag("tflag", 2, 8)
        a(f"ds_read_b64 v[10:11], v2 offset:{L_TAG}")
        a("v_mov_b32 v8, 1")
        a("s_mov_b64 exec, 1")
        a(f"ds_add_rtn_u32 v9, v2, v8 offset:{L_CNT}")
        a("s_mov_b64 exec, -1")
        a("s_waitcnt lgkmcnt(0)")
        a("v_readfirstlane_b32 s47, v10")
        a("v_readfirstlane_b32 s55, v11")
        a("v_readfirstlane_b32 s48, v9")
        a("s_cmp_eq_u32 s48, 3")
        a("s_cbranch_scc0 L_tdone")
        a("v_lshlrev_b32 v3, 2, v0")
        a(f"s_mov_b64 exec, {hex((1 << TPW) - 1)}")
        for w in range(4):
            a(f"ds_read_b32 v{8 + w}, v3 offset:{L_TP + 4 * TPW * w}")
        a("v_lshlrev_b32 v3, 1, v0")
        a("s_lshl_b32 s48, s69, 16")
        a("s_waitcnt lgkmcnt(0)")
        a("v_add_f32 v8, v8, v9")
        a("v_add_f32 v10, v10, v11")
        a("v_add_f32 v8, v8, v10")
        rb("v8", "v8")
        a("v_add_f32 v8, s48, v8")
        a("v_cvt_pk_bf16_f32 v8, v8, 0")
        a(f"ds_write_b16 v3, v8 offset:{L_TY}")
        a("s_mov_b64 exec, 15")
        a("v_mul_u32_u24 v3, 12, v0")
        a("s_waitcnt lgkmcnt(0)")
        for i in range(3):
            a(f"ds_read_b32 v{8 + i}, v3 offset:{L_TY + 4 * i}")
        a("v_mov_b32 v11, s47")
        a("v_lshlrev_b32 v3, 4, v0")
        a("s_lshl_b32 s48, s54, 6")
        a(f"s_add_u32 s48, s48, {TAB}")
        a("s_waitcnt lgkmcnt(0)")
        a("buffer_store_dwordx4 v[8:11], v3, s[12:15], s48 offen sc1")
        a("s_mov_b64 exec, -1")
        a("L_tdone:")
        self.stamp(3)
        a("s_cmp_eq_u32 s46, 0")
        a("s_cbranch_scc1 L_nogather")
        a("s_mul_i32 s48, s56, 3584")
        a(f"s_add_u32 s48, s48, {TAB}")
        a("v_lshlrev_b32 v1, 4, v0")
        a("s_mov_b32 s50, 0")
        a(f"s_sleep {self.gather_sleep0}")
        a("L_gpoll:")
        a("v_mov_b32 v23, s47")
        for u in range(3):
            a(f"buffer_load_dwordx4 v[{8 + 4 * u}:{11 + 4 * u}], v1, s[12:15], s48 offen offset:{1024 * u} sc1")
        a("s_mov_b32 exec_hi, 0")
        a("buffer_load_dwordx4 v[20:23], v1, s[12:15], s48 offen offset:3072 sc1")
        a("s_mov_b32 exec_hi, -1")
        a("s_waitcnt vmcnt(0)")
        self.tags_bad([11, 15, 19, 23], 2, 3)
        a("s_cbranch_vccz L_ggot")
        self.retry("L_gpoll", self.gather_sleep)
        a("L_ggot:")
        a("s_mul_i32 s48, s56, 224")
        a(f"s_movk_i32 s49, {TAB_N}")
        for u in range(4):
            if u == 3:
                a("s_mov_b32 exec_hi, 0")
            a(f"v_add_u32 v1, s48, v0")
            if u:
                a(f"v_add_u32 v1, {64 * u}, v1")
            a("v_lshrrev_b32 v2, 2, v1")
            a(f"v_mul_u32_u24 v2, {TPW}, v2")
            a("v_and_b32 v1, 3, v1")
            a("v_mad_u32_u24 v2, v1, 6, v2")
            a("v_cmp_eq_u32 s[50:51], 3, v1")
            for i in range(6):
                a(f"v_add_u32 v3, {i}, v2")
                a("v_cmp_le_u32 vcc, s49, v3")
                a(f"v_mov_b32 v24, {(L_TABN - L_TAB) // 2 - TAB_N}")
                a("v_cndmask_b32 v24, 0, v24, vcc")
                a("v_add_lshl_u32 v3, v3, v24, 1")
                if i == 3:
                    a("s_andn2_b64 exec, exec, s[50:51]")
                op = "ds_write_b16_d16_hi" if i & 1 else "ds_write_b16"
                a(f"{op} v3, v{8 + 4 * u + i // 2} offset:{L_TAB}")
            a("s_mov_b64 exec, -1")
        a("s_waitcnt lgkmcnt(0)")
        self.stamp(4)
        a("s_branch L_final")
        a("L_nogather:")
        if self.dry:
            a("s_cmp_eq_u32 s56, 1")
            a("s_cbranch_scc0 L_nowarm")
            a("s_mov_b32 s98, 1")
            a("s_branch L_pub")
            a("L_nowarm:")
        if self.stamps:
            a("s_cmp_eq_u32 s56, 0")
            a("s_cbranch_scc0 L_end")
            a("s_setprio 0")
            a("v_mov_b32 v2, 0")
            self.wait_flag("stdone", 2, 3, L_DONE, 8)
            self.stamp_flush(0, 7, 8)
        a("s_endpgm")

    def grab(self):
        a = self.a
        a("s_mov_b64 exec, 1")
        a(f"ds_add_rtn_u32 v59, v60, v61 offset:{L_NEXT}")
        a("s_mov_b64 exec, -1")

    def issue_tile(self, slot, grab=True, mid=None):
        a = self.a
        kb = RING + 32 * slot
        if grab:
            a("s_waitcnt lgkmcnt(0)")
            a("v_readfirstlane_b32 s48, v59")
            self.grab()
            a("s_lshl_b32 s52, s48, 12")
            a("s_add_u32 s52, s52, s51")
            a("s_cmp_lt_u32 s48, s49")
            a("s_addc_u32 s54, s54, 0")
        for c in range(4):
            a(f"buffer_load_dwordx4 v[{kb + 4 * c}:{kb + 4 * c + 3}], v1, s[4:7], s52 offen offset:{64 * c}{self.kvpol if self.kpol is None else self.kpol}")
        if mid is not None:
            a(f"s_waitcnt vmcnt({mid})")
        for c in range(4):
            a(f"buffer_load_dwordx4 v[{kb + 16 + 4 * c}:{kb + 19 + 4 * c}], v2, s[8:11], s52 offen offset:{1024 * c}{self.kvpol if self.vpol is None else self.vpol}")

    def stream(self):
        a = self.a
        rb = self.rb
        ring = self.ring
        L = self.look
        a("L_stream:")
        if self.h0_first:
            self.issue_tile(0, grab=False)
        if self.trace:
            a("s_mov_b32 s59, 0")
            a("v_mov_b32 v58, 0")
        self.trace_pt()
        a("v_mov_b32 v60, 0")
        a("v_mov_b32 v61, 1")
        self.grab()
        a("s_mov_b32 s54, 1")
        if self.half_thr is not None:
            a(f"s_waitcnt vmcnt({self.half_thr})")
        self.issue_tile(1, mid=self.half_thr)
        self.trace_pt()
        self.masks(4, 18, 19)
        for r in range(4):
            a(f"v_mov_b32 v{8 + r}, 0")
        a("v_mov_b32 v16, 0xff7fffff")
        a("v_mov_b32 v17, 0")
        a("v_bfe_u32 v3, v0, 3, 1")
        a("v_lshlrev_b32 v3, 8, v3")
        a("v_lshrrev_b32 v18, 4, v0")
        a("v_lshl_add_u32 v3, v18, 4, v3")
        a("v_mov_b32 v18, 0")
        if self.no_qwait:
            a(f"s_mov_b32 s53, 0")
            a("s_branch L_qskip")
        for t in range(2, ring):
            a(f"s_waitcnt vmcnt({self.pre_throttle if self.half_thr is None else self.half_thr})")
            if self.early and t > L:
                a(f"ds_read_b32 v19, v18 offset:{L_FLAG}")
                a(f"s_mov_b32 s53, {t - L}")
                a("s_waitcnt lgkmcnt(0)")
                a("v_readfirstlane_b32 s48, v19")
                a("s_cmp_lg_u32 s48, 0")
                a("s_cbranch_scc1 L_qwait_ok")
            self.issue_tile(t, mid=self.half_thr)
            self.trace_pt()
        a(f"s_mov_b32 s53, {ring - L}")
        self.wait_flag("qwait", 18, 19)
        a("L_qskip:")
        self.stamp(1)
        for c in range(4):
            a(f"ds_read_b128 v[{40 + 4 * c}:{43 + 4 * c}], v3 offset:{L_Q + 64 * c}")
        a(f"ds_read_b64 v[56:57], v18 offset:{L_TAG}")
        a("s_mov_b64 vcc, s[60:61]")
        a("s_waitcnt lgkmcnt(0)")
        a("v_readfirstlane_b32 s47, v56")
        a("v_readfirstlane_b32 s55, v57")
        self.stamp(2)
        a("L_loop:")
        for slot in range(ring):
            kb = RING + 32 * slot
            vb = kb + 16
            if slot < ring - L:
                a("s_cmp_lg_u32 s53, 0")
                a(f"s_cbranch_scc1 L_noissue{slot}")
            self.issue_tile((slot + L) % ring)
            if slot < ring - L:
                a("s_add_u32 s53, s53, 1")
                a(f"L_noissue{slot}:")
                a("s_sub_u32 s53, s53, 1")
            a(f"s_waitcnt vmcnt({8 * L + 4})")
            if self.dynprio:
                a("s_setprio 3")
            a(f"v_mfma_f32_16x16x32_bf16 v[12:15], v[{kb}:{kb + 3}], v[40:43], 0")
            for c in range(1, 4):
                a(f"v_mfma_f32_16x16x32_bf16 v[12:15], v[{kb + 4 * c}:{kb + 4 * c + 3}], v[{40 + 4 * c}:{43 + 4 * c}], v[12:15]")
            a("s_sub_u32 s54, s54, 1")
            for r in range(4):
                rb(f"v{12 + r}", f"v{12 + r}")
            for r in range(4):
                a(f"v_mul_f32 v{12 + r}, s63, v{12 + r}")
            for r in range(4):
                rb(f"v{12 + r}", f"v{12 + r}")
            a("v_max3_f32 v18, v12, v13, v14")
            a("v_max3_f32 v18, v18, v15, v16")
            self.xrow(32, "v_max_f32", "v18", "v19")
            self.xrow(16, "v_max_f32", "v18", "v19")
            a("v_sub_f32 v20, v16, v18")
            a("v_mul_f32 v21, s62, v18")
            a("v_mul_f32 v20, s62, v20")
            a("v_mov_b32 v16, v18")
            a("v_exp_f32 v20, v20")
            for r in range(4):
                a(f"v_fma_f32 v{12 + r}, v{12 + r}, s62, -v21")
            for r in range(4):
                a(f"v_exp_f32 v{12 + r}, v{12 + r}")
            a("v_cndmask_b32_dpp v22, v20, v20, vcc row_ror:8 row_mask:0xf bank_mask:0xf")
            a("v_add_f32 v18, v12, v13")
            a("v_add_f32 v19, v14, v15")
            for r in range(4):
                a(f"v_cvt_pk_bf16_f32 v{12 + r}, v{12 + r}, v{12 + r}")
            a("v_add_f32 v18, v18, v19")
            for r in range(4):
                a(f"v_mul_f32 v{8 + r}, v22, v{8 + r}")
            a("v_fma_f32 v17, v17, v20, v18")
            for r in range(4):
                for q in range(4):
                    a(f"v_and_b32 v{24 + 4 * r + q}, v{12 + r}, v{4 + q}")
            a(f"s_waitcnt vmcnt({8 * L})")
            for r in range(4):
                a(f"v_mfma_f32_16x16x32_bf16 v[8:11], v[{24 + 4 * r}:{27 + 4 * r}], v[{vb + 4 * r}:{vb + 4 * r + 3}], v[8:11]")
            self.trace_pt()
            a("s_cmp_eq_u32 s54, 0")
            a("s_cbranch_scc1 L_sdone")
            if self.dynprio:
                a("s_setprio 0")
        a("s_branch L_loop")
        a("L_sdone:")
        self.stamp(3)
        if self.no_qwait:
            a("v_mov_b32 v18, 0")
            a(f"ds_read_b64 v[56:57], v18 offset:{L_TAG}")
            a("s_waitcnt lgkmcnt(0)")
            a("v_readfirstlane_b32 s47, v56")
            a("v_readfirstlane_b32 s55, v57")
        self.xrow(32, "v_add_f32", "v17", "v19")
        self.xrow(16, "v_add_f32", "v17", "v19")
        a("v_cndmask_b32_dpp v18, v16, v16, vcc row_ror:8 row_mask:0xf bank_mask:0xf")
        a("v_cndmask_b32_dpp v19, v17, v17, vcc row_ror:8 row_mask:0xf bank_mask:0xf")
        a("s_lshl_b32 s48, s3, 10")
        a("v_lshl_add_u32 v20, v0, 4, s48")
        a("s_lshl_b32 s48, s3, 9")
        a("v_lshl_add_u32 v21, v0, 3, s48")
        a(f"ds_write_b128 v20, v[8:11] offset:{L_P}")
        a(f"ds_write_b64 v21, v[18:19] offset:{L_PS}")
        a("v_mov_b32 v22, 0")
        a("v_mov_b32 v23, 1")
        a("s_mov_b64 exec, 1")
        a(f"ds_add_rtn_u32 v24, v22, v23 offset:{L_CNT2}")
        a("s_mov_b64 exec, -1")
        a("s_waitcnt lgkmcnt(0)")
        a("v_readfirstlane_b32 s48, v24")
        a("s_cmp_eq_u32 s48, 3")
        a("s_cbranch_scc0 L_after_pub")
        a("L_pub:")
        a("v_lshlrev_b32 v20, 4, v0")
        a("v_lshlrev_b32 v21, 3, v0")
        for w in range(4):
            a(f"ds_read_b64 v[{24 + 2 * w}:{25 + 2 * w}], v21 offset:{L_PS + 512 * w}")
        for w in range(4):
            a(f"ds_read_b128 v[{32 + 4 * w}:{35 + 4 * w}], v20 offset:{L_P + 1024 * w}")
        a("s_lshl_b32 s48, s43, 5")
        a("s_lshl_b32 s49, s42, 3")
        a("s_add_u32 s48, s48, s49")
        a("s_add_u32 s48, s48, s44")
        a("s_mul_i32 s48, s48, 640")
        a(f"s_add_u32 s48, s48, {E1}")
        a("v_lshrrev_b32 v22, 5, v0")
        a(f"v_mul_u32_u24 v22, {16 * 640}, v22")
        a("v_and_b32 v23, 15, v0")
        a("v_lshl_add_u32 v23, v23, 5, v22")
        a("v_bfe_u32 v12, v0, 4, 1")
        a("v_lshl_add_u32 v23, v12, 4, v23")
        a("s_waitcnt lgkmcnt(4)")
        a("v_max_f32 v12, v24, v26")
        a("v_max3_f32 v12, v12, v28, v30")
        for w in range(4):
            a(f"v_sub_f32 v{24 + 2 * w}, v{24 + 2 * w}, v12")
        for w in range(4):
            a(f"v_mul_f32 v{24 + 2 * w}, s62, v{24 + 2 * w}")
        for w in range(4):
            a(f"v_exp_f32 v{24 + 2 * w}, v{24 + 2 * w}")
        a("v_mul_f32 v13, v24, v25")
        a("s_waitcnt lgkmcnt(0)")
        for r in range(4):
            a(f"v_mul_f32 v{8 + r}, v24, v{32 + r}")
        for w in range(1, 4):
            for r in range(4):
                a(f"v_fmac_f32 v{8 + r}, v{24 + 2 * w}, v{32 + 4 * w + r}")
        for w in range(1, 4):
            a(f"v_fmac_f32 v13, v{24 + 2 * w}, v{25 + 2 * w}")
        self.pack3(16, 8)
        a("v_mov_b32 v19, s47")
        a("v_mov_b32 v14, 0")
        a("v_mov_b32 v15, s47")
        a("v_mov_b32 v20, 0")
        a("v_mov_b32 v21, 1")
        if self.dry:
            a("s_cmp_lg_u32 s98, 0")
            a("s_cbranch_scc1 L_pub_dry_ret")
        a("buffer_store_dwordx4 v[16:19], v23, s[12:15], s48 offen sc1")
        a("s_mov_b32 exec_lo, 1")
        a("s_mov_b32 exec_hi, 1")
        a("buffer_store_dwordx4 v[12:15], v22, s[12:15], s48 offen offset:512 sc1")
        a("s_mov_b64 exec, -1")
        a(f"ds_write_b32 v20, v21 offset:{L_DONE}")
        self.stamp(4)
        self.stamp_flush(0, 4, 0)
        a("L_after_pub:")
        if self.trace:
            a("v_mov_b32 v60, 0")
            self.wait_flag("trdone", 60, 61, L_DONE, 4)
            a("s_lshl_b32 s48, s2, 2")
            a("s_add_u32 s48, s48, s3")
            a("s_lshl_b32 s48, s48, 8")
            a(f"s_add_u32 s48, s48, {STAMP + 0x20000}")
            a("v_lshlrev_b32 v57, 2, v0")
            a("buffer_store_dword v58, v57, s[12:15], s48 offen")
        a("s_cmp_lg_u32 s46, 0")
        a("s_cbranch_scc1 L_final")
        a("s_endpgm")
        if self.dry:
            a("L_pub_dry_ret:")
            a("s_cmp_eq_u32 s98, 2")
            a("s_cbranch_scc1 L_owner_setup")
            a("s_endpgm")

    def owner(self):
        a = self.a
        a("L_pre_b2:")
        a("v_mov_b32 v3, 0")
        self.wait_flag("oflag", 3, 8)
        a(f"ds_read_b64 v[10:11], v3 offset:{L_TAG}")
        a("s_waitcnt vmcnt(0) lgkmcnt(0)")
        a("v_readfirstlane_b32 s47, v10")
        a("s_setprio 0")
        if self.dry:
            a("s_cmp_eq_u32 s56, 1")
            a("s_cbranch_scc0 L_owner_setup")
            a("s_mov_b32 s98, 2")
            a("s_branch L_pub")
        a("L_owner_setup:")
        self.masks(4, 8, 9)
        a("s_lshl_b32 s57, s43, 1")
        a("s_add_u32 s57, s57, s42")
        a(f"s_mul_i32 s49, s57, {16 * 640}")
        a(f"s_add_u32 s49, s49, {E1}")
        a("v_and_b32 v1, 15, v0")
        a("v_mul_u32_u24 v1, 640, v1")
        a("v_lshrrev_b32 v2, 4, v0")
        a("s_lshl_b32 s50, s56, 3")
        a("v_add_lshl_u32 v2, v2, s50, 4")
        a("v_add_u32 v2, v1, v2")
        a("s_mul_i32 s50, s56, 4608")
        a("v_lshrrev_b32 v36, 5, v0")
        a("v_mul_u32_u24 v36, 2304, v36")
        a("v_and_b32 v37, 15, v0")
        a("v_lshl_add_u32 v36, v37, 5, v36")
        a("v_bfe_u32 v37, v0, 4, 1")
        a("v_lshl_add_u32 v36, v37, 4, v36")
        a("v_add_u32 v36, s50, v36")
        a("s_mul_i32 s50, s56, 48")
        a("v_add_u32 v37, s50, v0")
        a("v_mul_u32_u24 v37, 24, v37")
        a("v_lshlrev_b32 v38, 4, v0")
        a("s_lshr_b32 s50, s56, 1")
        a("s_lshl_b32 s53, s50, 3")
        a("s_lshl_b32 s50, s50, 5")
        a("s_add_u32 s50, s50, s57")
        a("s_mul_i32 s50, s50, 1536")
        a("s_and_b32 s51, s56, 1")
        a("s_mul_i32 s51, s51, 768")
        a("s_add_u32 s51, s50, s51")
        a(f"s_add_u32 s51, s51, {FIN}")
        a("v_mov_b32 v35, s47")
        a("v_mov_b32 v3, 0")
        if self.dry:
            a("s_mov_b32 s98, 1")
            a("s_branch L_ogot")
            a("L_owner_real:")
            a("s_mov_b64 exec, -1")
            a("s_mov_b32 s98, 0")
        self.stamp(4)
        self.wait_flag("odone", 3, 8, L_DONE, self.done_sleep)
        a("s_setprio 3")
        a("s_mov_b32 s50, 0")
        a("L_opoll:")
        a("buffer_load_dwordx4 v[8:11], v1, s[12:15], s49 offen offset:512 sc1")
        a("buffer_load_dwordx4 v[12:15], v2, s[12:15], s49 offen sc1")
        a("buffer_load_dwordx4 v[16:19], v2, s[12:15], s49 offen offset:64 sc1")
        a("s_waitcnt vmcnt(0)")
        self.tags_bad([11, 15, 19], 20, 21)
        a("s_cbranch_vccz L_ogot")
        self.retry("L_opoll", self.tail_sleep)
        a("L_ogot:")
        self.stamp(5)
        if self.odiag:
            a("s_memtime s[72:73]")
        a("v_max_f32_dpp v10, v8, v8 quad_perm:[1,0,3,2] row_mask:0xf bank_mask:0xf")
        a("v_perm_b32 v15, v14, v13, s67")
        a("v_perm_b32 v19, v18, v17, s67")
        self.dpp("v_max_f32", "v10", "quad_perm:[2,3,0,1]")
        a("v_perm_b32 v15, v15, v12, s68")
        a("v_perm_b32 v19, v19, v16, s68")
        self.dpp("v_max_f32", "v10", "row_half_mirror")
        a("v_sub_f32 v8, v8, v10")
        a("v_mul_f32 v8, s62, v8")
        a("v_exp_f32 v8, v8")
        for e in range(8):
            a(f"v_mul_f32 v{12 + e}, v8, v{12 + e}")
        a("v_mul_f32 v9, v8, v9")
        for c in ("quad_perm:[1,0,3,2]", "quad_perm:[2,3,0,1]"):
            for e in range(8):
                self.dpp("v_add_f32", f"v{12 + e}", c)
            self.dpp("v_add_f32", "v9", c)

        def mf(t, cg):
            r = 96 + 4 * (5 * t + cg)
            d = 72 + 4 * cg
            ab = 40 + 4 * t
            c = "0" if t == 0 else f"v[{d}:{d + 3}]"
            a(f"v_mfma_f32_16x16x32_bf16 v[{d}:{d + 3}], v[{ab}:{ab + 3}], v[{r}:{r + 3}], {c}")

        def prep(t):
            self.dpp("v_add_f32", f"v{12 + t}", "row_half_mirror")
            a(f"v_cvt_pk_bf16_f32 v{12 + t}, v{12 + t}, v{12 + t}")
            for q in range(4):
                a(f"v_and_b32 v{40 + 4 * t + q}, v{12 + t}, v{4 + q}")

        def wr(cg):
            if cg == 4:
                a("s_mov_b32 exec_lo, 0x00ff00ff")
                a("s_mov_b32 exec_hi, 0x00ff00ff")
            a(f"ds_write_b128 v36, v[{72 + 4 * cg}:{75 + 4 * cg}] offset:{L_R + 512 * cg}")

        if self.odiag:
            a("s_memtime s[74:75]")
        prep(0)
        for t in range(8):
            if t < 7:
                prep(t + 1)
            else:
                self.dpp("v_add_f32", "v9", "row_half_mirror")
            mf(t, 0)
            mf(t, 1)
        for t in range(8):
            mf(t, 2)
            if t == 1:
                a("v_rcp_f32 v9, v9")
        wr(0)
        wr(1)
        for t in range(8):
            mf(t, 3)
        a("v_readlane_b32 s52, v9, s53")
        wr(2)
        for t in range(8):
            mf(t, 4)
        wr(3)
        wr(4)
        if self.odiag:
            a("s_memtime s[76:77]")
        a("s_mov_b32 exec_lo, -1")
        a("s_mov_b32 exec_hi, 0xffff")
        a("s_waitcnt lgkmcnt(0)")
        if self.dry:
            a("s_cmp_lg_u32 s98, 0")
            a("s_cbranch_scc1 L_o_nobar")
        a("s_barrier")
        a("L_o_nobar:")
        if self.odiag:
            a("s_memtime s[78:79]")
        for w in range(4):
            for i in range(3):
                a(f"ds_read_b64 v[{8 + 6 * w + 2 * i}:{9 + 6 * w + 2 * i}], v37 offset:{L_R + 4608 * w + 8 * i}")
        a("s_waitcnt lgkmcnt(6)")
        for i in range(6):
            a(f"v_add_f32 v{8 + i}, v{8 + i}, v{14 + i}")
        a("s_waitcnt lgkmcnt(3)")
        for i in range(6):
            a(f"v_add_f32 v{8 + i}, v{8 + i}, v{20 + i}")
        a("s_waitcnt lgkmcnt(0)")
        for i in range(6):
            a(f"v_add_f32 v{8 + i}, v{8 + i}, v{26 + i}")
        for i in range(6):
            a(f"v_mul_f32 v{8 + i}, s52, v{8 + i}")
        for i in range(3):
            a(f"v_cvt_pk_bf16_f32 v{32 + i}, v{8 + 2 * i}, v{9 + 2 * i}")
        if self.dry:
            a("s_cmp_lg_u32 s98, 0")
            a("s_cbranch_scc1 L_owner_real")
        a("buffer_store_dwordx4 v[32:35], v38, s[12:15], s51 offen sc1")
        if self.odiag:
            a("s_memtime s[84:85]")
        a("s_mov_b64 exec, -1")
        self.stamp(6)
        if self.stamps:
            a("s_cmp_eq_u32 s56, 0")
            a("s_cbranch_scc0 L_end")
            self.stamp_flush(0, 7, 8)
        a("s_endpgm")

    def final(self):
        a = self.a
        rb = self.rb
        a("L_final:")
        a("s_cmp_ge_u32 s3, 6")
        a("s_cbranch_scc1 L_end")
        a("s_sub_u32 s46, s46, 1")
        self.masks(4, 8, 9)
        a("v_and_b32 v1, 15, v0")
        a("v_cmp_gt_u32 vcc, 6, v1")
        a("v_mov_b32 v2, 0x3f803f80")
        a("v_cndmask_b32 v2, 0, v2, vcc")
        for q in range(4):
            a(f"v_and_b32 v{4 + q}, v2, v{4 + q}")
        a("s_mul_i32 s52, s46, 1152")
        a("s_mul_i32 s48, s3, 192")
        a("s_add_u32 s52, s52, s48")
        a("v_mul_u32_u24 v3, 12, v1")
        a("v_lshrrev_b32 v2, 4, v0")
        a("v_lshl_add_u32 v3, v2, 3, v3")
        self.srd(4, 16, 2304)
        self.srd(8, 36, 2304)
        a("buffer_load_dwordx2 v[56:57], v3, s[4:7], s52 offen")
        a("v_mul_u32_u24 v2, 1536, v2")
        a("v_lshl_add_u32 v34, v1, 4, v2")
        a("s_lshl_b32 s48, s3, 3")
        a("v_mov_b32 v1, s48")
        a("v_mov_b32 v2, 0")
        a(f"s_mul_i32 s57, s46, {32 * 1536}")
        a("s_lshl_b32 s49, s3, 8")
        a("s_add_u32 s57, s57, s49")
        a(f"s_add_u32 s57, s57, {FIN}")
        a("s_mov_b32 s88, -1")
        a("s_mov_b32 s89, 0")
        a("s_mov_b64 s[58:59], 0xffff")
        a(f"s_movk_i32 s56, {2 * TAB_N}")
        a("s_waitcnt vmcnt(0)")
        a("v_lshlrev_b32 v40, 16, v56")
        a("v_and_b32 v41, 0xffff0000, v56")
        a("v_lshlrev_b32 v42, 16, v57")
        a("v_and_b32 v43, 0xffff0000, v57")
        a("v_cndmask_b32 v40, 0, v40, s[88:89]")
        a("v_cndmask_b32 v41, 0, v41, s[88:89]")
        a("v_cndmask_b32 v42, 0, v42, s[58:59]")
        a("v_cndmask_b32 v43, 0, v43, s[58:59]")
        if self.dry:
            a("s_cmp_lt_u32 s3, 4")
            a("s_cbranch_scc1 L_final_real")
            a("s_mov_b32 s98, 1")
            a("s_branch L_fgot")
            a("L_final_real:")
            a("s_mov_b64 exec, -1")
            a("s_mov_b32 s98, 0")
        for r in range(4):
            a(f"v_mov_b32 v{8 + r}, 0")
            a(f"v_mov_b32 v{48 + r}, 0")
        self.wait_flag("fdone", 2, 13, L_DONE, self.done_sleep)
        a("s_setprio 3")
        a("s_mov_b32 s53, 0xff")
        a("s_mov_b32 s50, 0")
        a("L_fpoll:")
        for pg in range(8):
            a(f"s_bitcmp1_b32 s53, {pg}")
            a(f"s_cbranch_scc0 L_fskip{pg}")
            a(f"s_add_u32 s49, s57, {pg * 4 * 1536}")
            a(f"buffer_load_dwordx4 v[{64 + 4 * pg}:{67 + 4 * pg}], v34, s[12:15], s49 offen sc1")
            a(f"L_fskip{pg}:")
        a("s_waitcnt vmcnt(0)")
        for pg in range(8):
            a(f"s_bitcmp1_b32 s53, {pg}")
            a(f"s_cbranch_scc0 L_fnext{pg}")
            a(f"v_cmp_ne_u32 vcc, s47, v{67 + 4 * pg}")
            a(f"v_mov_b32 v{67 + 4 * pg}, 0")
            a(f"s_cbranch_vccnz L_fnext{pg}")
            a(f"v_mfma_f32_16x16x32_bf16 v[8:11], v[4:7], v[{64 + 4 * pg}:{67 + 4 * pg}], v[8:11]")
            a(f"s_bitset0_b32 s53, {pg}")
            a("s_cmp_eq_u32 s53, 0")
            a("s_cbranch_scc1 L_fgot")
            a(f"L_fnext{pg}:")
        self.retry("L_fpoll", self.tail_sleep)
        a("L_fgot:")
        self.stamp(5)
        for r in range(4):
            rb(f"v{8 + r}", f"v{8 + r}")
        for r in range(4):
            a(f"v_add_f32 v{12 + r}, v{40 + r}, v{8 + r}")
        for r in range(4):
            rb(f"v{12 + r}", f"v{12 + r}")
        a("v_add_f32 v16, v12, v13")
        a("v_mul_f32 v17, v12, v12")
        a("v_add_f32 v18, v14, v15")
        a("v_mul_f32 v19, v14, v14")
        a("v_fmac_f32 v17, v13, v13")
        a("v_fmac_f32 v19, v15, v15")
        a("v_add_f32 v16, v16, v18")
        a("v_add_f32 v17, v17, v19")
        for c in ("quad_perm:[1,0,3,2]", "quad_perm:[2,3,0,1]", "row_half_mirror", "row_ror:8"):
            self.dpp("v_add_f32", "v16", c)
            self.dpp("v_add_f32", "v17", c)
        a("v_add_f32_dpp v16, v16, v16 row_bcast:15 row_mask:0xa bank_mask:0xf")
        a("v_add_f32_dpp v17, v17, v17 row_bcast:15 row_mask:0xa bank_mask:0xf")
        a("s_mov_b64 exec, 0x10000")
        a(f"ds_write_b64 v1, v[16:17] offset:{L_ST}")
        a("s_mov_b64 exec, -1")
        a("s_waitcnt lgkmcnt(0)")
        if self.dry:
            a("s_cmp_lg_u32 s98, 0")
            a("s_cbranch_scc1 L_f_nobar")
        a("s_barrier")
        a("L_f_nobar:")
        for i in range(3):
            d = (24, 28, 20)[i]
            a(f"ds_read_b128 v[{d}:{d + 3}], v2 offset:{L_ST + 16 * i}")
        a("s_waitcnt lgkmcnt(1)")
        a("v_pk_add_f32 v[24:25], v[24:25], v[26:27]")
        a("v_pk_add_f32 v[28:29], v[28:29], v[30:31]")
        a("s_waitcnt lgkmcnt(0)")
        a("v_pk_add_f32 v[20:21], v[20:21], v[22:23]")
        a("v_pk_add_f32 v[24:25], v[24:25], v[28:29]")
        a("v_pk_add_f32 v[16:17], v[24:25], v[20:21]")
        a(f"v_mul_f32 v16, {hx(1.0 / 576)}, v16")
        a(f"v_mul_f32 v17, {hx(1.0 / 576)}, v17")
        a("v_fma_f32 v17, -v16, v16, v17")
        rb("v18", "v16")
        a("v_max_f32 v17, 0, v17")
        a("v_sub_f32 v16, v16, v18")
        rb("v19", "v17")
        for r in range(2):
            a(f"v_sub_f32 v{20 + r}, v{12 + r}, v18")
        a(f"v_add_f32 v19, {hx(1e-5)}, v19")
        for r in range(2, 4):
            a(f"v_sub_f32 v{20 + r}, v{12 + r}, v18")
        rb("v19", "v19")
        a("v_sqrt_f32 v19, v19")
        for r in range(2):
            rb(f"v{20 + r}", f"v{20 + r}")
        rb("v19", "v19")
        a("v_rcp_f32 v19, v19")
        for r in range(2, 4):
            rb(f"v{20 + r}", f"v{20 + r}")
        a("v_mul_f32 v17, v17, v19")
        a("v_mul_f32 v16, v16, v19")
        a("v_mul_f32 v17, v17, v19")
        rb("v16", "v16")
        rb("v17", "v17")
        a("v_mul_f32 v20, v20, v19")
        a(f"v_add_f32 v17, {hx(1e-5)}, v17")
        a("v_mul_f32 v21, v21, v19")
        rb("v17", "v17")
        a("v_sqrt_f32 v17, v17")
        a("v_mul_f32 v22, v22, v19")
        a("v_mul_f32 v23, v23, v19")
        rb("v17", "v17")
        a("v_rcp_f32 v17, v17")
        for r in range(4):
            rb(f"v{20 + r}", f"v{20 + r}")
        for r in range(4):
            a(f"v_sub_f32 v{20 + r}, v{20 + r}, v16")
        for r in range(4):
            rb(f"v{20 + r}", f"v{20 + r}")
        for r in range(4):
            a(f"v_mul_f32 v{20 + r}, v{20 + r}, v17")
        for r in range(4):
            rb(f"v{20 + r}", f"v{20 + r}")
        for r in range(4):
            a(f"v_lshrrev_b32 v{44 + r}, 15, v{20 + r}")
        for r in range(4):
            a(f"ds_read_u16_d16_hi v{48 + r}, v{44 + r} offset:{L_TAB - 2 * TAB_LO}")
        for r in range(4):
            a(f"v_bfe_u32 v{24 + r}, v{20 + r}, 15, 16")
        for r in range(4):
            a(f"v_subrev_u32 v{24 + r}, {2 * TAB_LO}, v{24 + r}")
        for r in range(4):
            a(f"v_cmp_le_u32 s[{90 + 2 * r}:{91 + 2 * r}], s56, v{24 + r}")
        a("s_and_b64 s[90:91], s[90:91], s[88:89]")
        a("s_and_b64 s[92:93], s[92:93], s[88:89]")
        a("s_and_b64 s[94:95], s[94:95], s[58:59]")
        a("s_and_b64 s[96:97], s[96:97], s[58:59]")
        a("s_or_b64 s[86:87], s[90:91], s[92:93]")
        a("s_or_b64 s[86:87], s[86:87], s[94:95]")
        a("s_or_b64 s[86:87], s[86:87], s[96:97]")
        a("s_cbranch_scc1 L_slow")
        a("L_slow_ret:")
        a("s_waitcnt lgkmcnt(0)")
        for r in range(4):
            a(f"v_add_f32 v{12 + r}, v{12 + r}, v{48 + r}")
        a("v_cvt_pk_bf16_f32 v16, v12, v13")
        a("v_cvt_pk_bf16_f32 v17, v14, v15")
        a("s_mov_b64 exec, 0xffff")
        if self.dry:
            a("s_cmp_lg_u32 s98, 0")
            a("s_cbranch_scc1 L_final_real")
        if self.probe:
            i, d = self.probe
            a("s_cmp_eq_u32 s3, 0")
            a("s_cbranch_scc0 L_probe_done")
            a("L_probe:")
            a("s_memrealtime s[86:87]")
            a("s_waitcnt lgkmcnt(0)")
            a(f"s_sub_u32 s86, s86, s{70 + 2 * i}")
            a(f"s_cmp_lt_u32 s86, {d}")
            a("s_cbranch_scc1 L_probe")
            a("L_probe_done:")
        a("buffer_store_dwordx2 v[16:17], v3, s[8:11], s52 offen")
        a("s_mov_b64 exec, 0xffff0000")
        a("buffer_store_dword v16, v3, s[8:11], s52 offen")
        a("s_mov_b64 exec, -1")
        self.stamp(6)
        a("s_or_b32 s48, s46, s3")
        a("s_cmp_eq_u32 s48, 0")
        a("s_cbranch_scc0 L_noepoch")
        a("v_mov_b32 v16, s55")
        a("s_mov_b64 exec, 1")
        a(f"buffer_store_dword v16, v2, s[12:15], 0 offen offset:{EPOCH} sc1")
        a("s_mov_b64 exec, -1")
        a("L_noepoch:")
        if self.dbg:
            a("s_cmp_eq_u32 s3, 0")
            a("s_cbranch_scc0 L_end")
            a("s_waitcnt lgkmcnt(0)")
            self.srd(4, 38, 256)
            a("s_lshl_b32 s48, s46, 5")
            a("s_mov_b64 exec, 1")
            for i in range(1, 7):
                a(f"s_sub_u32 s49, s{70 + 2 * i}, s70")
                a("v_mov_b32 v16, s49")
                a(f"buffer_store_dword v16, v2, s[4:7], s48 offen offset:{4 * i}")
            a("s_mov_b64 exec, -1")
        if self.stamps:
            a("s_cmp_eq_u32 s3, 1")
            a("s_cbranch_scc0 L_end")
            self.stamp_flush(5, 6, 16)
        a("L_end:")
        a("s_endpgm")

    def slow(self):
        a = self.a
        rb = self.rb
        a("L_slow:")
        if self.dry:
            a("s_cmp_lg_u32 s98, 0")
            a("s_cbranch_scc1 L_slow_ret")
        self.gelu_consts(28)
        a("s_load_dword s69, s[34:35], 0")
        a("v_lshlrev_b32 v1, 4, v0")
        a("s_waitcnt lgkmcnt(0)")
        a("s_lshl_b32 s69, s69, 16")
        for r in range(4):
            m = f"s[{90 + 2 * r}:{91 + 2 * r}]"
            a(f"L_slow_r{r}:")
            a(f"s_cmp_eq_u64 {m}, 0")
            a(f"s_cbranch_scc1 L_slow_n{r}")
            a(f"s_ff1_i32_b64 s54, {m}")
            a(f"s_bitset0_b64 {m}, s54")
            a(f"v_readlane_b32 s58, v{20 + r}, s54")
            a("v_mov_b32 v26, 0")
            a("v_mov_b32 v27, 0")
            a("s_mov_b32 s53, 0")
            a(f"L_slow_l{r}:")
            for sp, dst in ((28, 64), (30, 68), (32, 72)):
                self.srd(4, sp, 9216)
                a(f"buffer_load_dwordx4 v[{dst}:{dst + 3}], v1, s[4:7], s53 offen")
            a("s_waitcnt vmcnt(0)")
            for (src, out) in ((64, 80), (68, 88), (72, 96)):
                for k in range(4):
                    a(f"v_lshlrev_b32 v{out + 2 * k}, 16, v{src + k}")
                    a(f"v_and_b32 v{out + 2 * k + 1}, 0xffff0000, v{src + k}")
            items = [(80 + 2 * i, 88 + 2 * i, 96 + 2 * i, 104 + 4 * i, 106 + 4 * i) for i in range(4)]
            self.gelu_pk(items, 28, 30, 32, 26, "s[58:59]")
            a("s_add_u32 s53, s53, 1024")
            a("s_cmp_lt_u32 s53, 9216")
            a(f"s_cbranch_scc1 L_slow_l{r}")
            a("v_add_f32 v26, v26, v27")
            self.red16("v_add_f32", "v26")
            self.xrow(16, "v_add_f32", "v26", "v27")
            self.xrow(32, "v_add_f32", "v26", "v27")
            rb("v26", "v26")
            a("v_add_f32 v26, s69, v26")
            rb("v26", "v26")
            a("s_lshl_b64 exec, 1, s54")
            a(f"v_mov_b32 v{48 + r}, v26")
            a("s_mov_b64 exec, -1")
            a(f"s_branch L_slow_r{r}")
            a(f"L_slow_n{r}:")
        a("s_branch L_slow_ret")
        a("L_code_end:")

    def build(self):
        a = self.a
        a.raw(f"; @launch grid=(256,1,1) block=(512,1,1) lds={LDS_BYTES}")
        a.raw('.amdgcn_target "amdgcn-amd-amdhsa--gfx950"')
        a.raw(".text")
        a.raw(f".globl {NAME}_kernel")
        a.raw(".p2align 8")
        a.raw(f".type {NAME}_kernel,@function")
        a.raw(f"{NAME}_kernel:")
        self.prologue()
        self.helper_start()
        self.stream()
        self.qphase()
        self.table()
        self.owner()
        self.final()
        self.slow()
        a.raw('.section .rodata,"a"')
        a.raw(".p2align 6")
        a.raw(f".amdhsa_kernel {NAME}_kernel")
        a.raw("  .amdhsa_next_free_vgpr 256")
        a.raw("  .amdhsa_next_free_sgpr 102")
        a.raw("  .amdhsa_accum_offset 256")
        a.raw("  .amdhsa_group_segment_fixed_size 0")
        a.raw("  .amdhsa_kernarg_size 104")
        a.raw("  .amdhsa_user_sgpr_count 2")
        a.raw("  .amdhsa_user_sgpr_kernarg_segment_ptr 1")
        a.raw("  .amdhsa_system_sgpr_workgroup_id_x 1")
        a.raw("  .amdhsa_float_denorm_mode_32 3")
        a.raw(".end_amdhsa_kernel")
        return a.finish()


HEADER = open("cdna_kernels/" + NAME + ".s.ref").read().split("; Override launch geometry")[0]

if __name__ == "__main__":
    out = sys.argv[1] if len(sys.argv) > 1 else "k.s"
    kw = eval(sys.argv[2]) if len(sys.argv) > 2 else {}
    open(out, "w").write(HEADER + Gen(**kw).build())
```

```python
import struct
import sys
from asmlib import Asm

NAME = "sequential_preLN__gqa_block_cached__mixer_token_mlp__decode"

EPOCH = 0
QX = 0x10000
E1 = 0x60000
FIN = 0xC0000
TAB = 0xE0000
STAMP = 0x100000
WS_SPAN = 0x200000
L_Q = 0
L_TAG = 512
L_CNT = 520
L_FLAG = 524
L_CNT2 = 528
L_DONE = 532
L_NEXT = 536
L_TP = 576
L_TY = 928
L_P = 1024
L_PS = 5120
L_ST = 7168
L_KR = 7424
L_U = L_KR + 4 * 8 * 4096
L_R = L_U
L_TAB = L_U
LDS_BYTES = L_U + 18432

TAB_LO = 0x3900
TAB_N = 2304
TPW = 21
LOG2E = 1.4426950408889634
BETA = 0.7978845608028654
C0 = -2.0 * BETA * LOG2E
C1 = C0 * 0.044715
FINAL_WG = (4, 133)
KREG = 64
VRING = 128
W1, B1, W2 = 36, 56, 76
SPIN = 0x100000


def f2u(x):
    return struct.unpack("<I", struct.pack("<f", x))[0]


def hx(x):
    return hex(f2u(x))


class Gen:
    def __init__(self, Tn=66, To=50, stamps=False, dbg=False, ring=8, pre_throttle=8, first_tiles=1,
                 q_sleep0=32, q_sleep=4, tail_sleep=0, prio=0, hprio=3, code_pf=True, mimic=True, mlp_pol="",
                 b0=1, no_mlp=False, no_wo=False, no_table=False, h0_mlp_late=True, tprio=1, trace=False, look=2, mlp_delay=6, gather_sleep0=64, gather_sleep=32, dynprio=True, early=True, h0_mlp_early=False, done_sleep=1, h0_first=True, half_thr=4, pollcnt=False, no_qwait=False, kvpol=' nt', kpol=None, vpol=None, dry=True, odiag=False, probe=None, qprobe=None):
        self.__dict__.update(locals())
        self.a = Asm()

    def stamp(self, i):
        if self.stamps or self.dbg or self.probe or self.qprobe:
            self.a(f"s_memrealtime s[{70 + 2 * i}:{71 + 2 * i}]")

    def stamp_flush(self, first, last, slot_base):
        if not self.stamps:
            return
        a = self.a
        a("s_waitcnt lgkmcnt(0)")
        a("s_mov_b64 exec, 1")
        a("s_lshl_b32 s48, s2, 8")
        a(f"s_add_u32 s48, s48, {STAMP}")
        a("v_mov_b32 v60, 0")
        for i in range(first, last + 1):
            a(f"v_mov_b32 v62, s{70 + 2 * i}")
            a(f"v_mov_b32 v63, s{71 + 2 * i}")
            a(f"buffer_store_dwordx2 v[62:63], v60, s[12:15], s48 offen offset:{(slot_base + i) * 8}")
            a("s_nop 1")
        a("s_mov_b64 exec, -1")

    def trace_pt(self):
        if not self.trace:
            return
        a = self.a
        a("s_memrealtime s[96:97]")
        a("s_waitcnt lgkmcnt(0)")
        a("s_mov_b32 m0, s59")
        a("v_writelane_b32 v58, s96, m0")
        a("s_add_u32 s59, s59, 1")

    def rb(self, dst, src):
        self.a(f"v_cvt_pk_bf16_f32 {dst}, 0, {src}")

    def srd(self, base, ptr, size):
        a = self.a
        a(f"s_mov_b32 s{base}, s{ptr}")
        a(f"s_mov_b32 s{base + 1}, s{ptr + 1}")
        a(f"s_mov_b32 s{base + 2}, {size}")
        a(f"s_mov_b32 s{base + 3}, 0x20000")

    def dpp(self, op, v, ctrl):
        self.a(f"{op}_dpp {v}, {v}, {v} {ctrl} row_mask:0xf bank_mask:0xf")

    def red8(self, op, v):
        for c in ("quad_perm:[1,0,3,2]", "quad_perm:[2,3,0,1]", "row_half_mirror"):
            self.dpp(op, v, c)

    def red16(self, op, v):
        self.red8(op, v)
        self.dpp(op, v, "row_ror:8")

    def xrow(self, n, op, v, t):
        self.a(f"v_mov_b32 {t}, {v}")
        self.a(f"v_permlane{n}_swap_b32 {v}, {t}")
        self.a(f"{op} {v}, {v}, {t}")

    def pack3(self, d, s):
        for i in range(3):
            self.a(f"v_perm_b32 v{d + i}, v{s + i}, v{s + 3}, s{64 + i}")

    def unpack4th(self, g):
        self.a(f"v_perm_b32 v{g + 3}, v{g + 2}, v{g + 1}, s67")
        self.a(f"v_perm_b32 v{g + 3}, v{g + 3}, v{g}, s68")

    def masks(self, base, t0, t1):
        a = self.a
        a(f"v_and_b32 v{t0}, 1, v0")
        a(f"v_cmp_eq_u32 vcc, 1, v{t0}")
        a(f"v_mov_b32 v{t0}, 0xffff")
        a(f"v_mov_b32 v{t1}, 0xffff0000")
        a(f"v_cndmask_b32 v{t0}, v{t0}, v{t1}, vcc")
        a(f"v_bfe_u32 v{t1}, v0, 1, 2")
        for q in range(4):
            a(f"v_cmp_eq_u32 vcc, {q}, v{t1}")
            a(f"v_cndmask_b32 v{base + q}, 0, v{t0}, vcc")

    def tags_bad(self, regs, acc, t):
        a = self.a
        a(f"v_xor_b32 v{acc}, s47, v{regs[0]}")
        for r in regs[1:]:
            a(f"v_xor_b32 v{t}, s47, v{r}")
            a(f"v_or_b32 v{acc}, v{acc}, v{t}")
        a(f"v_cmp_ne_u32 vcc, 0, v{acc}")

    def retry(self, loop, sleep, cnt="s50"):
        a = self.a
        if sleep:
            a(f"s_sleep {sleep}")
        a(f"s_add_u32 {cnt}, {cnt}, 1")
        a(f"s_cmp_lt_u32 {cnt}, {SPIN}")
        a(f"s_cbranch_scc1 {loop}")

    def wait_flag(self, name, vz, vt, off=L_FLAG, sleep=1):
        a = self.a
        a("s_mov_b32 s50, 0")
        a(f"L_{name}:")
        a(f"ds_read_b32 v{vt}, v{vz} offset:{off}")
        a("s_waitcnt lgkmcnt(0)")
        a(f"v_readfirstlane_b32 s48, v{vt}")
        a("s_cmp_lg_u32 s48, 0")
        a(f"s_cbranch_scc1 L_{name}_ok")
        if sleep:
            a(f"s_sleep {sleep}")
        a("s_add_u32 s50, s50, 1")
        a(f"s_cmp_lt_u32 s50, {SPIN * 16}")
        a(f"s_cbranch_scc1 L_{name}")
        a(f"L_{name}_ok:")

    def gelu_pk(self, items, c0, c1, one, acc, sa):
        a = self.a
        P = lambda r: f"v[{r}:{r + 1}]"

        def rnd(sel):
            if self.mimic:
                for it in items:
                    r = it[sel]
                    self.rb(f"v{r}", f"v{r}")
                    self.rb(f"v{r + 1}", f"v{r + 1}")

        for (w1, b1, w2, u, t) in items:
            a(f"v_pk_mul_f32 {P(u)}, {sa}, {P(w1)} op_sel_hi:[0,1]")
        rnd(3)
        for (w1, b1, w2, u, t) in items:
            a(f"v_pk_add_f32 {P(u)}, {P(u)}, {P(b1)}")
        rnd(3)
        for (w1, b1, w2, u, t) in items:
            a(f"v_pk_mul_f32 {P(t)}, {P(u)}, {P(u)}")
        for (w1, b1, w2, u, t) in items:
            a(f"v_pk_fma_f32 {P(t)}, {P(t)}, {P(c1)}, {P(c0)}")
        for (w1, b1, w2, u, t) in items:
            a(f"v_pk_mul_f32 {P(t)}, {P(t)}, {P(u)}")
        for (w1, b1, w2, u, t) in items:
            a(f"v_exp_f32 v{t}, v{t}")
            a(f"v_exp_f32 v{t + 1}, v{t + 1}")
        for (w1, b1, w2, u, t) in items:
            a(f"v_pk_add_f32 {P(t)}, {P(t)}, {P(one)}")
        for (w1, b1, w2, u, t) in items:
            a(f"v_rcp_f32 v{t}, v{t}")
            a(f"v_rcp_f32 v{t + 1}, v{t + 1}")
        for (w1, b1, w2, u, t) in items:
            a(f"v_pk_mul_f32 {P(t)}, {P(t)}, {P(u)}")
        rnd(4)
        for (w1, b1, w2, u, t) in items:
            a(f"v_pk_fma_f32 {P(acc)}, {P(t)}, {P(w2)}, {P(acc)}")

    def gelu_consts(self, base):
        for i in range(2):
            self.a(f"v_mov_b32 v{base + i}, {hx(C0)}")
            self.a(f"v_mov_b32 v{base + 2 + i}, {hx(C1)}")
            self.a(f"v_mov_b32 v{base + 4 + i}, 1.0")

    def issue_mlp(self, ndw, rawofs):
        a = self.a
        if self.no_mlp:
            return
        a("v_lshlrev_b32 v1, 4, v0")
        a("v_lshlrev_b32 v2, 3, v0")
        for sp, D in ((28, W1), (30, B1), (32, W2)):
            dst = D + rawofs
            self.srd(4, sp, 9216)
            o = 0
            while o < ndw:
                n = 4 if ndw - o >= 4 else 2
                a(f"buffer_load_dwordx{n} v[{dst + o}:{dst + o + n - 1}], v{1 if n == 4 else 2}, s[4:7], s48 offen offset:{256 * o}{self.mlp_pol}")
                o += n

    def unpack_mlp(self, ndw, rawofs):
        a = self.a
        for D in (W1, B1, W2):
            for i in range(ndw):
                src = D + rawofs + i
                for j in range(i + 1, ndw):
                    assert D + rawofs + j not in (D + 2 * i, D + 2 * i + 1)
                assert D + 2 * i != src
                a(f"v_lshlrev_b32 v{D + 2 * i}, 16, v{src}")
                a(f"v_and_b32 v{D + 2 * i + 1}, 0xffff0000, v{src}")

    def load_wo(self, label, after):
        a = self.a
        a("s_cmp_eq_u32 s45, 0")
        a(f"s_cbranch_scc1 {label}")
        if self.no_wo:
            a(f"s_branch {after}")
            a(f"{label}:")
            return
        self.srd(8, 24, 4718592)
        a("s_lshl_b32 s48, s43, 1")
        a("s_add_u32 s48, s48, s42")
        a(f"s_mul_i32 s48, s48, {128 * 1152}")
        a(f"s_mul_i32 s49, s56, {32 * 1152}")
        a("s_add_u32 s48, s48, s49")
        a("v_lshrrev_b32 v1, 4, v0")
        a(f"v_mul_u32_u24 v1, {4 * 1152}, v1")
        a("v_and_b32 v2, 15, v0")
        a("v_lshl_add_u32 v1, v2, 4, v1")
        for u in range(2):
            for e in range(4):
                a(f"s_add_u32 s49, s48, {(16 * u + e) * 1152}")
                for cg in range(4):
                    r = 96 + 4 * (5 * (4 * u + e) + cg)
                    a(f"buffer_load_dwordx4 v[{r}:{r + 3}], v1, s[8:11], s49 offen offset:{256 * cg} nt")
        a("s_mov_b32 exec_lo, 0x00ff00ff")
        a("s_mov_b32 exec_hi, 0x00ff00ff")
        for u in range(2):
            for e in range(4):
                a(f"s_add_u32 s49, s48, {(16 * u + e) * 1152}")
                r = 96 + 4 * (5 * (4 * u + e) + 4)
                a(f"buffer_load_dwordx4 v[{r}:{r + 3}], v1, s[8:11], s49 offen offset:1024 nt")
        a("s_mov_b64 exec, -1")
        a(f"s_branch {after}")
        a(f"{label}:")

    def prologue(self):
        a = self.a
        Tn, To = self.Tn, self.To
        self.stamp(0)
        if self.stamps:
            for i in range(72, 86, 2):
                a(f"s_mov_b64 s[{i}:{i + 1}], 0")
        a("s_cmp_ge_u32 s2, 256")
        a("s_cbranch_scc1 L_end")
        a("s_load_dwordx16 s[16:31], s[0:1], 0")
        a("s_load_dwordx8 s[32:39], s[0:1], 64")
        a("s_load_dwordx2 s[40:41], s[0:1], 96")
        a("v_lshrrev_b32 v1, 6, v0")
        a("v_and_b32 v0, 63, v0")
        a("s_lshr_b32 s42, s2, 7")
        a("v_readfirstlane_b32 s3, v1")
        a("s_bfe_u32 s43, s2, 0x40003")
        a("s_and_b32 s44, s2, 7")
        a("s_mov_b32 s7, 0x20000")
        a("s_mov_b32 s11, 0x20000")
        a("s_cmp_eq_u32 s3, 4")
        a("s_cbranch_scc1 L_h0_start")
        a("s_and_b32 s48, s43, 7")
        a("s_cmp_eq_u32 s44, s48")
        a(f"s_cselect_b32 s49, {To}, {Tn}")
        a("s_cmp_gt_u32 s44, s48")
        a(f"s_cselect_b32 s50, {Tn - To}, 0")
        a(f"s_mul_i32 s51, s44, {Tn}")
        a("s_sub_u32 s51, s51, s50")
        a("s_lshr_b32 s52, s2, 3")
        a("s_lshl_b32 s52, s52, 9")
        a("s_add_u32 s52, s52, s51")
        a("s_add_u32 s6, s52, s49")
        a("s_lshl_b32 s6, s6, 12")
        a("s_mov_b32 s10, s6")
        a("s_lshl_b32 s51, s52, 12")
        a("s_add_u32 s52, s52, s3")
        a("s_lshl_b32 s52, s52, 12")
        a("v_lshlrev_b32 v2, 4, v0")
        a("v_lshrrev_b32 v1, 4, v0")
        a("v_lshlrev_b32 v1, 6, v1")
        a("v_xor_b32 v60, v2, v1")
        for c in range(1, 4):
            a(f"v_xor_b32 v{60 + c}, {16 * c}, v60")
        a("s_lshl_b32 s56, s3, 15")
        a(f"s_add_u32 s56, s56, {L_KR}")
        a("s_cmp_gt_u32 s3, 4")
        a("s_waitcnt lgkmcnt(0)")
        a("s_mov_b32 s4, s18")
        a("s_mov_b32 s5, s19")
        a("s_mov_b32 s8, s20")
        a("s_mov_b32 s9, s21")
        a("s_cbranch_scc1 L_join")
        if not self.h0_first:
            self.issue_tile(0, grab=False)
        a("s_branch L_join")
        a("L_h0_start:")
        a(f"s_setprio {self.hprio}")
        a("v_mov_b32 v2, 0")
        for c in range(4):
            a(f"v_mov_b32 v{60 + c}, 0")
        a("v_lshrrev_b32 v8, 5, v0")
        a("v_mul_u32_u24 v8, 1152, v8")
        a("v_and_b32 v10, 31, v0")
        a("v_mul_u32_u24 v10, 36, v10")
        a("v_add_u32 v8, v8, v10")
        a("v_lshrrev_b32 v9, 4, v0")
        a(f"v_mul_u32_u24 v9, {18 * 8192}, v9")
        a("v_and_b32 v10, 15, v0")
        a("v_lshl_add_u32 v9, v10, 4, v9")
        a("s_lshl_b32 s48, s43, 1")
        a("s_add_u32 s48, s48, s42")
        a("s_lshl_b32 s48, s48, 8")
        a(f"s_mul_i32 s49, s44, {72 * 8192}")
        a("s_add_u32 s48, s48, s49")
        a("s_mov_b32 s6, 2304")
        a("s_mov_b32 s10, 4718592")
        a("s_waitcnt lgkmcnt(0)")
        a("s_mov_b32 s4, s16")
        a("s_mov_b32 s5, s17")
        a("s_mov_b32 s8, s22")
        a("s_mov_b32 s9, s23")
        a(f"s_load_dword s55, s[40:41], {EPOCH}")
        a("buffer_load_dwordx4 v[12:15], v8, s[4:7], 0 offen")
        a("buffer_load_dwordx4 v[16:19], v8, s[4:7], 0 offen offset:16")
        a("buffer_load_dword v20, v8, s[4:7], 0 offen offset:32")
        for t in range(18):
            a(f"buffer_load_dwordx4 v[{96 + 4 * t}:{99 + 4 * t}], v9, s[8:11], s48 offen nt")
            a("s_add_u32 s48, s48, 8192")
        a("L_join:")
        for i in range(4):
            a(f"v_mov_b32 v{4 + i}, 0")
        a(f"ds_write_b128 v4, v[4:7] offset:{L_CNT - 8}")
        a("s_nop 1")
        a("v_mov_b32 v6, 4")
        a(f"ds_write_b96 v4, v[4:6] offset:{L_CNT2}")
        a("s_and_b32 s48, s43, 7")
        a("s_cmp_eq_u32 s44, s48")
        a("s_cselect_b32 s45, 1, 0")
        a(f"s_mov_b32 s14, {WS_SPAN}")
        a("s_mov_b32 s15, 0x20000")
        self.consts()
        a("s_waitcnt lgkmcnt(0)")
        a("s_mov_b32 s12, s40")
        a("s_mov_b32 s13, s41")
        a("s_barrier")
        a("s_cmp_lt_u32 s3, 4")
        a("s_cbranch_scc1 L_stream")

    def consts(self):
        a = self.a
        a("s_mov_b32 s46, 0")
        a(f"s_cmp_eq_u32 s2, {FINAL_WG[0]}")
        a("s_cselect_b32 s46, 1, s46")
        a(f"s_cmp_eq_u32 s2, {FINAL_WG[1]}")
        a("s_cselect_b32 s46, 2, s46")
        a("s_mov_b32 s60, 0x00ff00ff")
        a("s_mov_b32 s61, 0xff00ff00")
        a(f"s_mov_b32 s62, {hx(LOG2E)}")
        a(f"s_mov_b32 s63, {hx(128 ** -0.5)}")
        a("s_mov_b32 s64, 0x07060501")
        a("s_mov_b32 s65, 0x07060502")
        a("s_mov_b32 s66, 0x07060503")
        a("s_mov_b32 s67, 0x04000c0c")
        a("s_mov_b32 s68, 0x0706000c")
        a("s_mov_b32 s98, 0")

    def helper_start(self):
        a = self.a
        a(f"s_setprio {self.hprio}")
        a("s_sub_u32 s56, s3, 4")
        a("s_load_dword s69, s[34:35], 0")
        a("s_cmp_eq_u32 s56, 0")
        a("s_cbranch_scc1 L_qphase")
        if self.code_pf:
            a("s_getpc_b64 s[50:51]")
            a("L_pc:")
            a(f"s_sub_u32 s50, s50, L_pc-{NAME}_kernel")
            a("s_subb_u32 s51, s51, 0")
            a("s_sub_u32 s48, s56, 1")
            a("s_lshl_b32 s48, s48, 13")
            a("v_lshlrev_b32 v1, 7, v0")
            a("v_add_u32 v1, s48, v1")
            a(f"v_min_u32 v1, L_code_end-{NAME}_kernel-4, v1")
            a("global_load_dword v8, v1, s[50:51]")
        self.load_wo("L_nowo_a", "L_pre_b2")
        for _ in range(self.mlp_delay):
            a("s_sleep 16")
        a("s_mul_i32 s48, s56, 2560")
        a("s_sub_u32 s48, s48, 1024")
        self.issue_mlp(10, 10)
        a("s_waitcnt vmcnt(0)")
        self.unpack_mlp(10, 10)
        a("s_branch L_table")

    def qphase(self):
        a = self.a
        rb = self.rb
        X = 168
        a("L_qphase:")
        nm = 0
        self.masks(4, 22, 23)
        a("s_waitcnt vmcnt(18)")
        self.stamp(7)
        for k in range(9):
            a(f"v_lshlrev_b32 v{X + 2 * k}, 16, v{12 + k}")
            a(f"v_and_b32 v{X + 1 + 2 * k}, 0xffff0000, v{12 + k}")
        a("s_add_u32 s55, s55, 1")
        a("s_mul_i32 s47, s55, 0x9E3779B1")
        a(f"v_add_f32 v22, v{X}, v{X + 1}")
        a(f"v_add_f32 v23, v{X + 2}, v{X + 3}")
        for k in range(4, 18, 2):
            a(f"v_add_f32 v22, v22, v{X + k}")
            a(f"v_add_f32 v23, v23, v{X + k + 1}")
        a("v_add_f32 v22, v22, v23")
        self.red16("v_add_f32", "v22")
        self.xrow(16, "v_add_f32", "v22", "v23")
        a(f"v_mul_f32 v22, {hx(1.0 / 576)}, v22")
        a("v_mov_b32 v24, 0")
        a("v_mov_b32 v25, 0")
        for k in range(0, 18, 2):
            a(f"v_sub_f32 v23, v{X + k}, v22")
            a(f"v_sub_f32 v26, v{X + k + 1}, v22")
            a("v_fmac_f32 v24, v23, v23")
            a("v_fmac_f32 v25, v26, v26")
        a("v_add_f32 v24, v24, v25")
        self.red16("v_add_f32", "v24")
        self.xrow(16, "v_add_f32", "v24", "v23")
        a(f"v_mul_f32 v24, {hx(1.0 / 576)}, v24")
        rb("v22", "v22")
        rb("v24", "v24")
        a(f"v_add_f32 v24, {hx(1e-5)}, v24")
        rb("v24", "v24")
        a("v_sqrt_f32 v24, v24")
        for k in range(18):
            a(f"v_sub_f32 v{X + k}, v{X + k}, v22")
        rb("v24", "v24")
        a("v_rcp_f32 v24, v24")
        for k in range(18):
            rb(f"v{X + k}", f"v{X + k}")
        for k in range(18):
            a(f"v_mul_f32 v{X + k}, v{X + k}, v24")
        for k in range(9):
            a(f"v_cvt_pk_bf16_f32 v{12 + k}, v{X + 2 * k}, v{X + 1 + 2 * k}")
        a("v_bfe_u32 v1, v0, 3, 1")
        a("v_lshlrev_b32 v1, 5, v1")
        a("v_lshrrev_b32 v2, 4, v0")
        a("v_add_u32 v1, v1, v2")
        a("s_lshl_b32 s48, s44, 2")
        a("v_add_lshl_u32 v1, v1, s48, 2")
        for k in range(9):
            a(f"ds_bpermute_b32 v{24 + k}, v1, v{12 + k}")
        a("s_mov_b32 s48, 0x01000100")
        a("s_mov_b32 s49, 0x03020302")
        a("s_waitcnt lgkmcnt(0)")
        for t in range(18):
            ab = 36 + 4 * (t & 1)
            a(f"v_perm_b32 v33, v{24 + t // 2}, v{24 + t // 2}, s{48 + (t & 1)}")
            for q in range(4):
                a(f"v_and_b32 v{ab + q}, v33, v{4 + q}")
            a(f"s_waitcnt vmcnt({17 - t})")
            c = "0" if t == 0 else "v[8:11]"
            a(f"v_mfma_f32_16x16x32_bf16 v[8:11], v[{ab}:{ab + 3}], v[{96 + 4 * t}:{99 + 4 * t}], {c}")
        a("s_lshl_b32 s48, s43, 14")
        a("s_lshl_b32 s49, s42, 12")
        a("s_add_u32 s49, s49, s48")
        a("s_lshl_b32 s50, s44, 9")
        a("s_add_u32 s49, s49, s50")
        a(f"s_add_u32 s49, s49, {QX}")
        a("v_lshrrev_b32 v1, 5, v0")
        a("v_lshlrev_b32 v1, 13, v1")
        a("v_and_b32 v2, 31, v0")
        a("v_lshl_add_u32 v1, v2, 4, v1")
        a("v_mov_b32 v15, s47")
        self.pack3(12, 8)
        a("buffer_store_dwordx4 v[12:15], v1, s[12:15], s49 offen sc1")
        self.stamp(1)
        if self.h0_mlp_early:
            a("s_cmp_lg_u32 s45, 0")
            a("s_cbranch_scc1 L_h0_nomlp")
            a("s_mov_b32 s48, 0")
            self.issue_mlp(6, 14)
            a("L_h0_nomlp:")
        a("s_lshl_b32 s48, s43, 14")
        a("s_lshl_b32 s49, s42, 13")
        a("s_add_u32 s48, s48, s49")
        a(f"s_add_u32 s48, s48, {QX}")
        a("s_add_u32 s49, s48, 4096")
        a("v_lshlrev_b32 v1, 4, v0")
        a("s_mov_b32 s50, 0")
        if self.q_sleep0:
            a(f"s_sleep {self.q_sleep0}")
        a("L_qpoll:")
        for u in range(8):
            so = "s48" if u < 4 else "s49"
            a(f"buffer_load_dwordx4 v[{8 + 4 * u}:{11 + 4 * u}], v1, s[12:15], {so} offen offset:{1024 * (u & 3)} sc1")
        a("s_waitcnt vmcnt(0)")
        self.tags_bad([11 + 4 * u for u in range(8)], 2, 3)
        a("s_cbranch_vccz L_qgot")
        self.retry("L_qpoll", self.q_sleep)
        a("L_qgot:")
        if self.pollcnt:
            a("s_mul_i32 s84, s50, 100")
            a("s_add_u32 s84, s84, s70")
            a("s_addc_u32 s85, s71, 0")
        for u in range(8):
            self.unpack4th(8 + 4 * u)
        for hh in range(2):
            for e in range(4):
                g = 8 + 16 * hh + e
                a(f"v_add_f32 v{g}, v{g}, v{g + 4}")
                a(f"v_add_f32 v{g + 8}, v{g + 8}, v{g + 12}")
            for e in range(4):
                g = 8 + 16 * hh + e
                a(f"v_add_f32 v{g}, v{g}, v{g + 8}")
        for e in range(4):
            a(f"v_permlane32_swap_b32 v{8 + e}, v{24 + e}")
        for e in range(4):
            a(f"v_add_f32 v{8 + e}, v{8 + e}, v{24 + e}")
        a("v_cvt_pk_bf16_f32 v12, v8, v9")
        a("v_cvt_pk_bf16_f32 v13, v10, v11")
        a("v_lshrrev_b32 v1, 5, v0")
        a("v_lshlrev_b32 v1, 8, v1")
        a("v_and_b32 v2, 15, v0")
        a("v_lshl_add_u32 v1, v2, 4, v1")
        a("v_bfe_u32 v2, v0, 4, 1")
        a("v_lshl_add_u32 v1, v2, 3, v1")
        a(f"ds_write_b64 v1, v[12:13] offset:{L_Q}")
        a("v_mov_b32 v14, s47")
        a("v_mov_b32 v15, s55")
        a("v_mov_b32 v2, 0")
        a("v_mov_b32 v3, 1")
        a(f"ds_write_b64 v2, v[14:15] offset:{L_TAG}")
        a("s_waitcnt lgkmcnt(0)")
        a(f"ds_write_b32 v2, v3 offset:{L_FLAG}")
        self.stamp(2)
        self.load_wo("L_nowo_b", "L_pre_b2")
        if not self.h0_mlp_early:
            a("s_mov_b32 s48, 0")
            self.issue_mlp(6, 14)
            a("s_waitcnt vmcnt(0)")
        self.unpack_mlp(6, 14)

    def table(self):
        a = self.a
        rb = self.rb
        a("L_table:")
        a(f"s_setprio {self.tprio}")
        a("s_lshr_b32 s48, s2, 3")
        a("s_mul_i32 s48, s48, 7")
        a("s_add_u32 s48, s48, s44")
        a("s_and_b32 s49, s43, 7")
        a("s_cmp_gt_u32 s44, s49")
        a("s_cselect_b32 s49, 1, 0")
        a("s_sub_u32 s54, s48, s49")
        a(f"s_mul_i32 s53, s54, {TPW}")
        self.gelu_consts(28)
        a(f"s_mul_i32 s48, s56, {4 * TPW}")
        a("v_mov_b32 v3, s48")
        a(f"s_mov_b32 s57, {1 if self.no_table else TPW}")
        a("L_tloop:")
        a(f"s_cmp_ge_u32 s53, {TAB_N}")
        a(f"s_cselect_b32 s48, {0x8000 - TAB_N}, 0")
        a("s_add_u32 s48, s48, s53")
        a(f"s_add_u32 s48, s48, {TAB_LO}")
        a("s_lshl_b32 s58, s48, 16")
        a("v_mov_b32 v26, 0")
        a("v_mov_b32 v27, 0")
        for (p0, n) in ((0, 3), (3, 3), (6, 4)):
            if p0 == 6:
                a("s_cmp_eq_u32 s56, 0")
                a("s_cbranch_scc1 L_tskip")
            items = [(W1 + 2 * (p0 + i), B1 + 2 * (p0 + i), W2 + 2 * (p0 + i), 8 + 4 * i, 10 + 4 * i) for i in range(n)]
            self.gelu_pk(items, 28, 30, 32, 26, "s[58:59]")
        a("L_tskip:")
        a("v_add_f32 v26, v26, v27")
        self.red16("v_add_f32", "v26")
        self.xrow(16, "v_add_f32", "v26", "v27")
        self.xrow(32, "v_add_f32", "v26", "v27")
        a(f"ds_write_b32 v3, v26 offset:{L_TP}")
        a("v_add_u32 v3, 4, v3")
        a("s_add_u32 s53, s53, 1")
        a("s_sub_u32 s57, s57, 1")
        a("s_cmp_lg_u32 s57, 0")
        a("s_cbranch_scc1 L_tloop")
        a("v_mov_b32 v2, 0")
        self.wait_flag("tflag", 2, 8)
        a(f"ds_read_b64 v[10:11], v2 offset:{L_TAG}")
        a("v_mov_b32 v8, 1")
        a("s_mov_b64 exec, 1")
        a(f"ds_add_rtn_u32 v9, v2, v8 offset:{L_CNT}")
        a("s_mov_b64 exec, -1")
        a("s_waitcnt lgkmcnt(0)")
        a("v_readfirstlane_b32 s47, v10")
        a("v_readfirstlane_b32 s55, v11")
        a("v_readfirstlane_b32 s48, v9")
        a("s_cmp_eq_u32 s48, 3")
        a("s_cbranch_scc0 L_tdone")
        a("v_lshlrev_b32 v3, 2, v0")
        a(f"s_mov_b64 exec, {hex((1 << TPW) - 1)}")
        for w in range(4):
            a(f"ds_read_b32 v{8 + w}, v3 offset:{L_TP + 4 * TPW * w}")
        a("v_lshlrev_b32 v3, 1, v0")
        a("s_lshl_b32 s48, s69, 16")
        a("s_waitcnt lgkmcnt(0)")
        a("v_add_f32 v8, v8, v9")
        a("v_add_f32 v10, v10, v11")
        a("v_add_f32 v8, v8, v10")
        rb("v8", "v8")
        a("v_add_f32 v8, s48, v8")
        a("v_cvt_pk_bf16_f32 v8, v8, 0")
        a(f"ds_write_b16 v3, v8 offset:{L_TY}")
        a("s_mov_b64 exec, 15")
        a("v_mul_u32_u24 v3, 12, v0")
        a("s_waitcnt lgkmcnt(0)")
        for i in range(3):
            a(f"ds_read_b32 v{8 + i}, v3 offset:{L_TY + 4 * i}")
        a("v_mov_b32 v11, s47")
        a("v_lshlrev_b32 v3, 4, v0")
        a("s_lshl_b32 s48, s54, 6")
        a(f"s_add_u32 s48, s48, {TAB}")
        a("s_waitcnt lgkmcnt(0)")
        a("buffer_store_dwordx4 v[8:11], v3, s[12:15], s48 offen sc1")
        a("s_mov_b64 exec, -1")
        a("L_tdone:")
        self.stamp(3)
        a("s_cmp_eq_u32 s46, 0")
        a("s_cbranch_scc1 L_nogather")
        a("s_mul_i32 s48, s56, 3584")
        a(f"s_add_u32 s48, s48, {TAB}")
        a("v_lshlrev_b32 v1, 4, v0")
        a("s_mov_b32 s50, 0")
        a(f"s_sleep {self.gather_sleep0}")
        a("L_gpoll:")
        a("v_mov_b32 v23, s47")
        for u in range(3):
            a(f"buffer_load_dwordx4 v[{8 + 4 * u}:{11 + 4 * u}], v1, s[12:15], s48 offen offset:{1024 * u} sc1")
        a("s_mov_b32 exec_hi, 0")
        a("buffer_load_dwordx4 v[20:23], v1, s[12:15], s48 offen offset:3072 sc1")
        a("s_mov_b32 exec_hi, -1")
        a("s_waitcnt vmcnt(0)")
        self.tags_bad([11, 15, 19, 23], 2, 3)
        a("s_cbranch_vccz L_ggot")
        self.retry("L_gpoll", self.gather_sleep)
        a("L_ggot:")
        a("s_mul_i32 s48, s56, 224")
        for u in range(4):
            if u == 3:
                a("s_mov_b32 exec_hi, 0")
            a(f"v_add_u32 v1, s48, v0")
            if u:
                a(f"v_add_u32 v1, {64 * u}, v1")
            a("v_lshrrev_b32 v2, 2, v1")
            a(f"v_mul_u32_u24 v2, {TPW}, v2")
            a("v_and_b32 v1, 3, v1")
            a("v_mad_u32_u24 v2, v1, 6, v2")
            a("v_cmp_eq_u32 s[50:51], 3, v1")
            a("v_lshlrev_b32 v2, 1, v2")
            a(f"v_add_u32 v2, {L_TAB}, v2")
            for i in range(6):
                if i == 3:
                    a("s_andn2_b64 exec, exec, s[50:51]")
                op = "ds_write_b16_d16_hi" if i & 1 else "ds_write_b16"
                a(f"{op} v2, v{8 + 4 * u + i // 2} offset:{2 * i}")
            a("s_mov_b64 exec, -1")
        a("s_waitcnt lgkmcnt(0)")
        self.stamp(4)
        a("s_branch L_final")
        a("L_nogather:")
        if self.dry:
            a("s_cmp_eq_u32 s56, 1")
            a("s_cbranch_scc0 L_nowarm")
            a("s_mov_b32 s98, 1")
            a("s_branch L_pub")
            a("L_nowarm:")
        if self.stamps:
            a("s_cmp_eq_u32 s56, 0")
            a("s_cbranch_scc0 L_end")
            a("s_setprio 0")
            a("v_mov_b32 v2, 0")
            self.wait_flag("stdone", 2, 3, L_DONE, 8)
            self.stamp_flush(0, 7, 8)
        a("s_endpgm")

    def grab(self):
        a = self.a
        a("s_mov_b64 exec, 1")
        a(f"ds_add_rtn_u32 v57, v56, v59 offset:{L_NEXT}")
        a("s_mov_b64 exec, -1")

    def issue_tile(self, slot, grab=True, mid=None):
        a = self.a
        vb = VRING + 16 * slot
        if grab:
            a("s_waitcnt lgkmcnt(0)")
            a("v_readfirstlane_b32 s48, v57")
            self.grab()
            a("s_lshl_b32 s52, s48, 12")
            a("s_add_u32 s52, s52, s51")
            a("s_cmp_lt_u32 s48, s49")
            a("s_addc_u32 s54, s54, 0")
        a(f"s_add_u32 m0, s56, {4096 * slot}")
        for c in range(4):
            a(f"buffer_load_dwordx4 v{60 + c}, s[4:7], s52 offen offset:{1024 * c}{self.kvpol} lds")
        if mid is not None:
            a(f"s_waitcnt vmcnt({mid})")
        for c in range(4):
            a(f"buffer_load_dwordx4 v[{vb + 4 * c}:{vb + 3 + 4 * c}], v2, s[8:11], s52 offen offset:{1024 * c}{self.kvpol}")

    def stream(self):
        a = self.a
        rb = self.rb
        ring = self.ring
        L = self.look
        a("L_stream:")
        if self.h0_first:
            self.issue_tile(0, grab=False)
        if self.trace:
            a("s_mov_b32 s59, 0")
            a("v_mov_b32 v58, 0")
        self.trace_pt()
        a("v_mov_b32 v56, 0")
        a("v_mov_b32 v59, 1")
        self.grab()
        a("s_mov_b32 s54, 1")
        if self.half_thr is not None:
            a(f"s_waitcnt vmcnt({self.half_thr})")
        self.issue_tile(1, mid=self.half_thr)
        self.trace_pt()
        self.masks(4, 18, 19)
        for r in range(4):
            a(f"v_mov_b32 v{8 + r}, 0")
        a("v_mov_b32 v16, 0xff7fffff")
        a("v_mov_b32 v17, 0")
        a("v_bfe_u32 v3, v0, 3, 1")
        a("v_lshlrev_b32 v3, 8, v3")
        a("v_lshrrev_b32 v18, 4, v0")
        a("v_lshl_add_u32 v3, v18, 4, v3")
        a("v_and_b32 v19, 15, v0")
        a("v_xor_b32 v18, v18, v19")
        a("v_lshlrev_b32 v18, 4, v18")
        a("v_and_b32 v19, 3, v0")
        a("v_lshl_add_u32 v18, v19, 10, v18")
        a("v_bfe_u32 v19, v0, 2, 2")
        a("v_lshl_add_u32 v18, v19, 8, v18")
        for c in range(4):
            a(f"v_xor_b32 v{80 + c}, {64 * c}, v18")
        for c in range(4):
            a(f"v_add_u32 v{80 + c}, s56, v{80 + c}")
        a("v_mov_b32 v18, 0")
        if self.no_qwait:
            a(f"s_mov_b32 s53, 0")
            a("s_branch L_qskip")
        for t in range(2, ring):
            a(f"s_waitcnt vmcnt({self.pre_throttle if self.half_thr is None else self.half_thr})")
            if self.early and t > L:
                a(f"ds_read_b32 v19, v18 offset:{L_FLAG}")
                a(f"s_mov_b32 s53, {t - L}")
                a("s_waitcnt lgkmcnt(0)")
                a("v_readfirstlane_b32 s48, v19")
                a("s_cmp_lg_u32 s48, 0")
                a("s_cbranch_scc1 L_qwait_ok")
            self.issue_tile(t, mid=self.half_thr)
            self.trace_pt()
        a(f"s_mov_b32 s53, {ring - L}")
        self.wait_flag("qwait", 18, 19)
        a("L_qskip:")
        self.stamp(1)
        for c in range(4):
            a(f"ds_read_b128 v[{40 + 4 * c}:{43 + 4 * c}], v3 offset:{L_Q + 64 * c}")
        a(f"ds_read_b64 v[20:21], v18 offset:{L_TAG}")
        a("s_mov_b64 vcc, s[60:61]")
        a("s_waitcnt lgkmcnt(0)")
        a("v_readfirstlane_b32 s47, v20")
        a("v_readfirstlane_b32 s55, v21")
        self.stamp(2)
        a("L_loop:")
        for slot in range(ring):
            kb = KREG
            vb = VRING + 16 * slot
            if slot < ring - L:
                a("s_cmp_lg_u32 s53, 0")
                a(f"s_cbranch_scc1 L_noissue{slot}")
            self.issue_tile((slot + L) % ring)
            if slot < ring - L:
                a("s_add_u32 s53, s53, 1")
                a(f"L_noissue{slot}:")
                a("s_sub_u32 s53, s53, 1")
            a(f"s_waitcnt vmcnt({8 * L + 4})")
            if self.dynprio:
                a("s_setprio 3")
            for c in range(4):
                a(f"ds_read_b128 v[{kb + 4 * c}:{kb + 4 * c + 3}], v{80 + c} offset:{4096 * slot}")
            for c in range(4):
                a(f"s_waitcnt lgkmcnt({3 - c})")
                cc = "0" if c == 0 else "v[12:15]"
                a(f"v_mfma_f32_16x16x32_bf16 v[12:15], v[{kb + 4 * c}:{kb + 4 * c + 3}], v[{40 + 4 * c}:{43 + 4 * c}], {cc}")
            a("s_sub_u32 s54, s54, 1")
            for r in range(4):
                rb(f"v{12 + r}", f"v{12 + r}")
            for r in range(4):
                a(f"v_mul_f32 v{12 + r}, s63, v{12 + r}")
            for r in range(4):
                rb(f"v{12 + r}", f"v{12 + r}")
            a("v_max3_f32 v18, v12, v13, v14")
            a("v_max3_f32 v18, v18, v15, v16")
            self.xrow(32, "v_max_f32", "v18", "v19")
            self.xrow(16, "v_max_f32", "v18", "v19")
            a("v_sub_f32 v20, v16, v18")
            a("v_mul_f32 v21, s62, v18")
            a("v_mul_f32 v20, s62, v20")
            a("v_mov_b32 v16, v18")
            a("v_exp_f32 v20, v20")
            for r in range(4):
                a(f"v_fma_f32 v{12 + r}, v{12 + r}, s62, -v21")
            for r in range(4):
                a(f"v_exp_f32 v{12 + r}, v{12 + r}")
            a("v_cndmask_b32_dpp v22, v20, v20, vcc row_ror:8 row_mask:0xf bank_mask:0xf")
            a("v_add_f32 v18, v12, v13")
            a("v_add_f32 v19, v14, v15")
            for r in range(4):
                a(f"v_cvt_pk_bf16_f32 v{12 + r}, v{12 + r}, v{12 + r}")
            a("v_add_f32 v18, v18, v19")
            for r in range(4):
                a(f"v_mul_f32 v{8 + r}, v22, v{8 + r}")
            a("v_fma_f32 v17, v17, v20, v18")
            for r in range(4):
                for q in range(4):
                    a(f"v_and_b32 v{24 + 4 * r + q}, v{12 + r}, v{4 + q}")
            a(f"s_waitcnt vmcnt({8 * L})")
            for r in range(4):
                a(f"v_mfma_f32_16x16x32_bf16 v[8:11], v[{24 + 4 * r}:{27 + 4 * r}], v[{vb + 4 * r}:{vb + 4 * r + 3}], v[8:11]")
            self.trace_pt()
            a("s_cmp_eq_u32 s54, 0")
            a("s_cbranch_scc1 L_sdone")
            if self.dynprio:
                a("s_setprio 0")
        a("s_branch L_loop")
        a("L_sdone:")
        self.stamp(3)
        if self.no_qwait:
            a("v_mov_b32 v18, 0")
            a(f"ds_read_b64 v[56:57], v18 offset:{L_TAG}")
            a("s_waitcnt lgkmcnt(0)")
            a("v_readfirstlane_b32 s47, v56")
            a("v_readfirstlane_b32 s55, v57")
        self.xrow(32, "v_add_f32", "v17", "v19")
        self.xrow(16, "v_add_f32", "v17", "v19")
        a("v_cndmask_b32_dpp v18, v16, v16, vcc row_ror:8 row_mask:0xf bank_mask:0xf")
        a("v_cndmask_b32_dpp v19, v17, v17, vcc row_ror:8 row_mask:0xf bank_mask:0xf")
        a("s_lshl_b32 s48, s3, 10")
        a("v_lshl_add_u32 v20, v0, 4, s48")
        a("s_lshl_b32 s48, s3, 9")
        a("v_lshl_add_u32 v21, v0, 3, s48")
        a(f"ds_write_b128 v20, v[8:11] offset:{L_P}")
        a(f"ds_write_b64 v21, v[18:19] offset:{L_PS}")
        a("v_mov_b32 v22, 0")
        a("v_mov_b32 v23, 1")
        a("s_mov_b64 exec, 1")
        a(f"ds_add_rtn_u32 v24, v22, v23 offset:{L_CNT2}")
        a("s_mov_b64 exec, -1")
        a("s_waitcnt lgkmcnt(0)")
        a("v_readfirstlane_b32 s48, v24")
        a("s_cmp_eq_u32 s48, 3")
        a("s_cbranch_scc0 L_after_pub")
        a("L_pub:")
        a("v_lshlrev_b32 v20, 4, v0")
        a("v_lshlrev_b32 v21, 3, v0")
        for w in range(4):
            a(f"ds_read_b64 v[{24 + 2 * w}:{25 + 2 * w}], v21 offset:{L_PS + 512 * w}")
        for w in range(4):
            a(f"ds_read_b128 v[{32 + 4 * w}:{35 + 4 * w}], v20 offset:{L_P + 1024 * w}")
        a("s_lshl_b32 s48, s43, 5")
        a("s_lshl_b32 s49, s42, 3")
        a("s_add_u32 s48, s48, s49")
        a("s_add_u32 s48, s48, s44")
        a("s_mul_i32 s48, s48, 640")
        a(f"s_add_u32 s48, s48, {E1}")
        a("v_lshrrev_b32 v22, 5, v0")
        a(f"v_mul_u32_u24 v22, {16 * 640}, v22")
        a("v_and_b32 v23, 15, v0")
        a("v_lshl_add_u32 v23, v23, 5, v22")
        a("v_bfe_u32 v12, v0, 4, 1")
        a("v_lshl_add_u32 v23, v12, 4, v23")
        a("s_waitcnt lgkmcnt(4)")
        a("v_max_f32 v12, v24, v26")
        a("v_max3_f32 v12, v12, v28, v30")
        for w in range(4):
            a(f"v_sub_f32 v{24 + 2 * w}, v{24 + 2 * w}, v12")
        for w in range(4):
            a(f"v_mul_f32 v{24 + 2 * w}, s62, v{24 + 2 * w}")
        for w in range(4):
            a(f"v_exp_f32 v{24 + 2 * w}, v{24 + 2 * w}")
        a("v_mul_f32 v13, v24, v25")
        a("s_waitcnt lgkmcnt(0)")
        for r in range(4):
            a(f"v_mul_f32 v{8 + r}, v24, v{32 + r}")
        for w in range(1, 4):
            for r in range(4):
                a(f"v_fmac_f32 v{8 + r}, v{24 + 2 * w}, v{32 + 4 * w + r}")
        for w in range(1, 4):
            a(f"v_fmac_f32 v13, v{24 + 2 * w}, v{25 + 2 * w}")
        self.pack3(16, 8)
        a("v_mov_b32 v19, s47")
        a("v_mov_b32 v14, 0")
        a("v_mov_b32 v15, s47")
        a("v_mov_b32 v20, 0")
        a("v_mov_b32 v21, 1")
        if self.dry:
            a("s_cmp_lg_u32 s98, 0")
            a("s_cbranch_scc1 L_pub_dry_ret")
        a("buffer_store_dwordx4 v[16:19], v23, s[12:15], s48 offen sc1")
        a("s_mov_b32 exec_lo, 1")
        a("s_mov_b32 exec_hi, 1")
        a("buffer_store_dwordx4 v[12:15], v22, s[12:15], s48 offen offset:512 sc1")
        a("s_mov_b64 exec, -1")
        a(f"ds_write_b32 v20, v21 offset:{L_DONE}")
        self.stamp(4)
        self.stamp_flush(0, 4, 0)
        a("L_after_pub:")
        if self.trace:
            a("v_mov_b32 v60, 0")
            self.wait_flag("trdone", 60, 61, L_DONE, 4)
            a("s_lshl_b32 s48, s2, 2")
            a("s_add_u32 s48, s48, s3")
            a("s_lshl_b32 s48, s48, 8")
            a(f"s_add_u32 s48, s48, {STAMP + 0x20000}")
            a("v_lshlrev_b32 v57, 2, v0")
            a("buffer_store_dword v58, v57, s[12:15], s48 offen")
        a("s_cmp_lg_u32 s46, 0")
        a("s_cbranch_scc1 L_final")
        a("s_endpgm")
        if self.dry:
            a("L_pub_dry_ret:")
            a("s_cmp_eq_u32 s98, 2")
            a("s_cbranch_scc1 L_owner_setup")
            a("s_endpgm")

    def owner(self):
        a = self.a
        a("L_pre_b2:")
        a("v_mov_b32 v3, 0")
        self.wait_flag("oflag", 3, 8)
        a(f"ds_read_b64 v[10:11], v3 offset:{L_TAG}")
        a("s_waitcnt vmcnt(0) lgkmcnt(0)")
        a("v_readfirstlane_b32 s47, v10")
        a("s_setprio 0")
        if self.dry:
            a("s_cmp_eq_u32 s56, 1")
            a("s_cbranch_scc0 L_owner_setup")
            a("s_mov_b32 s98, 2")
            a("s_branch L_pub")
        a("L_owner_setup:")
        self.masks(4, 8, 9)
        a("s_lshl_b32 s57, s43, 1")
        a("s_add_u32 s57, s57, s42")
        a(f"s_mul_i32 s49, s57, {16 * 640}")
        a(f"s_add_u32 s49, s49, {E1}")
        a("v_and_b32 v1, 15, v0")
        a("v_mul_u32_u24 v1, 640, v1")
        a("v_lshrrev_b32 v2, 4, v0")
        a("s_lshl_b32 s50, s56, 3")
        a("v_add_lshl_u32 v2, v2, s50, 4")
        a("v_add_u32 v2, v1, v2")
        a("s_mul_i32 s50, s56, 4608")
        a(f"s_add_u32 s50, s50, {L_R}")
        a("v_lshrrev_b32 v36, 5, v0")
        a("v_mul_u32_u24 v36, 2304, v36")
        a("v_and_b32 v37, 15, v0")
        a("v_lshl_add_u32 v36, v37, 5, v36")
        a("v_bfe_u32 v37, v0, 4, 1")
        a("v_lshl_add_u32 v36, v37, 4, v36")
        a("v_add_u32 v36, s50, v36")
        a("s_mul_i32 s50, s56, 48")
        a("v_add_u32 v37, s50, v0")
        a("v_mul_u32_u24 v37, 24, v37")
        a(f"v_add_u32 v37, {L_R}, v37")
        a("v_lshlrev_b32 v38, 4, v0")
        a("s_lshr_b32 s50, s56, 1")
        a("s_lshl_b32 s53, s50, 3")
        a("s_lshl_b32 s50, s50, 5")
        a("s_add_u32 s50, s50, s57")
        a("s_mul_i32 s50, s50, 1536")
        a("s_and_b32 s51, s56, 1")
        a("s_mul_i32 s51, s51, 768")
        a("s_add_u32 s51, s50, s51")
        a(f"s_add_u32 s51, s51, {FIN}")
        a("v_mov_b32 v35, s47")
        a("v_mov_b32 v3, 0")
        if self.dry:
            a("s_mov_b32 s98, 1")
            a("s_branch L_ogot")
            a("L_owner_real:")
            a("s_mov_b64 exec, -1")
            a("s_mov_b32 s98, 0")
        self.stamp(4)
        self.wait_flag("odone", 3, 8, L_DONE, self.done_sleep)
        a("s_setprio 3")
        a("s_mov_b32 s50, 0")
        a("L_opoll:")
        a("buffer_load_dwordx4 v[8:11], v1, s[12:15], s49 offen offset:512 sc1")
        a("buffer_load_dwordx4 v[12:15], v2, s[12:15], s49 offen sc1")
        a("buffer_load_dwordx4 v[16:19], v2, s[12:15], s49 offen offset:64 sc1")
        a("s_waitcnt vmcnt(0)")
        self.tags_bad([11, 15, 19], 20, 21)
        a("s_cbranch_vccz L_ogot")
        self.retry("L_opoll", self.tail_sleep)
        a("L_ogot:")
        self.stamp(5)
        if self.odiag:
            a("s_memtime s[72:73]")
        a("v_max_f32_dpp v10, v8, v8 quad_perm:[1,0,3,2] row_mask:0xf bank_mask:0xf")
        a("v_perm_b32 v15, v14, v13, s67")
        a("v_perm_b32 v19, v18, v17, s67")
        self.dpp("v_max_f32", "v10", "quad_perm:[2,3,0,1]")
        a("v_perm_b32 v15, v15, v12, s68")
        a("v_perm_b32 v19, v19, v16, s68")
        self.dpp("v_max_f32", "v10", "row_half_mirror")
        a("v_sub_f32 v8, v8, v10")
        a("v_mul_f32 v8, s62, v8")
        a("v_exp_f32 v8, v8")
        for e in range(8):
            a(f"v_mul_f32 v{12 + e}, v8, v{12 + e}")
        a("v_mul_f32 v9, v8, v9")
        for c in ("quad_perm:[1,0,3,2]", "quad_perm:[2,3,0,1]"):
            for e in range(8):
                self.dpp("v_add_f32", f"v{12 + e}", c)
            self.dpp("v_add_f32", "v9", c)

        def mf(t, cg):
            r = 96 + 4 * (5 * t + cg)
            d = 72 + 4 * cg
            ab = 40 + 4 * t
            c = "0" if t == 0 else f"v[{d}:{d + 3}]"
            a(f"v_mfma_f32_16x16x32_bf16 v[{d}:{d + 3}], v[{ab}:{ab + 3}], v[{r}:{r + 3}], {c}")

        def prep(t):
            self.dpp("v_add_f32", f"v{12 + t}", "row_half_mirror")
            a(f"v_cvt_pk_bf16_f32 v{12 + t}, v{12 + t}, v{12 + t}")
            for q in range(4):
                a(f"v_and_b32 v{40 + 4 * t + q}, v{12 + t}, v{4 + q}")

        def wr(cg):
            if cg == 4:
                a("s_mov_b32 exec_lo, 0x00ff00ff")
                a("s_mov_b32 exec_hi, 0x00ff00ff")
            a(f"ds_write_b128 v36, v[{72 + 4 * cg}:{75 + 4 * cg}] offset:{512 * cg}")

        if self.odiag:
            a("s_memtime s[74:75]")
        prep(0)
        for t in range(8):
            mf(t, 0)
            if t < 7:
                self.dpp("v_add_f32", f"v{13 + t}", "row_half_mirror")
                a(f"v_cvt_pk_bf16_f32 v{13 + t}, v{13 + t}, v{13 + t}")
            else:
                self.dpp("v_add_f32", "v9", "row_half_mirror")
            mf(t, 1)
            if t < 7:
                for q in range(2):
                    a(f"v_and_b32 v{44 + 4 * t + q}, v{13 + t}, v{4 + q}")
            mf(t, 2)
            if t < 7:
                for q in range(2, 4):
                    a(f"v_and_b32 v{44 + 4 * t + q}, v{13 + t}, v{4 + q}")
            else:
                a("v_rcp_f32 v9, v9")
        for t in range(8):
            mf(t, 3)
            if t in (3, 5, 7):
                wr((t - 3) // 2)
        for t in range(8):
            mf(t, 4)
            if t == 1:
                a("v_readlane_b32 s52, v9, s53")
            if t == 6:
                wr(3)
        wr(4)
        if self.odiag:
            a("s_memtime s[76:77]")
        a("s_mov_b32 exec_lo, -1")
        a("s_mov_b32 exec_hi, 0xffff")
        a("s_waitcnt lgkmcnt(0)")
        if self.dry:
            a("s_cmp_lg_u32 s98, 0")
            a("s_cbranch_scc1 L_o_nobar")
        a("s_barrier")
        a("L_o_nobar:")
        if self.odiag:
            a("s_memtime s[78:79]")
        for w in range(4):
            for i in range(3):
                a(f"ds_read_b64 v[{8 + 6 * w + 2 * i}:{9 + 6 * w + 2 * i}], v37 offset:{4608 * w + 8 * i}")
        a("s_waitcnt lgkmcnt(6)")
        for i in range(6):
            a(f"v_add_f32 v{8 + i}, v{8 + i}, v{14 + i}")
        a("s_waitcnt lgkmcnt(3)")
        for i in range(6):
            a(f"v_add_f32 v{8 + i}, v{8 + i}, v{20 + i}")
        a("s_waitcnt lgkmcnt(0)")
        for i in range(6):
            a(f"v_add_f32 v{8 + i}, v{8 + i}, v{26 + i}")
        for i in range(6):
            a(f"v_mul_f32 v{8 + i}, s52, v{8 + i}")
        for i in range(3):
            a(f"v_cvt_pk_bf16_f32 v{32 + i}, v{8 + 2 * i}, v{9 + 2 * i}")
        if self.dry:
            a("s_cmp_lg_u32 s98, 0")
            a("s_cbranch_scc1 L_owner_real")
        a("buffer_store_dwordx4 v[32:35], v38, s[12:15], s51 offen sc1")
        if self.odiag:
            a("s_memtime s[84:85]")
        a("s_mov_b64 exec, -1")
        self.stamp(6)
        if self.stamps:
            a("s_cmp_eq_u32 s56, 0")
            a("s_cbranch_scc0 L_end")
            self.stamp_flush(0, 7, 8)
        a("s_endpgm")

    def final(self):
        a = self.a
        rb = self.rb
        a("L_final:")
        a("s_cmp_ge_u32 s3, 6")
        a("s_cbranch_scc1 L_end")
        a("s_sub_u32 s46, s46, 1")
        self.masks(4, 8, 9)
        a("v_and_b32 v1, 15, v0")
        a("v_cmp_gt_u32 vcc, 6, v1")
        a("v_mov_b32 v2, 0x3f803f80")
        a("v_cndmask_b32 v2, 0, v2, vcc")
        for q in range(4):
            a(f"v_and_b32 v{4 + q}, v2, v{4 + q}")
        a("s_mul_i32 s52, s46, 1152")
        a("s_mul_i32 s48, s3, 192")
        a("s_add_u32 s52, s52, s48")
        a("v_mul_u32_u24 v3, 12, v1")
        a("v_lshrrev_b32 v2, 4, v0")
        a("v_lshl_add_u32 v3, v2, 3, v3")
        self.srd(4, 16, 2304)
        self.srd(8, 36, 2304)
        a("buffer_load_dwordx2 v[56:57], v3, s[4:7], s52 offen")
        a("v_mul_u32_u24 v2, 1536, v2")
        a("v_lshl_add_u32 v34, v1, 4, v2")
        a("s_lshl_b32 s48, s3, 3")
        a("v_mov_b32 v1, s48")
        a("v_mov_b32 v2, 0")
        a(f"s_mul_i32 s57, s46, {32 * 1536}")
        a("s_lshl_b32 s49, s3, 8")
        a("s_add_u32 s57, s57, s49")
        a(f"s_add_u32 s57, s57, {FIN}")
        a("s_mov_b32 s88, -1")
        a("s_mov_b32 s89, 0")
        a("s_mov_b64 s[58:59], 0xffff")
        a(f"s_movk_i32 s56, {2 * TAB_N}")
        a(f"s_mov_b32 s54, {L_TAB - 2 * TAB_LO}")
        a("s_waitcnt vmcnt(0)")
        a("v_lshlrev_b32 v40, 16, v56")
        a("v_and_b32 v41, 0xffff0000, v56")
        a("v_lshlrev_b32 v42, 16, v57")
        a("v_and_b32 v43, 0xffff0000, v57")
        a("v_cndmask_b32 v40, 0, v40, s[88:89]")
        a("v_cndmask_b32 v41, 0, v41, s[88:89]")
        a("v_cndmask_b32 v42, 0, v42, s[58:59]")
        a("v_cndmask_b32 v43, 0, v43, s[58:59]")
        if self.dry:
            a("s_cmp_lt_u32 s3, 4")
            a("s_cbranch_scc1 L_final_real")
            a("s_mov_b32 s98, 1")
            a("s_branch L_fgot")
            a("L_final_real:")
            a("s_mov_b64 exec, -1")
            a("s_mov_b32 s98, 0")
        for r in range(4):
            a(f"v_mov_b32 v{8 + r}, 0")
            a(f"v_mov_b32 v{48 + r}, 0")
        self.wait_flag("fdone", 2, 13, L_DONE, self.done_sleep)
        a("s_setprio 3")
        a("s_mov_b32 s53, 0xff")
        a("s_mov_b32 s50, 0")
        a("L_fpoll:")
        for pg in range(8):
            a(f"s_bitcmp1_b32 s53, {pg}")
            a(f"s_cbranch_scc0 L_fskip{pg}")
            a(f"s_add_u32 s49, s57, {pg * 4 * 1536}")
            a(f"buffer_load_dwordx4 v[{64 + 4 * pg}:{67 + 4 * pg}], v34, s[12:15], s49 offen sc1")
            a(f"L_fskip{pg}:")
        a("s_waitcnt vmcnt(0)")
        for pg in range(8):
            a(f"s_bitcmp1_b32 s53, {pg}")
            a(f"s_cbranch_scc0 L_fnext{pg}")
            a(f"v_cmp_ne_u32 vcc, s47, v{67 + 4 * pg}")
            a(f"v_mov_b32 v{67 + 4 * pg}, 0")
            a(f"s_cbranch_vccnz L_fnext{pg}")
            a(f"v_mfma_f32_16x16x32_bf16 v[8:11], v[4:7], v[{64 + 4 * pg}:{67 + 4 * pg}], v[8:11]")
            a(f"s_bitset0_b32 s53, {pg}")
            a("s_cmp_eq_u32 s53, 0")
            a("s_cbranch_scc1 L_fgot")
            a(f"L_fnext{pg}:")
        self.retry("L_fpoll", self.tail_sleep)
        a("L_fgot:")
        self.stamp(5)
        for r in range(4):
            rb(f"v{8 + r}", f"v{8 + r}")
        for r in range(4):
            a(f"v_add_f32 v{12 + r}, v{40 + r}, v{8 + r}")
        for r in range(4):
            rb(f"v{12 + r}", f"v{12 + r}")
        a("v_add_f32 v16, v12, v13")
        a("v_mul_f32 v17, v12, v12")
        a("v_add_f32 v18, v14, v15")
        a("v_mul_f32 v19, v14, v14")
        a("v_fmac_f32 v17, v13, v13")
        a("v_fmac_f32 v19, v15, v15")
        a("v_add_f32 v16, v16, v18")
        a("v_add_f32 v17, v17, v19")
        for c in ("quad_perm:[1,0,3,2]", "quad_perm:[2,3,0,1]", "row_half_mirror", "row_ror:8"):
            self.dpp("v_add_f32", "v16", c)
            self.dpp("v_add_f32", "v17", c)
        a("v_add_f32_dpp v16, v16, v16 row_bcast:15 row_mask:0xa bank_mask:0xf")
        a("v_add_f32_dpp v17, v17, v17 row_bcast:15 row_mask:0xa bank_mask:0xf")
        a("s_mov_b64 exec, 0x10000")
        a(f"ds_write_b64 v1, v[16:17] offset:{L_ST}")
        a("s_mov_b64 exec, -1")
        a("s_waitcnt lgkmcnt(0)")
        if self.dry:
            a("s_cmp_lg_u32 s98, 0")
            a("s_cbranch_scc1 L_f_nobar")
        a("s_barrier")
        a("L_f_nobar:")
        for i in range(3):
            d = (24, 28, 20)[i]
            a(f"ds_read_b128 v[{d}:{d + 3}], v2 offset:{L_ST + 16 * i}")
        a("s_waitcnt lgkmcnt(1)")
        a("v_pk_add_f32 v[24:25], v[24:25], v[26:27]")
        a("v_pk_add_f32 v[28:29], v[28:29], v[30:31]")
        a("s_waitcnt lgkmcnt(0)")
        a("v_pk_add_f32 v[20:21], v[20:21], v[22:23]")
        a("v_pk_add_f32 v[24:25], v[24:25], v[28:29]")
        a("v_pk_add_f32 v[16:17], v[24:25], v[20:21]")
        a(f"v_mul_f32 v16, {hx(1.0 / 576)}, v16")
        a(f"v_mul_f32 v17, {hx(1.0 / 576)}, v17")
        a("v_fma_f32 v17, -v16, v16, v17")
        rb("v18", "v16")
        a("v_max_f32 v17, 0, v17")
        a("v_sub_f32 v16, v16, v18")
        rb("v19", "v17")
        for r in range(2):
            a(f"v_sub_f32 v{20 + r}, v{12 + r}, v18")
        a(f"v_add_f32 v19, {hx(1e-5)}, v19")
        for r in range(2, 4):
            a(f"v_sub_f32 v{20 + r}, v{12 + r}, v18")
        rb("v19", "v19")
        a("v_sqrt_f32 v19, v19")
        for r in range(2):
            rb(f"v{20 + r}", f"v{20 + r}")
        rb("v19", "v19")
        a("v_rcp_f32 v19, v19")
        for r in range(2, 4):
            rb(f"v{20 + r}", f"v{20 + r}")
        a("v_mul_f32 v17, v17, v19")
        a("v_mul_f32 v16, v16, v19")
        a("v_mul_f32 v17, v17, v19")
        rb("v16", "v16")
        rb("v17", "v17")
        a("v_mul_f32 v20, v20, v19")
        a(f"v_add_f32 v17, {hx(1e-5)}, v17")
        a("v_mul_f32 v21, v21, v19")
        rb("v17", "v17")
        a("v_sqrt_f32 v17, v17")
        a("v_mul_f32 v22, v22, v19")
        a("v_mul_f32 v23, v23, v19")
        rb("v17", "v17")
        a("v_rcp_f32 v17, v17")
        for r in range(4):
            rb(f"v{20 + r}", f"v{20 + r}")
        for r in range(4):
            a(f"v_sub_f32 v{20 + r}, v{20 + r}, v16")
        for r in range(4):
            rb(f"v{20 + r}", f"v{20 + r}")
        for r in range(4):
            a(f"v_mul_f32 v{20 + r}, v{20 + r}, v17")
        for r in range(4):
            rb(f"v{20 + r}", f"v{20 + r}")
        for r in range(4):
            a(f"v_ashrrev_i32 v{44 + r}, 31, v{20 + r}")
            a(f"v_bfe_u32 v{24 + r}, v{20 + r}, 15, 16")
        for r in range(4):
            a(f"v_and_b32 v{44 + r}, s56, v{44 + r}")
        for r in range(4):
            a(f"v_add3_u32 v{44 + r}, v{44 + r}, v{24 + r}, s54")
        for r in range(4):
            a(f"ds_read_u16_d16_hi v{48 + r}, v{44 + r}")
        for r in range(4):
            a(f"v_subrev_u32 v{24 + r}, {2 * TAB_LO}, v{24 + r}")
        for r in range(4):
            a(f"v_cmp_le_u32 s[{90 + 2 * r}:{91 + 2 * r}], s56, v{24 + r}")
        a("s_and_b64 s[90:91], s[90:91], s[88:89]")
        a("s_and_b64 s[92:93], s[92:93], s[88:89]")
        a("s_and_b64 s[94:95], s[94:95], s[58:59]")
        a("s_and_b64 s[96:97], s[96:97], s[58:59]")
        a("s_or_b64 s[86:87], s[90:91], s[92:93]")
        a("s_or_b64 s[86:87], s[86:87], s[94:95]")
        a("s_or_b64 s[86:87], s[86:87], s[96:97]")
        a("s_cbranch_scc1 L_slow")
        a("L_slow_ret:")
        a("s_waitcnt lgkmcnt(0)")
        for r in range(4):
            a(f"v_add_f32 v{12 + r}, v{12 + r}, v{48 + r}")
        a("v_cvt_pk_bf16_f32 v16, v12, v13")
        a("v_cvt_pk_bf16_f32 v17, v14, v15")
        a("s_mov_b64 exec, 0xffff")
        if self.dry:
            a("s_cmp_lg_u32 s98, 0")
            a("s_cbranch_scc1 L_final_real")
        if self.qprobe:
            a("s_cmp_eq_u32 s3, 0")
            a("s_cbranch_scc0 L_probe_done")
            a("s_memrealtime s[86:87]")
            a("s_waitcnt lgkmcnt(0)")
            a("s_sub_u32 s86, s86, s70")
            a(f"s_cmp_lt_u32 s86, {self.qprobe}")
            a("s_cbranch_scc0 L_probe_done")
            a("L_probe:")
            a("s_memrealtime s[86:87]")
            a("s_waitcnt lgkmcnt(0)")
            a("s_sub_u32 s86, s86, s70")
            a("s_cmp_lt_u32 s86, 6000")
            a("s_cbranch_scc1 L_probe")
            a("L_probe_done:")
        if self.probe:
            i, d = self.probe
            a("s_cmp_eq_u32 s3, 0")
            a("s_cbranch_scc0 L_probe_done")
            a("L_probe:")
            a("s_memrealtime s[86:87]")
            a("s_waitcnt lgkmcnt(0)")
            a(f"s_sub_u32 s86, s86, s{70 + 2 * i}")
            a(f"s_cmp_lt_u32 s86, {d}")
            a("s_cbranch_scc1 L_probe")
            a("L_probe_done:")
        a("buffer_store_dwordx2 v[16:17], v3, s[8:11], s52 offen")
        a("s_mov_b64 exec, 0xffff0000")
        a("buffer_store_dword v16, v3, s[8:11], s52 offen")
        a("s_mov_b64 exec, -1")
        self.stamp(6)
        a("s_or_b32 s48, s46, s3")
        a("s_cmp_eq_u32 s48, 0")
        a("s_cbranch_scc0 L_noepoch")
        a("v_mov_b32 v16, s55")
        a("s_mov_b64 exec, 1")
        a(f"buffer_store_dword v16, v2, s[12:15], 0 offen offset:{EPOCH} sc1")
        a("s_mov_b64 exec, -1")
        a("L_noepoch:")
        if self.dbg:
            a("s_cmp_eq_u32 s3, 0")
            a("s_cbranch_scc0 L_end")
            a("s_waitcnt lgkmcnt(0)")
            self.srd(4, 38, 256)
            a("s_lshl_b32 s48, s46, 5")
            a("s_mov_b64 exec, 1")
            for i in range(1, 7):
                a(f"s_sub_u32 s49, s{70 + 2 * i}, s70")
                a("v_mov_b32 v16, s49")
                a(f"buffer_store_dword v16, v2, s[4:7], s48 offen offset:{4 * i}")
            a("s_mov_b64 exec, -1")
        if self.stamps:
            a("s_cmp_eq_u32 s3, 1")
            a("s_cbranch_scc0 L_end")
            self.stamp_flush(5, 6, 16)
        a("L_end:")
        a("s_endpgm")

    def slow(self):
        a = self.a
        rb = self.rb
        a("L_slow:")
        if self.dry:
            a("s_cmp_lg_u32 s98, 0")
            a("s_cbranch_scc1 L_slow_ret")
        self.gelu_consts(28)
        a("s_load_dword s69, s[34:35], 0")
        a("v_lshlrev_b32 v1, 4, v0")
        a("s_waitcnt lgkmcnt(0)")
        a("s_lshl_b32 s69, s69, 16")
        for r in range(4):
            m = f"s[{90 + 2 * r}:{91 + 2 * r}]"
            a(f"L_slow_r{r}:")
            a(f"s_cmp_eq_u64 {m}, 0")
            a(f"s_cbranch_scc1 L_slow_n{r}")
            a(f"s_ff1_i32_b64 s54, {m}")
            a(f"s_bitset0_b64 {m}, s54")
            a(f"v_readlane_b32 s58, v{20 + r}, s54")
            a("v_mov_b32 v26, 0")
            a("v_mov_b32 v27, 0")
            a("s_mov_b32 s53, 0")
            a(f"L_slow_l{r}:")
            for sp, dst in ((28, 64), (30, 68), (32, 72)):
                self.srd(4, sp, 9216)
                a(f"buffer_load_dwordx4 v[{dst}:{dst + 3}], v1, s[4:7], s53 offen")
            a("s_waitcnt vmcnt(0)")
            for (src, out) in ((64, 80), (68, 88), (72, 96)):
                for k in range(4):
                    a(f"v_lshlrev_b32 v{out + 2 * k}, 16, v{src + k}")
                    a(f"v_and_b32 v{out + 2 * k + 1}, 0xffff0000, v{src + k}")
            items = [(80 + 2 * i, 88 + 2 * i, 96 + 2 * i, 104 + 4 * i, 106 + 4 * i) for i in range(4)]
            self.gelu_pk(items, 28, 30, 32, 26, "s[58:59]")
            a("s_add_u32 s53, s53, 1024")
            a("s_cmp_lt_u32 s53, 9216")
            a(f"s_cbranch_scc1 L_slow_l{r}")
            a("v_add_f32 v26, v26, v27")
            self.red16("v_add_f32", "v26")
            self.xrow(16, "v_add_f32", "v26", "v27")
            self.xrow(32, "v_add_f32", "v26", "v27")
            rb("v26", "v26")
            a("v_add_f32 v26, s69, v26")
            rb("v26", "v26")
            a("s_lshl_b64 exec, 1, s54")
            a(f"v_mov_b32 v{48 + r}, v26")
            a("s_mov_b64 exec, -1")
            a(f"s_branch L_slow_r{r}")
            a(f"L_slow_n{r}:")
        a("s_branch L_slow_ret")
        a("L_code_end:")

    def build(self):
        a = self.a
        a.raw(f"; @launch grid=(256,1,1) block=(512,1,1) lds={LDS_BYTES}")
        a.raw('.amdgcn_target "amdgcn-amd-amdhsa--gfx950"')
        a.raw(".text")
        a.raw(f".globl {NAME}_kernel")
        a.raw(".p2align 8")
        a.raw(f".type {NAME}_kernel,@function")
        a.raw(f"{NAME}_kernel:")
        self.prologue()
        self.helper_start()
        self.stream()
        self.qphase()
        self.table()
        self.owner()
        self.final()
        self.slow()
        a.raw('.section .rodata,"a"')
        a.raw(".p2align 6")
        a.raw(f".amdhsa_kernel {NAME}_kernel")
        a.raw("  .amdhsa_next_free_vgpr 256")
        a.raw("  .amdhsa_next_free_sgpr 102")
        a.raw("  .amdhsa_accum_offset 256")
        a.raw("  .amdhsa_group_segment_fixed_size 0")
        a.raw("  .amdhsa_kernarg_size 104")
        a.raw("  .amdhsa_user_sgpr_count 2")
        a.raw("  .amdhsa_user_sgpr_kernarg_segment_ptr 1")
        a.raw("  .amdhsa_system_sgpr_workgroup_id_x 1")
        a.raw("  .amdhsa_float_denorm_mode_32 3")
        a.raw(".end_amdhsa_kernel")
        return a.finish()


HEADER = open("cdna_kernels/" + NAME + ".s.ref").read().split("; Override launch geometry")[0]

if __name__ == "__main__":
    out = sys.argv[1] if len(sys.argv) > 1 else "k.s"
    kw = eval(sys.argv[2]) if len(sys.argv) > 2 else {}
    open(out, "w").write(HEADER + Gen(**kw).build())
```

```python
import struct
import sys
from asmlib import Asm

NAME = "sequential_preLN__gqa_block_cached__mixer_token_mlp__decode"

EPOCH = 0
QX = 0x10000
E1 = 0x60000
FIN = 0xC0000
TAB = 0xE0000
XI = 0xE8000
STAMP = 0x100000
WS_SPAN = 0x200000
L_Q = 0
L_TAG = 512
L_CNT = 520
L_FLAG = 524
L_CNT2 = 528
L_DONE = 532
L_NEXT = 536
L_SAME = 540
L_TP = 576
L_TY = 928
L_P = 1024
L_PS = 5120
L_ST = 7168
L_KR = 7424
L_U = L_KR + 4 * 8 * 4096
L_R = L_U
L_TAB = L_U
LDS_BYTES = L_U + 18432

TAB_LO = 0x3900
TAB_N = 2304
TPW = 21
LOG2E = 1.4426950408889634
BETA = 0.7978845608028654
C0 = -2.0 * BETA * LOG2E
C1 = C0 * 0.044715
FINAL_WG = (4, 133)
KREG = 64
VRING = 128
W1, B1, W2 = 36, 56, 76
SPIN = 0x100000


def f2u(x):
    return struct.unpack("<I", struct.pack("<f", x))[0]


def hx(x):
    return hex(f2u(x))


class Gen:
    def __init__(self, Tn=66, To=50, stamps=False, dbg=False, ring=8, pre_throttle=8, first_tiles=1,
                 q_sleep0=32, q_sleep=4, tail_sleep=0, prio=0, hprio=3, code_pf=True, mimic=True, mlp_pol="",
                 b0=1, no_mlp=False, no_wo=False, no_table=False, h0_mlp_late=True, tprio=1, trace=False, look=2, mlp_delay=0, gather_sleep0=64, gather_sleep=32, dynprio=True, early=True, h0_mlp_early=True, done_sleep=1, h0_first=True, half_thr=4, pollcnt=False, no_qwait=False, kvpol=' nt', kpol=None, vpol=None, dry=True, odiag=False, probe=None, qprobe=None, b0_early=False, b0_fast=True, h_delay=0, fdiag=False, xthr=None, xmid=None, remap=True, xlocal=True, roll=True, spec=True):
        self.__dict__.update(locals())
        self.a = Asm()

    def stamp(self, i):
        if self.stamps or self.dbg or self.probe or self.qprobe:
            self.a(f"s_memrealtime s[{70 + 2 * i}:{71 + 2 * i}]")

    def stamp_flush(self, first, last, slot_base):
        if not self.stamps:
            return
        a = self.a
        a("s_waitcnt lgkmcnt(0)")
        a("s_mov_b64 exec, 1")
        a("s_lshl_b32 s48, s2, 8")
        a(f"s_add_u32 s48, s48, {STAMP}")
        a("v_mov_b32 v60, 0")
        for i in range(first, last + 1):
            a(f"v_mov_b32 v62, s{70 + 2 * i}")
            a(f"v_mov_b32 v63, s{71 + 2 * i}")
            a(f"buffer_store_dwordx2 v[62:63], v60, s[12:15], s48 offen offset:{(slot_base + i) * 8}")
            a("s_nop 1")
        a("s_mov_b64 exec, -1")

    def trace_pt(self):
        if not self.trace:
            return
        a = self.a
        a("s_memrealtime s[96:97]")
        a("s_waitcnt lgkmcnt(0)")
        a("s_mov_b32 m0, s59")
        a("v_writelane_b32 v58, s96, m0")
        a("s_add_u32 s59, s59, 1")

    def rb(self, dst, src):
        self.a(f"v_cvt_pk_bf16_f32 {dst}, 0, {src}")

    def srd(self, base, ptr, size):
        a = self.a
        a(f"s_mov_b32 s{base}, s{ptr}")
        a(f"s_mov_b32 s{base + 1}, s{ptr + 1}")
        a(f"s_mov_b32 s{base + 2}, {size}")
        a(f"s_mov_b32 s{base + 3}, 0x20000")

    def dpp(self, op, v, ctrl):
        self.a(f"{op}_dpp {v}, {v}, {v} {ctrl} row_mask:0xf bank_mask:0xf")

    def red8(self, op, v):
        for c in ("quad_perm:[1,0,3,2]", "quad_perm:[2,3,0,1]", "row_half_mirror"):
            self.dpp(op, v, c)

    def red16(self, op, v):
        self.red8(op, v)
        self.dpp(op, v, "row_ror:8")

    def xrow(self, n, op, v, t):
        self.a(f"v_mov_b32 {t}, {v}")
        self.a(f"v_permlane{n}_swap_b32 {v}, {t}")
        self.a(f"{op} {v}, {v}, {t}")

    def pack3(self, d, s):
        for i in range(3):
            self.a(f"v_perm_b32 v{d + i}, v{s + i}, v{s + 3}, s{64 + i}")

    def unpack4th(self, g):
        self.a(f"v_perm_b32 v{g + 3}, v{g + 2}, v{g + 1}, s67")
        self.a(f"v_perm_b32 v{g + 3}, v{g + 3}, v{g}, s68")

    def masks(self, base, t0, t1):
        a = self.a
        a(f"v_and_b32 v{t0}, 1, v0")
        a(f"v_cmp_eq_u32 vcc, 1, v{t0}")
        a(f"v_mov_b32 v{t0}, 0xffff")
        a(f"v_mov_b32 v{t1}, 0xffff0000")
        a(f"v_cndmask_b32 v{t0}, v{t0}, v{t1}, vcc")
        a(f"v_bfe_u32 v{t1}, v0, 1, 2")
        for q in range(4):
            a(f"v_cmp_eq_u32 vcc, {q}, v{t1}")
            a(f"v_cndmask_b32 v{base + q}, 0, v{t0}, vcc")

    def tags_bad(self, regs, acc, t):
        a = self.a
        a(f"v_xor_b32 v{acc}, s47, v{regs[0]}")
        for r in regs[1:]:
            a(f"v_xor_b32 v{t}, s47, v{r}")
            a(f"v_or_b32 v{acc}, v{acc}, v{t}")
        a(f"v_cmp_ne_u32 vcc, 0, v{acc}")

    def retry(self, loop, sleep, cnt="s50"):
        a = self.a
        if sleep:
            a(f"s_sleep {sleep}")
        a(f"s_add_u32 {cnt}, {cnt}, 1")
        a(f"s_cmp_lt_u32 {cnt}, {SPIN}")
        a(f"s_cbranch_scc1 {loop}")

    def wait_flag(self, name, vz, vt, off=L_FLAG, sleep=1):
        a = self.a
        a("s_mov_b32 s50, 0")
        a(f"L_{name}:")
        a(f"ds_read_b32 v{vt}, v{vz} offset:{off}")
        a("s_waitcnt lgkmcnt(0)")
        a(f"v_readfirstlane_b32 s48, v{vt}")
        a("s_cmp_lg_u32 s48, 0")
        a(f"s_cbranch_scc1 L_{name}_ok")
        if sleep:
            a(f"s_sleep {sleep}")
        a("s_add_u32 s50, s50, 1")
        a(f"s_cmp_lt_u32 s50, {SPIN * 16}")
        a(f"s_cbranch_scc1 L_{name}")
        a(f"L_{name}_ok:")

    def gelu_pk(self, items, c0, c1, one, acc, sa):
        a = self.a
        P = lambda r: f"v[{r}:{r + 1}]"

        def rnd(sel):
            if self.mimic:
                for it in items:
                    r = it[sel]
                    self.rb(f"v{r}", f"v{r}")
                    self.rb(f"v{r + 1}", f"v{r + 1}")

        for (w1, b1, w2, u, t) in items:
            a(f"v_pk_mul_f32 {P(u)}, {sa}, {P(w1)} op_sel_hi:[0,1]")
        rnd(3)
        for (w1, b1, w2, u, t) in items:
            a(f"v_pk_add_f32 {P(u)}, {P(u)}, {P(b1)}")
        rnd(3)
        for (w1, b1, w2, u, t) in items:
            a(f"v_pk_mul_f32 {P(t)}, {P(u)}, {P(u)}")
        for (w1, b1, w2, u, t) in items:
            a(f"v_pk_fma_f32 {P(t)}, {P(t)}, {P(c1)}, {P(c0)}")
        for (w1, b1, w2, u, t) in items:
            a(f"v_pk_mul_f32 {P(t)}, {P(t)}, {P(u)}")
        for (w1, b1, w2, u, t) in items:
            a(f"v_exp_f32 v{t}, v{t}")
            a(f"v_exp_f32 v{t + 1}, v{t + 1}")
        for (w1, b1, w2, u, t) in items:
            a(f"v_pk_add_f32 {P(t)}, {P(t)}, {P(one)}")
        for (w1, b1, w2, u, t) in items:
            a(f"v_rcp_f32 v{t}, v{t}")
            a(f"v_rcp_f32 v{t + 1}, v{t + 1}")
        for (w1, b1, w2, u, t) in items:
            a(f"v_pk_mul_f32 {P(t)}, {P(t)}, {P(u)}")
        rnd(4)
        for (w1, b1, w2, u, t) in items:
            a(f"v_pk_fma_f32 {P(acc)}, {P(t)}, {P(w2)}, {P(acc)}")

    def gelu_consts(self, base):
        for i in range(2):
            self.a(f"v_mov_b32 v{base + i}, {hx(C0)}")
            self.a(f"v_mov_b32 v{base + 2 + i}, {hx(C1)}")
            self.a(f"v_mov_b32 v{base + 4 + i}, 1.0")

    def issue_mlp(self, ndw, rawofs):
        a = self.a
        if self.no_mlp:
            return
        a("v_lshlrev_b32 v1, 4, v0")
        a("v_lshlrev_b32 v2, 3, v0")
        for sp, D in ((28, W1), (30, B1), (32, W2)):
            dst = D + rawofs
            self.srd(4, sp, 9216)
            o = 0
            while o < ndw:
                n = 4 if ndw - o >= 4 else 2
                a(f"buffer_load_dwordx{n} v[{dst + o}:{dst + o + n - 1}], v{1 if n == 4 else 2}, s[4:7], s48 offen offset:{256 * o}{self.mlp_pol}")
                o += n

    def unpack_mlp(self, ndw, rawofs):
        a = self.a
        for D in (W1, B1, W2):
            for i in range(ndw):
                src = D + rawofs + i
                for j in range(i + 1, ndw):
                    assert D + rawofs + j not in (D + 2 * i, D + 2 * i + 1)
                assert D + 2 * i != src
                a(f"v_lshlrev_b32 v{D + 2 * i}, 16, v{src}")
                a(f"v_and_b32 v{D + 2 * i + 1}, 0xffff0000, v{src}")

    def load_wo(self, label, after):
        a = self.a
        a("s_cmp_eq_u32 s45, 0")
        a(f"s_cbranch_scc1 {label}")
        if self.no_wo:
            a(f"s_branch {after}")
            a(f"{label}:")
            return
        self.srd(8, 24, 4718592)
        a("s_lshl_b32 s48, s43, 1")
        a("s_add_u32 s48, s48, s42")
        a(f"s_mul_i32 s48, s48, {128 * 1152}")
        a(f"s_mul_i32 s49, s56, {32 * 1152}")
        a("s_add_u32 s48, s48, s49")
        a("v_lshrrev_b32 v1, 4, v0")
        a(f"v_mul_u32_u24 v1, {4 * 1152}, v1")
        a("v_and_b32 v2, 15, v0")
        a("v_lshl_add_u32 v1, v2, 4, v1")
        for u in range(2):
            for e in range(4):
                a(f"s_add_u32 s49, s48, {(16 * u + e) * 1152}")
                for cg in range(4):
                    r = 96 + 4 * (5 * (4 * u + e) + cg)
                    a(f"buffer_load_dwordx4 v[{r}:{r + 3}], v1, s[8:11], s49 offen offset:{256 * cg} nt")
        a("s_mov_b32 exec_lo, 0x00ff00ff")
        a("s_mov_b32 exec_hi, 0x00ff00ff")
        for u in range(2):
            for e in range(4):
                a(f"s_add_u32 s49, s48, {(16 * u + e) * 1152}")
                r = 96 + 4 * (5 * (4 * u + e) + 4)
                a(f"buffer_load_dwordx4 v[{r}:{r + 3}], v1, s[8:11], s49 offen offset:1024 nt")
        a("s_mov_b64 exec, -1")
        a(f"s_branch {after}")
        a(f"{label}:")

    def prologue(self):
        a = self.a
        Tn, To = self.Tn, self.To
        self.stamp(0)
        if self.stamps:
            for i in range(72, 86, 2):
                a(f"s_mov_b64 s[{i}:{i + 1}], 0")
        a("s_cmp_ge_u32 s2, 256")
        a("s_cbranch_scc1 L_end")
        a("s_load_dwordx16 s[16:31], s[0:1], 0")
        a("s_load_dwordx8 s[32:39], s[0:1], 64")
        a("s_load_dwordx2 s[40:41], s[0:1], 96")
        a("v_lshrrev_b32 v1, 6, v0")
        a("v_and_b32 v0, 63, v0")
        a("s_lshr_b32 s42, s2, 7")
        a("v_readfirstlane_b32 s3, v1")
        if self.remap:
            a("s_and_b32 s43, s2, 15")
            a("s_bfe_u32 s44, s2, 0x30004")
            a("s_lshl_b32 s2, s42, 4")
            a("s_add_u32 s2, s2, s43")
            a("s_lshl_b32 s2, s2, 3")
            a("s_add_u32 s2, s2, s44")
        else:
            a("s_bfe_u32 s43, s2, 0x40003")
            a("s_and_b32 s44, s2, 7")
        if self.b0_early or self.b0_fast:
            self.lds_init()
        a("s_mov_b32 s7, 0x20000")
        a("s_mov_b32 s11, 0x20000")
        a("s_cmp_eq_u32 s3, 4")
        a("s_cbranch_scc1 L_h0_start")
        a("s_and_b32 s48, s43, 7")
        a("s_cmp_eq_u32 s44, s48")
        a(f"s_cselect_b32 s49, {To}, {Tn}")
        a("s_cmp_gt_u32 s44, s48")
        a(f"s_cselect_b32 s50, {Tn - To}, 0")
        a(f"s_mul_i32 s51, s44, {Tn}")
        a("s_sub_u32 s51, s51, s50")
        a("s_lshr_b32 s52, s2, 3")
        a("s_lshl_b32 s52, s52, 9")
        a("s_add_u32 s52, s52, s51")
        a("s_add_u32 s6, s52, s49")
        a("s_lshl_b32 s6, s6, 12")
        a("s_mov_b32 s10, s6")
        a("s_lshl_b32 s51, s52, 12")
        a("s_add_u32 s52, s52, s3")
        a("s_lshl_b32 s52, s52, 12")
        a("v_lshlrev_b32 v2, 4, v0")
        a("v_lshrrev_b32 v1, 4, v0")
        a("v_lshlrev_b32 v1, 6, v1")
        a("v_xor_b32 v60, v2, v1")
        for c in range(1, 4):
            a(f"v_xor_b32 v{60 + c}, {16 * c}, v60")
        a("s_lshl_b32 s56, s3, 15")
        a(f"s_add_u32 s56, s56, {L_KR}")
        a("s_cmp_gt_u32 s3, 4")
        a("s_waitcnt lgkmcnt(0)")
        a("s_mov_b32 s4, s18")
        a("s_mov_b32 s5, s19")
        a("s_mov_b32 s8, s20")
        a("s_mov_b32 s9, s21")
        if self.b0_early or self.b0_fast:
            a("s_barrier")
        a("s_cbranch_scc1 L_join")
        if not self.h0_first or self.b0_early or self.b0_fast:
            self.issue_tile(0, grab=False)
        a("s_branch L_join")
        a("L_h0_start:")
        a(f"s_setprio {self.hprio}")
        a("v_mov_b32 v2, 0")
        for c in range(4):
            a(f"v_mov_b32 v{60 + c}, 0")
        a("v_lshrrev_b32 v8, 5, v0")
        a("v_mul_u32_u24 v8, 1152, v8")
        a("v_and_b32 v10, 31, v0")
        a("v_mul_u32_u24 v10, 36, v10")
        a("v_add_u32 v8, v8, v10")
        a("v_lshrrev_b32 v9, 4, v0")
        a(f"v_mul_u32_u24 v9, {18 * 8192}, v9")
        a("v_and_b32 v10, 15, v0")
        a("v_lshl_add_u32 v9, v10, 4, v9")
        a("s_lshl_b32 s48, s43, 1")
        a("s_add_u32 s48, s48, s42")
        a("s_lshl_b32 s48, s48, 8")
        a(f"s_mul_i32 s49, s44, {72 * 8192}")
        a("s_add_u32 s48, s48, s49")
        a("s_mov_b32 s6, 2304")
        a("s_mov_b32 s10, 4718592")
        a("s_waitcnt lgkmcnt(0)")
        a("s_mov_b32 s4, s16")
        a("s_mov_b32 s5, s17")
        a("s_mov_b32 s8, s22")
        a("s_mov_b32 s9, s23")
        if self.b0_early:
            a("s_barrier")
        a("buffer_load_dwordx4 v[12:15], v8, s[4:7], 0 offen")
        a("buffer_load_dwordx4 v[16:19], v8, s[4:7], 0 offen offset:16")
        a("buffer_load_dword v20, v8, s[4:7], 0 offen offset:32")
        for t in range(18):
            a(f"buffer_load_dwordx4 v[{96 + 4 * t}:{99 + 4 * t}], v9, s[8:11], s48 offen nt")
            if t < 17:
                a("s_add_u32 s48, s48, 8192")
        if self.b0_fast and not self.b0_early:
            a("s_barrier")
        a(f"s_load_dword s55, s[40:41], {EPOCH}")
        a("L_join:")
        if not (self.b0_early or self.b0_fast):
            self.lds_init()
        a("s_and_b32 s48, s43, 7")
        a("s_cmp_eq_u32 s44, s48")
        a("s_cselect_b32 s45, 1, 0")
        a(f"s_mov_b32 s14, {WS_SPAN}")
        a("s_mov_b32 s15, 0x20000")
        self.consts()
        if not self.b0_fast:
            a("s_waitcnt lgkmcnt(0)")
        a("s_mov_b32 s12, s40")
        a("s_mov_b32 s13, s41")
        if not (self.b0_early or self.b0_fast):
            a("s_barrier")
        a("s_cmp_lt_u32 s3, 4")
        a("s_cbranch_scc1 L_stream")

    def lds_init(self):
        a = self.a
        for i in range(4):
            a(f"v_mov_b32 v{4 + i}, 0")
        a("v_mov_b32 v66, 4")
        a("v_mov_b32 v64, 0")
        a("v_mov_b32 v65, 0")
        a(f"ds_write_b128 v4, v[4:7] offset:{L_CNT - 8}")
        a(f"ds_write_b96 v4, v[64:66] offset:{L_CNT2}")

    def consts(self):
        a = self.a
        a("s_mov_b32 s46, 0")
        a(f"s_cmp_eq_u32 s2, {FINAL_WG[0]}")
        a("s_cselect_b32 s46, 1, s46")
        a(f"s_cmp_eq_u32 s2, {FINAL_WG[1]}")
        a("s_cselect_b32 s46, 2, s46")
        a("s_mov_b32 s60, 0x00ff00ff")
        a("s_mov_b32 s61, 0xff00ff00")
        a(f"s_mov_b32 s62, {hx(LOG2E)}")
        a(f"s_mov_b32 s63, {hx(128 ** -0.5)}")
        a("s_mov_b32 s64, 0x07060501")
        a("s_mov_b32 s65, 0x07060502")
        a("s_mov_b32 s66, 0x07060503")
        a("s_mov_b32 s67, 0x04000c0c")
        a("s_mov_b32 s68, 0x0706000c")
        a("s_mov_b32 s98, 0")

    def helper_start(self):
        a = self.a
        a(f"s_setprio {self.hprio}")
        a("s_sub_u32 s56, s3, 4")
        a("s_load_dword s69, s[34:35], 0")
        a("s_cmp_eq_u32 s56, 0")
        a("s_cbranch_scc1 L_qphase")
        if self.h_delay:
            a(f"s_sleep {self.h_delay}")
        if self.code_pf:
            a("s_getpc_b64 s[50:51]")
            a("L_pc:")
            a(f"s_sub_u32 s50, s50, L_pc-{NAME}_kernel")
            a("s_subb_u32 s51, s51, 0")
            a("s_sub_u32 s48, s56, 1")
            a("s_lshl_b32 s48, s48, 13")
            a("v_lshlrev_b32 v1, 7, v0")
            a("v_add_u32 v1, s48, v1")
            a(f"v_min_u32 v1, L_code_end-{NAME}_kernel-4, v1")
            a("global_load_dword v8, v1, s[50:51]")
        self.load_wo("L_nowo_a", "L_pre_b2")
        for _ in range(self.mlp_delay):
            a("s_sleep 16")
        a("s_mul_i32 s48, s56, 2560")
        a("s_sub_u32 s48, s48, 1024")
        self.issue_mlp(10, 10)
        a("s_waitcnt vmcnt(0)")
        self.unpack_mlp(10, 10)
        a("s_branch L_table")

    def qphase(self):
        a = self.a
        rb = self.rb
        X = 168
        a("L_qphase:")
        nm = 0
        self.masks(4, 22, 23)
        a("s_waitcnt vmcnt(18) lgkmcnt(0)")
        self.stamp(7)
        for k in range(9):
            a(f"v_lshlrev_b32 v{X + 2 * k}, 16, v{12 + k}")
            a(f"v_and_b32 v{X + 1 + 2 * k}, 0xffff0000, v{12 + k}")
        a("s_add_u32 s55, s55, 1")
        a("s_mul_i32 s47, s55, 0x9E3779B1")
        a(f"v_add_f32 v22, v{X}, v{X + 1}")
        a(f"v_add_f32 v23, v{X + 2}, v{X + 3}")
        for k in range(4, 18, 2):
            a(f"v_add_f32 v22, v22, v{X + k}")
            a(f"v_add_f32 v23, v23, v{X + k + 1}")
        a("v_add_f32 v22, v22, v23")
        self.red16("v_add_f32", "v22")
        self.xrow(16, "v_add_f32", "v22", "v23")
        a(f"v_mul_f32 v22, {hx(1.0 / 576)}, v22")
        a("v_mov_b32 v24, 0")
        a("v_mov_b32 v25, 0")
        for k in range(0, 18, 2):
            a(f"v_sub_f32 v23, v{X + k}, v22")
            a(f"v_sub_f32 v26, v{X + k + 1}, v22")
            a("v_fmac_f32 v24, v23, v23")
            a("v_fmac_f32 v25, v26, v26")
        a("v_add_f32 v24, v24, v25")
        self.red16("v_add_f32", "v24")
        self.xrow(16, "v_add_f32", "v24", "v23")
        a(f"v_mul_f32 v24, {hx(1.0 / 576)}, v24")
        rb("v22", "v22")
        rb("v24", "v24")
        a(f"v_add_f32 v24, {hx(1e-5)}, v24")
        rb("v24", "v24")
        a("v_sqrt_f32 v24, v24")
        for k in range(18):
            a(f"v_sub_f32 v{X + k}, v{X + k}, v22")
        rb("v24", "v24")
        a("v_rcp_f32 v24, v24")
        for k in range(18):
            rb(f"v{X + k}", f"v{X + k}")
        for k in range(18):
            a(f"v_mul_f32 v{X + k}, v{X + k}, v24")
        for k in range(9):
            a(f"v_cvt_pk_bf16_f32 v{12 + k}, v{X + 2 * k}, v{X + 1 + 2 * k}")
        a("v_bfe_u32 v1, v0, 3, 1")
        a("v_lshlrev_b32 v1, 5, v1")
        a("v_lshrrev_b32 v2, 4, v0")
        a("v_add_u32 v1, v1, v2")
        a("s_lshl_b32 s48, s44, 2")
        a("v_add_lshl_u32 v1, v1, s48, 2")
        for k in range(9):
            a(f"ds_bpermute_b32 v{24 + k}, v1, v{12 + k}")
        a("s_mov_b32 s48, 0x01000100")
        a("s_mov_b32 s49, 0x03020302")
        a("s_waitcnt lgkmcnt(0)")
        for t in range(18):
            ab = 36 + 4 * (t & 1)
            a(f"v_perm_b32 v33, v{24 + t // 2}, v{24 + t // 2}, s{48 + (t & 1)}")
            for q in range(4):
                a(f"v_and_b32 v{ab + q}, v33, v{4 + q}")
            a(f"s_waitcnt vmcnt({17 - t})")
            c = "0" if t == 0 else "v[8:11]"
            a(f"v_mfma_f32_16x16x32_bf16 v[8:11], v[{ab}:{ab + 3}], v[{96 + 4 * t}:{99 + 4 * t}], {c}")
        a("s_lshl_b32 s48, s43, 14")
        a("s_lshl_b32 s49, s42, 12")
        a("s_add_u32 s49, s49, s48")
        a("s_lshl_b32 s50, s44, 9")
        a("s_add_u32 s49, s49, s50")
        a(f"s_add_u32 s49, s49, {QX}")
        a("v_lshrrev_b32 v1, 5, v0")
        a("v_lshlrev_b32 v1, 13, v1")
        a("v_and_b32 v2, 31, v0")
        a("v_lshl_add_u32 v1, v2, 4, v1")
        a("v_mov_b32 v15, s47")
        self.pack3(12, 8)
        a("buffer_store_dwordx4 v[12:15], v1, s[12:15], s49 offen sc1")
        self.stamp(1)
        if self.xlocal:
            a("s_getreg_b32 s99, hwreg(HW_REG_XCC_ID, 0, 4)")
            a("s_lshl_b32 s57, s43, 8")
            a(f"s_add_u32 s57, s57, {XI}")
            a("v_lshlrev_b32 v44, 7, v0")
            a("s_cmp_eq_u32 s45, 0")
            a("s_cbranch_scc1 L_noxi")
            a("v_mov_b32 v40, s99")
            a("v_mov_b32 v43, s47")
            a("s_lshl_b64 exec, 1, s42")
            a("buffer_store_dwordx4 v[40:43], v44, s[12:15], s57 offen sc1")
            a("s_mov_b64 exec, -1")
            a("L_noxi:")
        if self.h0_mlp_early:
            a("s_cmp_lg_u32 s45, 0")
            a("s_cbranch_scc1 L_h0_nomlp")
            a("s_mov_b32 s48, 0")
            self.issue_mlp(6, 14)
            a("L_h0_nomlp:")
        a("s_lshl_b32 s48, s43, 14")
        a("s_lshl_b32 s49, s42, 13")
        a("s_add_u32 s48, s48, s49")
        a(f"s_add_u32 s48, s48, {QX}")
        a("s_add_u32 s49, s48, 4096")
        a("v_lshlrev_b32 v1, 4, v0")
        a("s_mov_b32 s50, 0")
        if self.q_sleep0:
            a(f"s_sleep {self.q_sleep0}")
        a("L_qpoll:")
        for u in range(8):
            so = "s48" if u < 4 else "s49"
            a(f"buffer_load_dwordx4 v[{8 + 4 * u}:{11 + 4 * u}], v1, s[12:15], {so} offen offset:{1024 * (u & 3)} sc1")
        if self.xlocal:
            a("v_mov_b32 v43, s47")
            a("s_mov_b64 exec, 3")
            a("buffer_load_dwordx4 v[40:43], v44, s[12:15], s57 offen sc1")
            a("s_mov_b64 exec, -1")
        a("s_waitcnt vmcnt(0)")
        self.tags_bad([11 + 4 * u for u in range(8)] + ([43] if self.xlocal else []), 2, 3)
        a("s_cbranch_vccz L_qgot")
        self.retry("L_qpoll", self.q_sleep)
        a("L_qgot:")
        if self.pollcnt:
            a("s_mul_i32 s84, s50, 100")
            a("s_add_u32 s84, s84, s70")
            a("s_addc_u32 s85, s71, 0")
        for u in range(8):
            self.unpack4th(8 + 4 * u)
        for hh in range(2):
            for e in range(4):
                g = 8 + 16 * hh + e
                a(f"v_add_f32 v{g}, v{g}, v{g + 4}")
                a(f"v_add_f32 v{g + 8}, v{g + 8}, v{g + 12}")
            for e in range(4):
                g = 8 + 16 * hh + e
                a(f"v_add_f32 v{g}, v{g}, v{g + 8}")
        for e in range(4):
            a(f"v_permlane32_swap_b32 v{8 + e}, v{24 + e}")
        for e in range(4):
            a(f"v_add_f32 v{8 + e}, v{8 + e}, v{24 + e}")
        a("v_cvt_pk_bf16_f32 v12, v8, v9")
        a("v_cvt_pk_bf16_f32 v13, v10, v11")
        a("v_lshrrev_b32 v1, 5, v0")
        a("v_lshlrev_b32 v1, 8, v1")
        a("v_and_b32 v2, 15, v0")
        a("v_lshl_add_u32 v1, v2, 4, v1")
        a("v_bfe_u32 v2, v0, 4, 1")
        a("v_lshl_add_u32 v1, v2, 3, v1")
        a(f"ds_write_b64 v1, v[12:13] offset:{L_Q}")
        a("v_mov_b32 v14, s47")
        a("v_mov_b32 v15, s55")
        a("v_mov_b32 v2, 0")
        a("v_mov_b32 v3, 1")
        a(f"ds_write_b64 v2, v[14:15] offset:{L_TAG}")
        if self.xlocal:
            a("v_cmp_eq_u32 vcc, s99, v40")
            a("s_and_b32 s48, vcc_lo, 3")
            a("v_mov_b32 v16, s48")
            a(f"ds_write_b32 v2, v16 offset:{L_SAME}")
        a("s_waitcnt lgkmcnt(0)")
        a(f"ds_write_b32 v2, v3 offset:{L_FLAG}")
        self.stamp(2)
        self.load_wo("L_nowo_b", "L_pre_b2")
        if not self.h0_mlp_early:
            a("s_mov_b32 s48, 0")
            self.issue_mlp(6, 14)
            a("s_waitcnt vmcnt(0)")
        self.unpack_mlp(6, 14)

    def table(self):
        a = self.a
        rb = self.rb
        a("L_table:")
        a(f"s_setprio {self.tprio}")
        a("s_lshr_b32 s48, s2, 3")
        a("s_mul_i32 s48, s48, 7")
        a("s_add_u32 s48, s48, s44")
        a("s_and_b32 s49, s43, 7")
        a("s_cmp_gt_u32 s44, s49")
        a("s_cselect_b32 s49, 1, 0")
        a("s_sub_u32 s54, s48, s49")
        a(f"s_mul_i32 s53, s54, {TPW}")
        self.gelu_consts(28)
        a(f"s_mul_i32 s48, s56, {4 * TPW}")
        a("v_mov_b32 v3, s48")
        a(f"s_mov_b32 s57, {1 if self.no_table else TPW}")
        a("L_tloop:")
        a(f"s_cmp_ge_u32 s53, {TAB_N}")
        a(f"s_cselect_b32 s48, {0x8000 - TAB_N}, 0")
        a("s_add_u32 s48, s48, s53")
        a(f"s_add_u32 s48, s48, {TAB_LO}")
        a("s_lshl_b32 s58, s48, 16")
        a("v_mov_b32 v26, 0")
        a("v_mov_b32 v27, 0")
        for (p0, n) in ((0, 3), (3, 3), (6, 4)):
            if p0 == 6:
                a("s_cmp_eq_u32 s56, 0")
                a("s_cbranch_scc1 L_tskip")
            items = [(W1 + 2 * (p0 + i), B1 + 2 * (p0 + i), W2 + 2 * (p0 + i), 8 + 4 * i, 10 + 4 * i) for i in range(n)]
            self.gelu_pk(items, 28, 30, 32, 26, "s[58:59]")
        a("L_tskip:")
        a("v_add_f32 v26, v26, v27")
        self.red16("v_add_f32", "v26")
        self.xrow(16, "v_add_f32", "v26", "v27")
        self.xrow(32, "v_add_f32", "v26", "v27")
        a(f"ds_write_b32 v3, v26 offset:{L_TP}")
        a("v_add_u32 v3, 4, v3")
        a("s_add_u32 s53, s53, 1")
        a("s_sub_u32 s57, s57, 1")
        a("s_cmp_lg_u32 s57, 0")
        a("s_cbranch_scc1 L_tloop")
        a("v_mov_b32 v2, 0")
        self.wait_flag("tflag", 2, 8)
        a(f"ds_read_b64 v[10:11], v2 offset:{L_TAG}")
        a("v_mov_b32 v8, 1")
        a("s_mov_b64 exec, 1")
        a(f"ds_add_rtn_u32 v9, v2, v8 offset:{L_CNT}")
        a("s_mov_b64 exec, -1")
        a("s_waitcnt lgkmcnt(0)")
        a("v_readfirstlane_b32 s47, v10")
        a("v_readfirstlane_b32 s55, v11")
        a("v_readfirstlane_b32 s48, v9")
        a("s_cmp_eq_u32 s48, 3")
        a("s_cbranch_scc0 L_tdone")
        a("v_lshlrev_b32 v3, 2, v0")
        a(f"s_mov_b64 exec, {hex((1 << TPW) - 1)}")
        for w in range(4):
            a(f"ds_read_b32 v{8 + w}, v3 offset:{L_TP + 4 * TPW * w}")
        a("v_lshlrev_b32 v3, 1, v0")
        a("s_lshl_b32 s48, s69, 16")
        a("s_waitcnt lgkmcnt(0)")
        a("v_add_f32 v8, v8, v9")
        a("v_add_f32 v10, v10, v11")
        a("v_add_f32 v8, v8, v10")
        rb("v8", "v8")
        a("v_add_f32 v8, s48, v8")
        a("v_cvt_pk_bf16_f32 v8, v8, 0")
        a(f"ds_write_b16 v3, v8 offset:{L_TY}")
        a("s_mov_b64 exec, 15")
        a("v_mul_u32_u24 v3, 12, v0")
        a("s_waitcnt lgkmcnt(0)")
        for i in range(3):
            a(f"ds_read_b32 v{8 + i}, v3 offset:{L_TY + 4 * i}")
        a("v_mov_b32 v11, s47")
        a("v_lshlrev_b32 v3, 4, v0")
        a("s_lshl_b32 s48, s54, 6")
        a(f"s_add_u32 s48, s48, {TAB}")
        a("s_waitcnt lgkmcnt(0)")
        a("buffer_store_dwordx4 v[8:11], v3, s[12:15], s48 offen sc1")
        a("s_mov_b64 exec, -1")
        a("L_tdone:")
        self.stamp(3)
        a("s_cmp_eq_u32 s46, 0")
        a("s_cbranch_scc1 L_nogather")
        a("s_mul_i32 s48, s56, 3584")
        a(f"s_add_u32 s48, s48, {TAB}")
        a("v_lshlrev_b32 v1, 4, v0")
        a("s_mov_b32 s50, 0")
        a(f"s_sleep {self.gather_sleep0}")
        a("L_gpoll:")
        a("v_mov_b32 v23, s47")
        for u in range(3):
            a(f"buffer_load_dwordx4 v[{8 + 4 * u}:{11 + 4 * u}], v1, s[12:15], s48 offen offset:{1024 * u} sc1")
        a("s_mov_b32 exec_hi, 0")
        a("buffer_load_dwordx4 v[20:23], v1, s[12:15], s48 offen offset:3072 sc1")
        a("s_mov_b32 exec_hi, -1")
        a("s_waitcnt vmcnt(0)")
        self.tags_bad([11, 15, 19, 23], 2, 3)
        a("s_cbranch_vccz L_ggot")
        self.retry("L_gpoll", self.gather_sleep)
        a("L_ggot:")
        a("s_mul_i32 s48, s56, 224")
        for u in range(4):
            if u == 3:
                a("s_mov_b32 exec_hi, 0")
            a(f"v_add_u32 v1, s48, v0")
            if u:
                a(f"v_add_u32 v1, {64 * u}, v1")
            a("v_lshrrev_b32 v2, 2, v1")
            a(f"v_mul_u32_u24 v2, {TPW}, v2")
            a("v_and_b32 v1, 3, v1")
            a("v_mad_u32_u24 v2, v1, 6, v2")
            a("v_cmp_eq_u32 s[50:51], 3, v1")
            a("v_lshlrev_b32 v2, 1, v2")
            a(f"v_add_u32 v2, {L_TAB}, v2")
            for i in range(6):
                if i == 3:
                    a("s_andn2_b64 exec, exec, s[50:51]")
                op = "ds_write_b16_d16_hi" if i & 1 else "ds_write_b16"
                a(f"{op} v2, v{8 + 4 * u + i // 2} offset:{2 * i}")
            a("s_mov_b64 exec, -1")
        a("s_waitcnt lgkmcnt(0)")
        self.stamp(4)
        a("s_branch L_final")
        a("L_nogather:")
        if self.dry:
            a("s_cmp_eq_u32 s56, 1")
            a("s_cbranch_scc0 L_nowarm")
            a("s_mov_b32 s98, 1")
            a("v_mov_b32 v2, 0")
            a("v_mov_b32 v87, 0")
            a("s_branch L_pub")
            a("L_nowarm:")
        if self.stamps:
            a("s_cmp_eq_u32 s56, 0")
            a("s_cbranch_scc0 L_end")
            a("s_setprio 0")
            a("v_mov_b32 v2, 0")
            self.wait_flag("stdone", 2, 3, L_DONE, 8)
            self.stamp_flush(0, 7, 8)
        a("s_endpgm")

    def grab(self):
        a = self.a
        a("s_mov_b64 exec, 1")
        a(f"ds_add_rtn_u32 v57, v56, v59 offset:{L_NEXT}")
        a("s_mov_b64 exec, -1")

    def issue_tile(self, slot, grab=True, mid=None, xslot=None):
        a = self.a
        vb = VRING + 16 * slot
        if grab:
            a("s_waitcnt lgkmcnt(0)")
            a("v_readfirstlane_b32 s48, v57")
            self.grab()
            a("s_lshl_b32 s52, s48, 12")
            a("s_add_u32 s52, s52, s51")
            a("s_cmp_lt_u32 s48, s49")
            a("s_addc_u32 s54, s54, 0")
        a(f"s_add_u32 m0, s56, {4096 * slot}")
        for c in range(4):
            a(f"buffer_load_dwordx4 v{60 + c}, s[4:7], s52 offen offset:{1024 * c}{self.kvpol} lds")
        if mid is not None:
            a(f"s_waitcnt vmcnt({mid})")
        if xslot is not None and self.xmid is not None:
            a("s_bitcmp1_b32 s97, 0")
            a(f"s_cbranch_scc1 L_xm{xslot}")
            a(f"s_waitcnt vmcnt({self.xmid})")
            a(f"L_xm{xslot}:")
        for c in range(4):
            a(f"buffer_load_dwordx4 v[{vb + 4 * c}:{vb + 3 + 4 * c}], v2, s[8:11], s52 offen offset:{1024 * c}{self.kvpol}")

    def stream(self):
        a = self.a
        rb = self.rb
        ring = self.ring
        L = self.look
        a("L_stream:")
        if self.h0_first and not (self.b0_early or self.b0_fast):
            self.issue_tile(0, grab=False)
        if self.trace:
            a("s_mov_b32 s59, 0")
            a("v_mov_b32 v58, 0")
        self.trace_pt()
        a("v_mov_b32 v56, 0")
        a("v_mov_b32 v59, 1")
        self.grab()
        a("s_mov_b32 s54, 1")
        if self.half_thr is not None:
            a(f"s_waitcnt vmcnt({self.half_thr})")
        self.issue_tile(1, mid=self.half_thr)
        self.trace_pt()
        self.masks(4, 18, 19)
        for r in range(4):
            a(f"v_mov_b32 v{8 + r}, 0")
        a("v_mov_b32 v16, 0xff7fffff")
        a("v_mov_b32 v17, 0")
        a("v_bfe_u32 v3, v0, 3, 1")
        a("v_lshlrev_b32 v3, 8, v3")
        a("v_lshrrev_b32 v18, 4, v0")
        a("v_lshl_add_u32 v3, v18, 4, v3")
        a("v_and_b32 v19, 15, v0")
        a("v_xor_b32 v18, v18, v19")
        a("v_lshlrev_b32 v18, 4, v18")
        a("v_and_b32 v19, 3, v0")
        a("v_lshl_add_u32 v18, v19, 10, v18")
        a("v_bfe_u32 v19, v0, 2, 2")
        a("v_lshl_add_u32 v18, v19, 8, v18")
        for c in range(4):
            a(f"v_xor_b32 v{80 + c}, {64 * c}, v18")
        for c in range(4):
            a(f"v_add_u32 v{80 + c}, s56, v{80 + c}")
        a("s_lshl_b32 s48, s3, 10")
        a("v_add_u32 v84, s48, v2")
        a("v_lshlrev_b32 v87, 3, v0")
        a("s_lshl_b32 s48, s3, 9")
        a("v_add_u32 v85, s48, v87")
        a("s_lshl_b32 s57, s43, 5")
        a("s_lshl_b32 s48, s42, 3")
        a("s_add_u32 s57, s57, s48")
        a("s_add_u32 s57, s57, s44")
        a("s_mul_i32 s57, s57, 640")
        a(f"s_add_u32 s57, s57, {E1}")
        a("v_lshrrev_b32 v88, 5, v0")
        a(f"v_mul_u32_u24 v88, {16 * 640}, v88")
        a("v_and_b32 v89, 15, v0")
        a("v_lshl_add_u32 v89, v89, 5, v88")
        a("v_bfe_u32 v18, v0, 4, 1")
        a("v_lshl_add_u32 v89, v18, 4, v89")
        a("v_mov_b32 v18, 0")
        if self.no_qwait:
            a(f"s_mov_b32 s53, 0")
            a("s_branch L_qskip")
        for t in range(2, ring):
            a(f"s_waitcnt vmcnt({self.pre_throttle if self.half_thr is None else self.half_thr})")
            if self.early and t > L:
                a(f"ds_read_b32 v19, v18 offset:{L_FLAG}")
                a(f"s_mov_b32 s53, {t - L}")
                a("s_waitcnt lgkmcnt(0)")
                a("v_readfirstlane_b32 s48, v19")
                a("s_cmp_lg_u32 s48, 0")
                a("s_cbranch_scc1 L_qwait_ok")
            self.issue_tile(t, mid=self.half_thr)
            self.trace_pt()
        a(f"s_mov_b32 s53, {ring - L}")
        self.wait_flag("qwait", 18, 19)
        a("L_qskip:")
        self.stamp(1)
        for c in range(4):
            a(f"ds_read_b128 v[{40 + 4 * c}:{43 + 4 * c}], v3 offset:{L_Q + 64 * c}")
        a(f"ds_read_b64 v[20:21], v18 offset:{L_TAG}")
        if self.xlocal:
            a(f"ds_read_b32 v22, v18 offset:{L_SAME}")
        a("s_mov_b64 vcc, s[60:61]")
        a("s_waitcnt lgkmcnt(0)")
        if self.xlocal:
            a("v_readfirstlane_b32 s99, v22")
            a("s_bfe_i32 s100, s99, 0x10000")
            a("s_bfe_i32 s101, s99, 0x10001")
        a("v_readfirstlane_b32 s47, v20")
        a("v_readfirstlane_b32 s55, v21")
        self.stamp(2)
        a("s_getreg_b32 s97, hwreg(HW_REG_XCC_ID, 0, 4)")
        a("L_loop:")
        for slot in range(ring):
            kb = KREG
            vb = VRING + 16 * slot
            if slot < ring - L:
                a("s_cmp_lg_u32 s53, 0")
                a(f"s_cbranch_scc1 L_noissue{slot}")
            if self.xthr is not None:
                a("s_bitcmp1_b32 s97, 0")
                a(f"s_cbranch_scc1 L_xo{slot}")
                a(f"s_waitcnt vmcnt({self.xthr})")
                a(f"L_xo{slot}:")
            self.issue_tile((slot + L) % ring, xslot=slot)
            if slot < ring - L:
                a("s_add_u32 s53, s53, 1")
                a(f"L_noissue{slot}:")
                a("s_sub_u32 s53, s53, 1")
            a(f"s_waitcnt vmcnt({8 * L + 4})")
            if self.dynprio:
                a("s_setprio 3")
            for c in range(4):
                a(f"ds_read_b128 v[{kb + 4 * c}:{kb + 4 * c + 3}], v{80 + c} offset:{4096 * slot}")
            for c in range(4):
                a(f"s_waitcnt lgkmcnt({3 - c})")
                cc = "0" if c == 0 else "v[12:15]"
                a(f"v_mfma_f32_16x16x32_bf16 v[12:15], v[{kb + 4 * c}:{kb + 4 * c + 3}], v[{40 + 4 * c}:{43 + 4 * c}], {cc}")
            a("s_sub_u32 s54, s54, 1")
            for r in range(4):
                rb(f"v{12 + r}", f"v{12 + r}")
            for r in range(4):
                a(f"v_mul_f32 v{12 + r}, s63, v{12 + r}")
            for r in range(4):
                rb(f"v{12 + r}", f"v{12 + r}")
            a("v_max3_f32 v18, v12, v13, v14")
            a("v_max3_f32 v18, v18, v15, v16")
            self.xrow(32, "v_max_f32", "v18", "v19")
            self.xrow(16, "v_max_f32", "v18", "v19")
            a("v_sub_f32 v20, v16, v18")
            a("v_mul_f32 v21, s62, v18")
            a("v_mul_f32 v20, s62, v20")
            a("v_mov_b32 v16, v18")
            a("v_exp_f32 v20, v20")
            for r in range(4):
                a(f"v_fma_f32 v{12 + r}, v{12 + r}, s62, -v21")
            for r in range(4):
                a(f"v_exp_f32 v{12 + r}, v{12 + r}")
            a("v_cndmask_b32_dpp v22, v20, v20, vcc row_ror:8 row_mask:0xf bank_mask:0xf")
            a("v_add_f32 v18, v12, v13")
            a("v_add_f32 v19, v14, v15")
            for r in range(4):
                a(f"v_cvt_pk_bf16_f32 v{12 + r}, v{12 + r}, v{12 + r}")
            a("v_add_f32 v18, v18, v19")
            for r in range(4):
                a(f"v_mul_f32 v{8 + r}, v22, v{8 + r}")
            a("v_fma_f32 v17, v17, v20, v18")
            for r in range(4):
                for q in range(4):
                    a(f"v_and_b32 v{24 + 4 * r + q}, v{12 + r}, v{4 + q}")
            a(f"s_waitcnt vmcnt({8 * L})")
            for r in range(4):
                a(f"v_mfma_f32_16x16x32_bf16 v[8:11], v[{24 + 4 * r}:{27 + 4 * r}], v[{vb + 4 * r}:{vb + 4 * r + 3}], v[8:11]")
            self.trace_pt()
            a("s_cmp_eq_u32 s54, 0")
            a("s_cbranch_scc1 L_sdone")
            if self.dynprio:
                a("s_setprio 0")
        a("s_branch L_loop")
        a("L_sdone:")
        self.stamp(3)
        if self.no_qwait:
            a("v_mov_b32 v18, 0")
            a(f"ds_read_b64 v[56:57], v18 offset:{L_TAG}")
            a("s_waitcnt lgkmcnt(0)")
            a("v_readfirstlane_b32 s47, v56")
            a("v_readfirstlane_b32 s55, v57")
        self.xrow(32, "v_add_f32", "v17", "v19")
        self.xrow(16, "v_add_f32", "v17", "v19")
        a("v_cndmask_b32_dpp v18, v16, v16, vcc row_ror:8 row_mask:0xf bank_mask:0xf")
        a("v_cndmask_b32_dpp v19, v17, v17, vcc row_ror:8 row_mask:0xf bank_mask:0xf")
        a(f"ds_write_b128 v84, v[8:11] offset:{L_P}")
        a(f"ds_write_b64 v85, v[18:19] offset:{L_PS}")
        a("s_mov_b64 exec, 1")
        a(f"ds_add_rtn_u32 v50, v56, v59 offset:{L_CNT2}")
        a("s_mov_b64 exec, -1")
        if not self.spec:
            a("s_waitcnt lgkmcnt(0)")
            a("v_readfirstlane_b32 s48, v50")
            a("s_cmp_eq_u32 s48, 3")
            a("s_cbranch_scc0 L_after_pub")
        a("L_pub:")
        for w in range(4):
            a(f"ds_read_b64 v[{24 + 2 * w}:{25 + 2 * w}], v87 offset:{L_PS + 512 * w}")
        for w in range(4):
            a(f"ds_read_b128 v[{32 + 4 * w}:{35 + 4 * w}], v2 offset:{L_P + 1024 * w}")
        if self.spec:
            a("s_waitcnt lgkmcnt(8)")
            a("v_readfirstlane_b32 s48, v50")
            a("s_cmp_eq_u32 s48, 3")
            a("s_cselect_b32 s48, 1, s98")
            a("s_cmp_lg_u32 s48, 0")
            a("s_cbranch_scc0 L_after_pub")
        a("s_waitcnt lgkmcnt(4)")
        a("v_max_f32 v12, v24, v26")
        a("v_max3_f32 v12, v12, v28, v30")
        for w in range(4):
            a(f"v_sub_f32 v{24 + 2 * w}, v{24 + 2 * w}, v12")
        for w in range(4):
            a(f"v_mul_f32 v{24 + 2 * w}, s62, v{24 + 2 * w}")
        for w in range(4):
            a(f"v_exp_f32 v{24 + 2 * w}, v{24 + 2 * w}")
        a("v_mul_f32 v13, v24, v25")
        a("s_waitcnt lgkmcnt(0)")
        for r in range(4):
            a(f"v_mul_f32 v{8 + r}, v24, v{32 + r}")
        for w in range(1, 4):
            for r in range(4):
                a(f"v_fmac_f32 v{8 + r}, v{24 + 2 * w}, v{32 + 4 * w + r}")
        for w in range(1, 4):
            a(f"v_fmac_f32 v13, v{24 + 2 * w}, v{25 + 2 * w}")
        self.pack3(16, 8)
        a("v_mov_b32 v19, s47")
        a("v_mov_b32 v14, 0")
        a("v_mov_b32 v15, s47")
        a("v_mov_b32 v20, 0")
        a("v_mov_b32 v21, 1")
        if self.dry:
            a("s_cmp_lg_u32 s98, 0")
            a("s_cbranch_scc1 L_pub_dry_ret")
        if self.xlocal:
            a("s_mov_b64 exec, s[100:101]")
            a("s_cbranch_execz L_pub_far")
            a("buffer_store_dwordx4 v[16:19], v89, s[12:15], s57 offen")
            a("s_and_b32 exec_lo, exec_lo, 1")
            a("s_and_b32 exec_hi, exec_hi, 1")
            a("buffer_store_dwordx4 v[12:15], v88, s[12:15], s57 offen offset:512")
            a("L_pub_far:")
            a("s_not_b64 exec, s[100:101]")
            a("s_cbranch_execz L_pub_end")
        a("buffer_store_dwordx4 v[16:19], v89, s[12:15], s57 offen sc1")
        a("s_and_b32 exec_lo, exec_lo, 1")
        a("s_and_b32 exec_hi, exec_hi, 1")
        a("buffer_store_dwordx4 v[12:15], v88, s[12:15], s57 offen offset:512 sc1")
        a("L_pub_end:")
        a("s_mov_b64 exec, -1")
        a(f"ds_write_b32 v20, v21 offset:{L_DONE}")
        self.stamp(4)
        self.stamp_flush(0, 4, 0)
        a("L_after_pub:")
        if self.trace:
            a("v_mov_b32 v60, 0")
            self.wait_flag("trdone", 60, 61, L_DONE, 4)
            a("s_lshl_b32 s48, s2, 2")
            a("s_add_u32 s48, s48, s3")
            a("s_lshl_b32 s48, s48, 8")
            a(f"s_add_u32 s48, s48, {STAMP + 0x20000}")
            a("v_lshlrev_b32 v57, 2, v0")
            a("buffer_store_dword v58, v57, s[12:15], s48 offen")
        a("s_cmp_lg_u32 s46, 0")
        a("s_cbranch_scc1 L_final")
        a("s_endpgm")
        if self.dry:
            a("L_pub_dry_ret:")
            a("s_cmp_eq_u32 s98, 2")
            a("s_cbranch_scc1 L_owner_setup")
            a("s_endpgm")

    def owner(self):
        a = self.a
        a("L_pre_b2:")
        a("v_mov_b32 v3, 0")
        self.wait_flag("oflag", 3, 8)
        a(f"ds_read_b64 v[10:11], v3 offset:{L_TAG}")
        a("s_waitcnt vmcnt(0) lgkmcnt(0)")
        a("v_readfirstlane_b32 s47, v10")
        a("s_setprio 0")
        if self.dry:
            a("s_cmp_eq_u32 s56, 1")
            a("s_cbranch_scc0 L_owner_setup")
            a("s_mov_b32 s98, 2")
            a("v_mov_b32 v2, 0")
            a("v_mov_b32 v87, 0")
            a("s_branch L_pub")
        a("L_owner_setup:")
        self.masks(4, 8, 9)
        a("s_lshl_b32 s57, s43, 1")
        a("s_add_u32 s57, s57, s42")
        a(f"s_mul_i32 s49, s57, {16 * 640}")
        a(f"s_add_u32 s49, s49, {E1}")
        a("v_and_b32 v1, 15, v0")
        a("v_mul_u32_u24 v1, 640, v1")
        a("v_lshrrev_b32 v2, 4, v0")
        a("s_lshl_b32 s50, s56, 3")
        a("v_add_lshl_u32 v2, v2, s50, 4")
        a("v_add_u32 v2, v1, v2")
        a("s_mul_i32 s50, s56, 4608")
        a(f"s_add_u32 s50, s50, {L_R}")
        a("v_lshrrev_b32 v36, 5, v0")
        a("v_mul_u32_u24 v36, 2304, v36")
        a("v_and_b32 v37, 15, v0")
        a("v_lshl_add_u32 v36, v37, 5, v36")
        a("v_bfe_u32 v37, v0, 4, 1")
        a("v_lshl_add_u32 v36, v37, 4, v36")
        a("v_add_u32 v36, s50, v36")
        a("s_mul_i32 s50, s56, 48")
        a("v_add_u32 v37, s50, v0")
        a("v_mul_u32_u24 v37, 24, v37")
        a(f"v_add_u32 v37, {L_R}, v37")
        a("v_lshlrev_b32 v38, 4, v0")
        a("s_lshr_b32 s50, s56, 1")
        a("s_lshl_b32 s53, s50, 3")
        a("s_lshl_b32 s50, s50, 5")
        a("s_add_u32 s50, s50, s57")
        a("s_mul_i32 s50, s50, 1536")
        a("s_and_b32 s51, s56, 1")
        a("s_mul_i32 s51, s51, 768")
        a("s_add_u32 s51, s50, s51")
        a(f"s_add_u32 s51, s51, {FIN}")
        a("v_mov_b32 v35, s47")
        a("v_mov_b32 v3, 0")
        if self.dry:
            a("s_mov_b32 s98, 1")
            a("s_branch L_ogot")
            a("L_owner_real:")
            a("s_mov_b64 exec, -1")
            a("s_mov_b32 s98, 0")
        self.stamp(4)
        self.wait_flag("odone", 3, 8, L_DONE, self.done_sleep)
        a("s_setprio 3")
        a("s_mov_b32 s50, 0")
        a("L_opoll:")
        a("buffer_load_dwordx4 v[8:11], v1, s[12:15], s49 offen offset:512 sc1")
        a("buffer_load_dwordx4 v[12:15], v2, s[12:15], s49 offen sc1")
        a("buffer_load_dwordx4 v[16:19], v2, s[12:15], s49 offen offset:64 sc1")
        a("s_waitcnt vmcnt(0)")
        self.tags_bad([11, 15, 19], 20, 21)
        a("s_cbranch_vccz L_ogot")
        self.retry("L_opoll", self.tail_sleep)
        a("L_ogot:")
        self.stamp(5)
        if self.odiag:
            a("s_memtime s[72:73]")
        a("v_max_f32_dpp v10, v8, v8 quad_perm:[1,0,3,2] row_mask:0xf bank_mask:0xf")
        a("v_perm_b32 v15, v14, v13, s67")
        a("v_perm_b32 v19, v18, v17, s67")
        self.dpp("v_max_f32", "v10", "quad_perm:[2,3,0,1]")
        a("v_perm_b32 v15, v15, v12, s68")
        a("v_perm_b32 v19, v19, v16, s68")
        self.dpp("v_max_f32", "v10", "row_half_mirror")
        a("v_sub_f32 v8, v8, v10")
        a("v_mul_f32 v8, s62, v8")
        a("v_exp_f32 v8, v8")
        for e in range(8):
            a(f"v_mul_f32 v{12 + e}, v8, v{12 + e}")
        a("v_mul_f32 v9, v8, v9")
        for c in ("quad_perm:[1,0,3,2]", "quad_perm:[2,3,0,1]"):
            for e in range(8):
                self.dpp("v_add_f32", f"v{12 + e}", c)
            self.dpp("v_add_f32", "v9", c)

        def mf(t, cg):
            r = 96 + 4 * (5 * t + cg)
            d = 72 + 4 * cg
            ab = 40 + 4 * t
            c = "0" if t == 0 else f"v[{d}:{d + 3}]"
            a(f"v_mfma_f32_16x16x32_bf16 v[{d}:{d + 3}], v[{ab}:{ab + 3}], v[{r}:{r + 3}], {c}")

        def prep(t):
            self.dpp("v_add_f32", f"v{12 + t}", "row_half_mirror")
            a(f"v_cvt_pk_bf16_f32 v{12 + t}, v{12 + t}, v{12 + t}")
            for q in range(4):
                a(f"v_and_b32 v{40 + 4 * t + q}, v{12 + t}, v{4 + q}")

        def wr(cg):
            if cg == 4:
                a("s_mov_b32 exec_lo, 0x00ff00ff")
                a("s_mov_b32 exec_hi, 0x00ff00ff")
            a(f"ds_write_b128 v36, v[{72 + 4 * cg}:{75 + 4 * cg}] offset:{512 * cg}")

        if self.odiag:
            a("s_memtime s[74:75]")
        prep(0)
        for t in range(8):
            mf(t, 0)
            if t < 7:
                self.dpp("v_add_f32", f"v{13 + t}", "row_half_mirror")
                a(f"v_cvt_pk_bf16_f32 v{13 + t}, v{13 + t}, v{13 + t}")
            else:
                self.dpp("v_add_f32", "v9", "row_half_mirror")
            mf(t, 1)
            if t < 7:
                for q in range(2):
                    a(f"v_and_b32 v{44 + 4 * t + q}, v{13 + t}, v{4 + q}")
            mf(t, 2)
            if t < 7:
                for q in range(2, 4):
                    a(f"v_and_b32 v{44 + 4 * t + q}, v{13 + t}, v{4 + q}")
            else:
                a("v_rcp_f32 v9, v9")
        for t in range(8):
            mf(t, 3)
            if t in (3, 5, 7):
                wr((t - 3) // 2)
        for t in range(8):
            mf(t, 4)
            if t == 1:
                a("v_readlane_b32 s52, v9, s53")
            if t == 6:
                wr(3)
        wr(4)
        if self.odiag:
            a("s_memtime s[76:77]")
        a("s_mov_b32 exec_lo, -1")
        a("s_mov_b32 exec_hi, 0xffff")
        a("s_waitcnt lgkmcnt(0)")
        if self.dry:
            a("s_cmp_lg_u32 s98, 0")
            a("s_cbranch_scc1 L_o_nobar")
        a("s_barrier")
        a("L_o_nobar:")
        if self.odiag:
            a("s_memtime s[78:79]")
        for w in range(4):
            for i in range(3):
                a(f"ds_read_b64 v[{8 + 6 * w + 2 * i}:{9 + 6 * w + 2 * i}], v37 offset:{4608 * w + 8 * i}")
        a("s_waitcnt lgkmcnt(6)")
        for i in range(6):
            a(f"v_add_f32 v{8 + i}, v{8 + i}, v{14 + i}")
        a("s_waitcnt lgkmcnt(3)")
        for i in range(6):
            a(f"v_add_f32 v{8 + i}, v{8 + i}, v{20 + i}")
        a("s_waitcnt lgkmcnt(0)")
        for i in range(6):
            a(f"v_add_f32 v{8 + i}, v{8 + i}, v{26 + i}")
        for i in range(6):
            a(f"v_mul_f32 v{8 + i}, s52, v{8 + i}")
        for i in range(3):
            a(f"v_cvt_pk_bf16_f32 v{32 + i}, v{8 + 2 * i}, v{9 + 2 * i}")
        if self.dry:
            a("s_cmp_lg_u32 s98, 0")
            a("s_cbranch_scc1 L_owner_real")
        a("buffer_store_dwordx4 v[32:35], v38, s[12:15], s51 offen sc1")
        if self.odiag:
            a("s_memtime s[84:85]")
        a("s_mov_b64 exec, -1")
        self.stamp(6)
        if self.stamps:
            a("s_cmp_eq_u32 s56, 0")
            a("s_cbranch_scc0 L_end")
            self.stamp_flush(0, 7, 8)
        a("s_endpgm")

    def final(self):
        a = self.a
        rb = self.rb
        a("L_final:")
        a("s_cmp_ge_u32 s3, 6")
        a("s_cbranch_scc1 L_end")
        a("s_sub_u32 s46, s46, 1")
        a("s_waitcnt lgkmcnt(0)")
        self.masks(4, 8, 9)
        a("v_and_b32 v1, 15, v0")
        a("v_cmp_gt_u32 vcc, 6, v1")
        a("v_mov_b32 v2, 0x3f803f80")
        a("v_cndmask_b32 v2, 0, v2, vcc")
        for q in range(4):
            a(f"v_and_b32 v{4 + q}, v2, v{4 + q}")
        a("s_mul_i32 s52, s46, 1152")
        a("s_mul_i32 s48, s3, 192")
        a("s_add_u32 s52, s52, s48")
        a("v_mul_u32_u24 v3, 12, v1")
        a("v_lshrrev_b32 v2, 4, v0")
        a("v_lshl_add_u32 v3, v2, 3, v3")
        self.srd(4, 16, 2304)
        self.srd(8, 36, 2304)
        a("buffer_load_dwordx2 v[56:57], v3, s[4:7], s52 offen")
        a("v_mul_u32_u24 v2, 1536, v2")
        a("v_lshl_add_u32 v34, v1, 4, v2")
        a("s_lshl_b32 s48, s3, 3")
        a("v_mov_b32 v1, s48")
        a("v_mov_b32 v2, 0")
        a(f"s_mul_i32 s57, s46, {32 * 1536}")
        a("s_lshl_b32 s49, s3, 8")
        a("s_add_u32 s57, s57, s49")
        a(f"s_add_u32 s57, s57, {FIN}")
        a("s_mov_b32 s88, -1")
        a("s_mov_b32 s89, 0")
        a("s_mov_b64 s[58:59], 0xffff")
        a(f"s_movk_i32 s56, {2 * TAB_N}")
        a(f"s_mov_b32 s54, {L_TAB - 2 * TAB_LO}")
        a("s_waitcnt vmcnt(0)")
        a("v_lshlrev_b32 v40, 16, v56")
        a("v_and_b32 v41, 0xffff0000, v56")
        a("v_lshlrev_b32 v42, 16, v57")
        a("v_and_b32 v43, 0xffff0000, v57")
        a("v_cndmask_b32 v40, 0, v40, s[88:89]")
        a("v_cndmask_b32 v41, 0, v41, s[88:89]")
        a("v_cndmask_b32 v42, 0, v42, s[58:59]")
        a("v_cndmask_b32 v43, 0, v43, s[58:59]")
        if self.dry:
            a("s_cmp_lt_u32 s3, 4")
            a("s_cbranch_scc1 L_final_real")
            a("s_mov_b32 s98, 1")
            a("s_branch L_fgot")
            a("L_final_real:")
            a("s_mov_b64 exec, -1")
            a("s_mov_b32 s98, 0")
        for r in range(4):
            a(f"v_mov_b32 v{8 + r}, 0")
            a(f"v_mov_b32 v{48 + r}, 0")
        self.wait_flag("fdone", 2, 13, L_DONE, self.done_sleep)
        a("s_setprio 3")
        a("s_mov_b32 s53, 0xff")
        a("s_mov_b32 s50, 0")
        if self.roll:
            for pg in range(8):
                a(f"s_add_u32 s49, s57, {pg * 4 * 1536}")
                a(f"buffer_load_dwordx4 v[{64 + 4 * pg}:{67 + 4 * pg}], v34, s[12:15], s49 offen sc1")
            a("L_fpoll:")
            for pg in range(8):
                a("s_waitcnt vmcnt(7)")
                a(f"s_bitcmp1_b32 s53, {pg}")
                a(f"s_cbranch_scc0 L_fidle{pg}")
                a(f"v_cmp_ne_u32 vcc, s47, v{67 + 4 * pg}")
                a(f"v_mov_b32 v{67 + 4 * pg}, 0")
                a(f"s_cbranch_vccz L_ftake{pg}")
                a(f"s_add_u32 s49, s57, {pg * 4 * 1536}")
                a(f"buffer_load_dwordx4 v[{64 + 4 * pg}:{67 + 4 * pg}], v34, s[12:15], s49 offen sc1")
                a(f"s_branch L_fnext{pg}")
                a(f"L_ftake{pg}:")
                a(f"v_mfma_f32_16x16x32_bf16 v[8:11], v[4:7], v[{64 + 4 * pg}:{67 + 4 * pg}], v[8:11]")
                a(f"s_bitset0_b32 s53, {pg}")
                a("s_cmp_eq_u32 s53, 0")
                a("s_cbranch_scc1 L_fgot")
                a(f"L_fidle{pg}:")
                a("buffer_load_dword v100, v2, s[12:15], s14 offen")
                a(f"L_fnext{pg}:")
            self.retry("L_fpoll", 0)
        else:
            a("L_fpoll:")
            for pg in range(8):
                a(f"s_bitcmp1_b32 s53, {pg}")
                a(f"s_cbranch_scc0 L_fskip{pg}")
                a(f"s_add_u32 s49, s57, {pg * 4 * 1536}")
                a(f"buffer_load_dwordx4 v[{64 + 4 * pg}:{67 + 4 * pg}], v34, s[12:15], s49 offen sc1")
                a(f"L_fskip{pg}:")
            a("s_waitcnt vmcnt(0)")
            for pg in range(8):
                a(f"s_bitcmp1_b32 s53, {pg}")
                a(f"s_cbranch_scc0 L_fnext{pg}")
                a(f"v_cmp_ne_u32 vcc, s47, v{67 + 4 * pg}")
                a(f"v_mov_b32 v{67 + 4 * pg}, 0")
                a(f"s_cbranch_vccnz L_fnext{pg}")
                a(f"v_mfma_f32_16x16x32_bf16 v[8:11], v[4:7], v[{64 + 4 * pg}:{67 + 4 * pg}], v[8:11]")
                a(f"s_bitset0_b32 s53, {pg}")
                a("s_cmp_eq_u32 s53, 0")
                a("s_cbranch_scc1 L_fgot")
                a(f"L_fnext{pg}:")
            self.retry("L_fpoll", self.tail_sleep)
        a("L_fgot:")
        self.stamp(5)
        if self.fdiag:
            a("s_memtime s[72:73]")
        for r in range(4):
            rb(f"v{8 + r}", f"v{8 + r}")
        for r in range(4):
            a(f"v_add_f32 v{12 + r}, v{40 + r}, v{8 + r}")
        for r in range(4):
            rb(f"v{12 + r}", f"v{12 + r}")
        a("v_add_f32 v16, v12, v13")
        a("v_mul_f32 v17, v12, v12")
        a("v_add_f32 v18, v14, v15")
        a("v_mul_f32 v19, v14, v14")
        a("v_fmac_f32 v17, v13, v13")
        a("v_fmac_f32 v19, v15, v15")
        a("v_add_f32 v16, v16, v18")
        a("v_add_f32 v17, v17, v19")
        for c in ("quad_perm:[1,0,3,2]", "quad_perm:[2,3,0,1]", "row_half_mirror", "row_ror:8"):
            self.dpp("v_add_f32", "v16", c)
            self.dpp("v_add_f32", "v17", c)
        a("v_add_f32_dpp v16, v16, v16 row_bcast:15 row_mask:0xa bank_mask:0xf")
        a("v_add_f32_dpp v17, v17, v17 row_bcast:15 row_mask:0xa bank_mask:0xf")
        a("s_mov_b64 exec, 0x10000")
        a(f"ds_write_b64 v1, v[16:17] offset:{L_ST}")
        if self.fdiag:
            a("s_memtime s[74:75]")
        a("s_mov_b64 exec, -1")
        a("s_waitcnt lgkmcnt(0)")
        if self.dry:
            a("s_cmp_lg_u32 s98, 0")
            a("s_cbranch_scc1 L_f_nobar")
        a("s_barrier")
        a("L_f_nobar:")
        if self.fdiag:
            a("s_memtime s[76:77]")
        for i in range(3):
            d = (24, 28, 20)[i]
            a(f"ds_read_b128 v[{d}:{d + 3}], v2 offset:{L_ST + 16 * i}")
        a("s_waitcnt lgkmcnt(1)")
        a("v_pk_add_f32 v[24:25], v[24:25], v[26:27]")
        a("v_pk_add_f32 v[28:29], v[28:29], v[30:31]")
        a("s_waitcnt lgkmcnt(0)")
        a("v_pk_add_f32 v[20:21], v[20:21], v[22:23]")
        a("v_pk_add_f32 v[24:25], v[24:25], v[28:29]")
        a("v_pk_add_f32 v[16:17], v[24:25], v[20:21]")
        a(f"v_mul_f32 v16, {hx(1.0 / 576)}, v16")
        a(f"v_mul_f32 v17, {hx(1.0 / 576)}, v17")
        a("v_fma_f32 v17, -v16, v16, v17")
        rb("v18", "v16")
        a("v_max_f32 v17, 0, v17")
        a("v_sub_f32 v16, v16, v18")
        rb("v19", "v17")
        for r in range(2):
            a(f"v_sub_f32 v{20 + r}, v{12 + r}, v18")
        a(f"v_add_f32 v19, {hx(1e-5)}, v19")
        for r in range(2, 4):
            a(f"v_sub_f32 v{20 + r}, v{12 + r}, v18")
        rb("v19", "v19")
        a("v_sqrt_f32 v19, v19")
        for r in range(2):
            rb(f"v{20 + r}", f"v{20 + r}")
        rb("v19", "v19")
        a("v_rcp_f32 v19, v19")
        for r in range(2, 4):
            rb(f"v{20 + r}", f"v{20 + r}")
        a("v_mul_f32 v17, v17, v19")
        a("v_mul_f32 v16, v16, v19")
        a("v_mul_f32 v17, v17, v19")
        rb("v16", "v16")
        rb("v17", "v17")
        a("v_mul_f32 v20, v20, v19")
        a(f"v_add_f32 v17, {hx(1e-5)}, v17")
        a("v_mul_f32 v21, v21, v19")
        rb("v17", "v17")
        a("v_sqrt_f32 v17, v17")
        a("v_mul_f32 v22, v22, v19")
        a("v_mul_f32 v23, v23, v19")
        rb("v17", "v17")
        a("v_rcp_f32 v17, v17")
        for r in range(4):
            rb(f"v{20 + r}", f"v{20 + r}")
        for r in range(4):
            a(f"v_sub_f32 v{20 + r}, v{20 + r}, v16")
        for r in range(4):
            rb(f"v{20 + r}", f"v{20 + r}")
        for r in range(4):
            a(f"v_mul_f32 v{20 + r}, v{20 + r}, v17")
        for r in range(4):
            rb(f"v{20 + r}", f"v{20 + r}")
        for r in range(4):
            a(f"v_ashrrev_i32 v{44 + r}, 31, v{20 + r}")
            a(f"v_bfe_u32 v{24 + r}, v{20 + r}, 15, 16")
        for r in range(4):
            a(f"v_and_b32 v{44 + r}, s56, v{44 + r}")
        for r in range(4):
            a(f"v_add3_u32 v{44 + r}, v{44 + r}, v{24 + r}, s54")
        for r in range(4):
            a(f"ds_read_u16_d16_hi v{48 + r}, v{44 + r}")
        if self.fdiag:
            a("s_memtime s[78:79]")
        for r in range(4):
            a(f"v_subrev_u32 v{24 + r}, {2 * TAB_LO}, v{24 + r}")
        for r in range(4):
            a(f"v_cmp_le_u32 s[{90 + 2 * r}:{91 + 2 * r}], s56, v{24 + r}")
        a("s_and_b64 s[90:91], s[90:91], s[88:89]")
        a("s_and_b64 s[92:93], s[92:93], s[88:89]")
        a("s_and_b64 s[94:95], s[94:95], s[58:59]")
        a("s_and_b64 s[96:97], s[96:97], s[58:59]")
        a("s_or_b64 s[86:87], s[90:91], s[92:93]")
        a("s_or_b64 s[86:87], s[86:87], s[94:95]")
        a("s_or_b64 s[86:87], s[86:87], s[96:97]")
        a("s_cbranch_scc1 L_slow")
        a("L_slow_ret:")
        a("s_waitcnt lgkmcnt(0)")
        for r in range(4):
            a(f"v_add_f32 v{12 + r}, v{12 + r}, v{48 + r}")
        a("v_cvt_pk_bf16_f32 v16, v12, v13")
        a("v_cvt_pk_bf16_f32 v17, v14, v15")
        a("s_mov_b64 exec, 0xffff")
        if self.dry:
            a("s_cmp_lg_u32 s98, 0")
            a("s_cbranch_scc1 L_final_real")
        if self.qprobe:
            a("s_cmp_eq_u32 s3, 0")
            a("s_cbranch_scc0 L_probe_done")
            a("s_memrealtime s[86:87]")
            a("s_waitcnt lgkmcnt(0)")
            a("s_sub_u32 s86, s86, s70")
            a(f"s_cmp_lt_u32 s86, {self.qprobe}")
            a("s_cbranch_scc0 L_probe_done")
            a("L_probe:")
            a("s_memrealtime s[86:87]")
            a("s_waitcnt lgkmcnt(0)")
            a("s_sub_u32 s86, s86, s70")
            a("s_cmp_lt_u32 s86, 6000")
            a("s_cbranch_scc1 L_probe")
            a("L_probe_done:")
        if self.probe:
            i, d = self.probe
            a("s_cmp_eq_u32 s3, 0")
            a("s_cbranch_scc0 L_probe_done")
            a("L_probe:")
            a("s_memrealtime s[86:87]")
            a("s_waitcnt lgkmcnt(0)")
            a(f"s_sub_u32 s86, s86, s{70 + 2 * i}")
            a(f"s_cmp_lt_u32 s86, {d}")
            a("s_cbranch_scc1 L_probe")
            a("L_probe_done:")
        a("buffer_store_dwordx2 v[16:17], v3, s[8:11], s52 offen")
        a("s_mov_b64 exec, 0xffff0000")
        a("buffer_store_dword v16, v3, s[8:11], s52 offen")
        if self.fdiag:
            a("s_memtime s[84:85]")
        a("s_mov_b64 exec, -1")
        self.stamp(6)
        a("s_or_b32 s48, s46, s3")
        a("s_cmp_eq_u32 s48, 0")
        a("s_cbranch_scc0 L_noepoch")
        a("v_mov_b32 v16, s55")
        a("s_mov_b64 exec, 1")
        a(f"buffer_store_dword v16, v2, s[12:15], 0 offen offset:{EPOCH} sc1")
        a("s_mov_b64 exec, -1")
        a("L_noepoch:")
        if self.dbg:
            a("s_cmp_eq_u32 s3, 0")
            a("s_cbranch_scc0 L_end")
            a("s_waitcnt lgkmcnt(0)")
            self.srd(4, 38, 256)
            a("s_lshl_b32 s48, s46, 5")
            a("s_mov_b64 exec, 1")
            for i in range(1, 7):
                a(f"s_sub_u32 s49, s{70 + 2 * i}, s70")
                a("v_mov_b32 v16, s49")
                a(f"buffer_store_dword v16, v2, s[4:7], s48 offen offset:{4 * i}")
            a("s_mov_b64 exec, -1")
        if self.stamps:
            a("s_cmp_eq_u32 s3, 1")
            a("s_cbranch_scc0 L_end")
            self.stamp_flush(1 if self.fdiag else 5, 7 if self.fdiag else 6, 16)
        a("L_end:")
        a("s_endpgm")

    def slow(self):
        a = self.a
        rb = self.rb
        a("L_slow:")
        if self.dry:
            a("s_cmp_lg_u32 s98, 0")
            a("s_cbranch_scc1 L_slow_ret")
        self.gelu_consts(28)
        a("s_load_dword s69, s[34:35], 0")
        a("v_lshlrev_b32 v1, 4, v0")
        a("s_waitcnt lgkmcnt(0)")
        a("s_lshl_b32 s69, s69, 16")
        for r in range(4):
            m = f"s[{90 + 2 * r}:{91 + 2 * r}]"
            a(f"L_slow_r{r}:")
            a(f"s_cmp_eq_u64 {m}, 0")
            a(f"s_cbranch_scc1 L_slow_n{r}")
            a(f"s_ff1_i32_b64 s54, {m}")
            a(f"s_bitset0_b64 {m}, s54")
            a(f"v_readlane_b32 s58, v{20 + r}, s54")
            a("v_mov_b32 v26, 0")
            a("v_mov_b32 v27, 0")
            a("s_mov_b32 s53, 0")
            a(f"L_slow_l{r}:")
            for sp, dst in ((28, 64), (30, 68), (32, 72)):
                self.srd(4, sp, 9216)
                a(f"buffer_load_dwordx4 v[{dst}:{dst + 3}], v1, s[4:7], s53 offen")
            a("s_waitcnt vmcnt(0)")
            for (src, out) in ((64, 80), (68, 88), (72, 96)):
                for k in range(4):
                    a(f"v_lshlrev_b32 v{out + 2 * k}, 16, v{src + k}")
                    a(f"v_and_b32 v{out + 2 * k + 1}, 0xffff0000, v{src + k}")
            items = [(80 + 2 * i, 88 + 2 * i, 96 + 2 * i, 104 + 4 * i, 106 + 4 * i) for i in range(4)]
            self.gelu_pk(items, 28, 30, 32, 26, "s[58:59]")
            a("s_add_u32 s53, s53, 1024")
            a("s_cmp_lt_u32 s53, 9216")
            a(f"s_cbranch_scc1 L_slow_l{r}")
            a("v_add_f32 v26, v26, v27")
            self.red16("v_add_f32", "v26")
            self.xrow(16, "v_add_f32", "v26", "v27")
            self.xrow(32, "v_add_f32", "v26", "v27")
            rb("v26", "v26")
            a("v_add_f32 v26, s69, v26")
            rb("v26", "v26")
            a("s_lshl_b64 exec, 1, s54")
            a(f"v_mov_b32 v{48 + r}, v26")
            a("s_mov_b64 exec, -1")
            a(f"s_branch L_slow_r{r}")
            a(f"L_slow_n{r}:")
        a("s_branch L_slow_ret")
        a("L_code_end:")

    def build(self):
        a = self.a
        a.raw(f"; @launch grid=(256,1,1) block=(512,1,1) lds={LDS_BYTES}")
        a.raw('.amdgcn_target "amdgcn-amd-amdhsa--gfx950"')
        a.raw(".text")
        a.raw(f".globl {NAME}_kernel")
        a.raw(".p2align 8")
        a.raw(f".type {NAME}_kernel,@function")
        a.raw(f"{NAME}_kernel:")
        self.prologue()
        self.helper_start()
        self.stream()
        self.qphase()
        self.table()
        self.owner()
        self.final()
        self.slow()
        a.raw('.section .rodata,"a"')
        a.raw(".p2align 6")
        a.raw(f".amdhsa_kernel {NAME}_kernel")
        a.raw("  .amdhsa_next_free_vgpr 256")
        a.raw("  .amdhsa_next_free_sgpr 102")
        a.raw("  .amdhsa_accum_offset 256")
        a.raw("  .amdhsa_group_segment_fixed_size 0")
        a.raw("  .amdhsa_kernarg_size 104")
        a.raw("  .amdhsa_user_sgpr_count 2")
        a.raw("  .amdhsa_user_sgpr_kernarg_segment_ptr 1")
        a.raw("  .amdhsa_system_sgpr_workgroup_id_x 1")
        a.raw("  .amdhsa_float_denorm_mode_32 3")
        a.raw(".end_amdhsa_kernel")
        return a.finish()


HEADER = open("cdna_kernels/" + NAME + ".s.ref").read().split("; Override launch geometry")[0]

if __name__ == "__main__":
    out = sys.argv[1] if len(sys.argv) > 1 else "k.s"
    kw = eval(sys.argv[2]) if len(sys.argv) > 2 else {}
    open(out, "w").write(HEADER + Gen(**kw).build())
```

```python
import struct
import sys
from asmlib import Asm

NAME = "sequential_preLN__gqa_block_cached__mixer_token_mlp__decode"

EPOCH = 0
QX = 0x10000
E1 = 0x60000
FIN = 0xC0000
TAB = 0xE0000
XI = 0xE8000
STAMP = 0x100000
WS_SPAN = 0x200000
L_Q = 0
L_TAG = 512
L_CNT = 520
L_FLAG = 524
L_CNT2 = 528
L_DONE = 532
L_NEXT = 536
L_SAME = 540
L_TP = 576
L_TY = 928
L_P = 1024
L_PS = 5120
L_ST = 7168
L_KR = 7424
L_U = L_KR + 4 * 8 * 4096
L_R = L_U
L_TAB = L_U
LDS_BYTES = L_U + 18432

TAB_LO = 0x3800
TAB_N = 2304
TPW = 21
LOG2E = 1.4426950408889634
BETA = 0.7978845608028654
C0 = -2.0 * BETA * LOG2E
C1 = C0 * 0.044715
FINAL_WG = (4, 133)
KREG = 64
VRING = 128
W1, B1, W2 = 36, 56, 76
SPIN = 0x100000


def f2u(x):
    return struct.unpack("<I", struct.pack("<f", x))[0]


def hx(x):
    return hex(f2u(x))


class Gen:
    def __init__(self, Tn=66, To=50, stamps=False, dbg=False, ring=8, pre_throttle=8, first_tiles=1,
                 q_sleep0=32, q_sleep=4, tail_sleep=0, prio=0, hprio=3, code_pf=True, mimic=True, mlp_pol="",
                 b0=1, no_mlp=False, no_wo=False, no_table=False, h0_mlp_late=True, tprio=1, trace=False, look=2, mlp_delay=0, gather_sleep0=64, gather_sleep=32, dynprio=True, early=True, h0_mlp_early=True, done_sleep=1, h0_first=True, half_thr=4, pollcnt=False, no_qwait=False, kvpol=' nt', kpol=None, vpol=None, dry=False, odiag=False, probe=None, qprobe=None, b0_early=False, b0_fast=True, h_delay=0, fdiag=False, xthr=None, xmid=None, nbig=5, k0_early=False, outpol='', slow_lo=None, fullstat=True, pretouch=0, opipe=False, kahead=True, remap=True, xlocal=True, roll=True, spec=True):
        self.__dict__.update(locals())
        self.a = Asm()

    def stamp(self, i):
        if self.stamps or self.dbg or self.probe or self.qprobe:
            self.a(f"s_memrealtime s[{70 + 2 * i}:{71 + 2 * i}]")

    def stamp_flush(self, first, last, slot_base):
        if not self.stamps:
            return
        a = self.a
        a("s_waitcnt lgkmcnt(0)")
        a("s_mov_b64 exec, 1")
        a("s_lshl_b32 s48, s2, 8")
        a(f"s_add_u32 s48, s48, {STAMP}")
        a("v_mov_b32 v60, 0")
        for i in range(first, last + 1):
            a(f"v_mov_b32 v62, s{70 + 2 * i}")
            a(f"v_mov_b32 v63, s{71 + 2 * i}")
            a(f"buffer_store_dwordx2 v[62:63], v60, s[12:15], s48 offen offset:{(slot_base + i) * 8}")
            a("s_nop 1")
        a("s_mov_b64 exec, -1")

    def trace_pt(self):
        if not self.trace:
            return
        a = self.a
        a("s_memrealtime s[92:93]")
        a("s_waitcnt lgkmcnt(0)")
        a("s_mov_b32 m0, s59")
        a("v_writelane_b32 v58, s92, m0")
        a("s_add_u32 s59, s59, 1")

    def rb(self, dst, src):
        self.a(f"v_cvt_pk_bf16_f32 {dst}, 0, {src}")

    def srd(self, base, ptr, size):
        a = self.a
        a(f"s_mov_b32 s{base}, s{ptr}")
        a(f"s_mov_b32 s{base + 1}, s{ptr + 1}")
        a(f"s_mov_b32 s{base + 2}, {size}")
        a(f"s_mov_b32 s{base + 3}, 0x20000")

    def dpp(self, op, v, ctrl):
        self.a(f"{op}_dpp {v}, {v}, {v} {ctrl} row_mask:0xf bank_mask:0xf")

    def red8(self, op, v):
        for c in ("quad_perm:[1,0,3,2]", "quad_perm:[2,3,0,1]", "row_half_mirror"):
            self.dpp(op, v, c)

    def red16(self, op, v):
        self.red8(op, v)
        self.dpp(op, v, "row_ror:8")

    def xrow(self, n, op, v, t):
        self.a(f"v_mov_b32 {t}, {v}")
        self.a(f"v_permlane{n}_swap_b32 {v}, {t}")
        self.a(f"{op} {v}, {v}, {t}")

    def pack3(self, d, s):
        for i in range(3):
            self.a(f"v_perm_b32 v{d + i}, v{s + i}, v{s + 3}, s{64 + i}")

    def unpack4th(self, g):
        self.a(f"v_perm_b32 v{g + 3}, v{g + 2}, v{g + 1}, s67")
        self.a(f"v_perm_b32 v{g + 3}, v{g + 3}, v{g}, s68")

    def masks(self, base, t0, t1):
        a = self.a
        a(f"v_and_b32 v{t0}, 1, v0")
        a(f"v_cmp_eq_u32 vcc, 1, v{t0}")
        a(f"v_mov_b32 v{t0}, 0xffff")
        a(f"v_mov_b32 v{t1}, 0xffff0000")
        a(f"v_cndmask_b32 v{t0}, v{t0}, v{t1}, vcc")
        a(f"v_bfe_u32 v{t1}, v0, 1, 2")
        for q in range(4):
            a(f"v_cmp_eq_u32 vcc, {q}, v{t1}")
            a(f"v_cndmask_b32 v{base + q}, 0, v{t0}, vcc")

    def tags_bad(self, regs, acc, t):
        a = self.a
        a(f"v_xor_b32 v{acc}, s47, v{regs[0]}")
        for r in regs[1:]:
            a(f"v_xor_b32 v{t}, s47, v{r}")
            a(f"v_or_b32 v{acc}, v{acc}, v{t}")
        a(f"v_cmp_ne_u32 vcc, 0, v{acc}")

    def retry(self, loop, sleep, cnt="s50"):
        a = self.a
        if sleep:
            a(f"s_sleep {sleep}")
        a(f"s_add_u32 {cnt}, {cnt}, 1")
        a(f"s_cmp_lt_u32 {cnt}, {SPIN}")
        a(f"s_cbranch_scc1 {loop}")

    def wait_flag(self, name, vz, vt, off=L_FLAG, sleep=1):
        a = self.a
        a("s_mov_b32 s50, 0")
        a(f"L_{name}:")
        a(f"ds_read_b32 v{vt}, v{vz} offset:{off}")
        a("s_waitcnt lgkmcnt(0)")
        a(f"v_readfirstlane_b32 s48, v{vt}")
        a("s_cmp_lg_u32 s48, 0")
        a(f"s_cbranch_scc1 L_{name}_ok")
        if sleep:
            a(f"s_sleep {sleep}")
        a("s_add_u32 s50, s50, 1")
        a(f"s_cmp_lt_u32 s50, {SPIN * 16}")
        a(f"s_cbranch_scc1 L_{name}")
        a(f"L_{name}_ok:")

    def gelu_pk(self, items, c0, c1, one, acc, sa):
        a = self.a
        P = lambda r: f"v[{r}:{r + 1}]"

        def rnd(sel):
            if self.mimic:
                for it in items:
                    r = it[sel]
                    self.rb(f"v{r}", f"v{r}")
                    self.rb(f"v{r + 1}", f"v{r + 1}")

        for (w1, b1, w2, u, t) in items:
            a(f"v_pk_mul_f32 {P(u)}, {sa}, {P(w1)} op_sel_hi:[0,1]")
        rnd(3)
        for (w1, b1, w2, u, t) in items:
            a(f"v_pk_add_f32 {P(u)}, {P(u)}, {P(b1)}")
        rnd(3)
        for (w1, b1, w2, u, t) in items:
            a(f"v_pk_mul_f32 {P(t)}, {P(u)}, {P(u)}")
        for (w1, b1, w2, u, t) in items:
            a(f"v_pk_fma_f32 {P(t)}, {P(t)}, {P(c1)}, {P(c0)}")
        for (w1, b1, w2, u, t) in items:
            a(f"v_pk_mul_f32 {P(t)}, {P(t)}, {P(u)}")
        for (w1, b1, w2, u, t) in items:
            a(f"v_exp_f32 v{t}, v{t}")
            a(f"v_exp_f32 v{t + 1}, v{t + 1}")
        for (w1, b1, w2, u, t) in items:
            a(f"v_pk_add_f32 {P(t)}, {P(t)}, {P(one)}")
        for (w1, b1, w2, u, t) in items:
            a(f"v_rcp_f32 v{t}, v{t}")
            a(f"v_rcp_f32 v{t + 1}, v{t + 1}")
        for (w1, b1, w2, u, t) in items:
            a(f"v_pk_mul_f32 {P(t)}, {P(t)}, {P(u)}")
        rnd(4)
        for (w1, b1, w2, u, t) in items:
            a(f"v_pk_fma_f32 {P(acc)}, {P(t)}, {P(w2)}, {P(acc)}")

    def gelu_consts(self, base):
        for i in range(2):
            self.a(f"v_mov_b32 v{base + i}, {hx(C0)}")
            self.a(f"v_mov_b32 v{base + 2 + i}, {hx(C1)}")
            self.a(f"v_mov_b32 v{base + 4 + i}, 1.0")

    def issue_mlp(self, ndw, rawofs):
        a = self.a
        if self.no_mlp:
            return
        a("v_lshlrev_b32 v1, 4, v0")
        a("v_lshlrev_b32 v2, 3, v0")
        for sp, D in ((28, W1), (30, B1), (32, W2)):
            dst = D + rawofs
            self.srd(4, sp, 9216)
            o = 0
            while o < ndw:
                n = 4 if ndw - o >= 4 else 2
                a(f"buffer_load_dwordx{n} v[{dst + o}:{dst + o + n - 1}], v{1 if n == 4 else 2}, s[4:7], s48 offen offset:{256 * o}{self.mlp_pol}")
                o += n

    def unpack_mlp(self, ndw, rawofs):
        a = self.a
        for D in (W1, B1, W2):
            for i in range(ndw):
                src = D + rawofs + i
                for j in range(i + 1, ndw):
                    assert D + rawofs + j not in (D + 2 * i, D + 2 * i + 1)
                assert D + 2 * i != src
                a(f"v_lshlrev_b32 v{D + 2 * i}, 16, v{src}")
                a(f"v_and_b32 v{D + 2 * i + 1}, 0xffff0000, v{src}")

    def load_wo(self, label, after):
        a = self.a
        a("s_cmp_eq_u32 s45, 0")
        a(f"s_cbranch_scc1 {label}")
        if self.no_wo:
            a(f"s_branch {after}")
            a(f"{label}:")
            return
        self.srd(8, 24, 4718592)
        a("s_lshl_b32 s48, s43, 1")
        a("s_add_u32 s48, s48, s42")
        a(f"s_mul_i32 s48, s48, {128 * 1152}")
        a(f"s_mul_i32 s49, s56, {32 * 1152}")
        a("s_add_u32 s48, s48, s49")
        a("v_lshrrev_b32 v1, 4, v0")
        a(f"v_mul_u32_u24 v1, {4 * 1152}, v1")
        a("v_and_b32 v2, 15, v0")
        a("v_lshl_add_u32 v1, v2, 4, v1")
        for u in range(2):
            for e in range(4):
                a(f"s_add_u32 s49, s48, {(16 * u + e) * 1152}")
                for cg in range(4):
                    r = 96 + 4 * (5 * (4 * u + e) + cg)
                    a(f"buffer_load_dwordx4 v[{r}:{r + 3}], v1, s[8:11], s49 offen offset:{256 * cg} nt")
        a("s_mov_b32 exec_lo, 0x00ff00ff")
        a("s_mov_b32 exec_hi, 0x00ff00ff")
        for u in range(2):
            for e in range(4):
                a(f"s_add_u32 s49, s48, {(16 * u + e) * 1152}")
                r = 96 + 4 * (5 * (4 * u + e) + 4)
                a(f"buffer_load_dwordx4 v[{r}:{r + 3}], v1, s[8:11], s49 offen offset:1024 nt")
        a("s_mov_b64 exec, -1")
        a(f"s_branch {after}")
        a(f"{label}:")

    def prologue(self):
        a = self.a
        Tn, To = self.Tn, self.To
        self.stamp(0)
        if self.stamps:
            for i in range(72, 86, 2):
                a(f"s_mov_b64 s[{i}:{i + 1}], 0")
        a("s_cmp_ge_u32 s2, 256")
        a("s_cbranch_scc1 L_end")
        a("s_load_dwordx16 s[16:31], s[0:1], 0")
        a("s_load_dwordx8 s[32:39], s[0:1], 64")
        a("s_load_dwordx2 s[40:41], s[0:1], 96")
        a("v_lshrrev_b32 v1, 6, v0")
        a("v_and_b32 v0, 63, v0")
        a("s_lshr_b32 s42, s2, 7")
        a("v_readfirstlane_b32 s3, v1")
        if self.remap:
            a("s_and_b32 s43, s2, 15")
            a("s_bfe_u32 s44, s2, 0x30004")
            a("s_lshl_b32 s2, s42, 4")
            a("s_add_u32 s2, s2, s43")
            a("s_lshl_b32 s2, s2, 3")
            a("s_add_u32 s2, s2, s44")
        else:
            a("s_bfe_u32 s43, s2, 0x40003")
            a("s_and_b32 s44, s2, 7")
        if self.b0_early or self.b0_fast:
            self.lds_init()
        a("s_mov_b32 s7, 0x20000")
        a("s_mov_b32 s11, 0x20000")
        a("s_cmp_eq_u32 s3, 4")
        a("s_cbranch_scc1 L_h0_start")
        nb = self.nbig
        To = 512 - nb * Tn - (7 - nb) * (Tn - 1)
        a("s_and_b32 s48, s43, 7")
        a("s_cmp_gt_u32 s44, s48")
        a("s_cselect_b32 s50, 1, 0")
        a("s_sub_u32 s51, s44, s50")
        a(f"s_mul_i32 s52, s50, {To}")
        a(f"s_min_u32 s50, s51, {nb}")
        a(f"s_cmp_lt_u32 s51, {nb}")
        a("s_cselect_b32 s49, 1, 0")
        a(f"s_add_u32 s49, s49, {Tn - 1}")
        a(f"s_mul_i32 s51, s51, {Tn - 1}")
        a("s_add_u32 s51, s51, s50")
        a("s_add_u32 s51, s51, s52")
        a("s_cmp_eq_u32 s44, s48")
        a(f"s_cselect_b32 s49, {To}, s49")
        a("s_lshr_b32 s52, s2, 3")
        a("s_lshl_b32 s52, s52, 9")
        a("s_add_u32 s52, s52, s51")
        a("s_add_u32 s6, s52, s49")
        a("s_lshl_b32 s6, s6, 12")
        a("s_mov_b32 s10, s6")
        a("s_lshl_b32 s51, s52, 12")
        a("s_add_u32 s52, s52, s3")
        a("s_lshl_b32 s52, s52, 12")
        a("v_lshlrev_b32 v2, 4, v0")
        a("v_lshrrev_b32 v1, 4, v0")
        a("v_lshlrev_b32 v1, 6, v1")
        a("v_xor_b32 v60, v2, v1")
        for c in range(1, 4):
            a(f"v_xor_b32 v{60 + c}, {16 * c}, v60")
        a("s_lshl_b32 s56, s3, 15")
        a(f"s_add_u32 s56, s56, {L_KR}")
        a("s_cmp_gt_u32 s3, 4")
        a("s_waitcnt lgkmcnt(0)")
        a("s_mov_b32 s4, s18")
        a("s_mov_b32 s5, s19")
        a("s_mov_b32 s8, s20")
        a("s_mov_b32 s9, s21")
        if self.k0_early:
            a("s_cbranch_scc1 L_nok0")
            self.issue_tile(0, grab=False)
            a("L_nok0:")
            a("s_barrier")
        else:
            a("s_barrier")
            a("s_cbranch_scc1 L_join")
            self.issue_tile(0, grab=False)
        a("s_branch L_join")
        a("L_h0_start:")
        a(f"s_setprio {self.hprio}")
        a("v_mov_b32 v2, 0")
        for c in range(4):
            a(f"v_mov_b32 v{60 + c}, 0")
        a("v_lshrrev_b32 v8, 5, v0")
        a("v_mul_u32_u24 v8, 1152, v8")
        a("v_and_b32 v10, 31, v0")
        a("v_mul_u32_u24 v10, 36, v10")
        a("v_add_u32 v8, v8, v10")
        a("v_lshrrev_b32 v9, 4, v0")
        a(f"v_mul_u32_u24 v9, {18 * 8192}, v9")
        a("v_and_b32 v10, 15, v0")
        a("v_lshl_add_u32 v9, v10, 4, v9")
        a("s_lshl_b32 s48, s43, 1")
        a("s_add_u32 s48, s48, s42")
        a("s_lshl_b32 s48, s48, 8")
        a(f"s_mul_i32 s49, s44, {72 * 8192}")
        a("s_add_u32 s48, s48, s49")
        a("s_mov_b32 s6, 2304")
        a("s_mov_b32 s10, 4718592")
        a("s_waitcnt lgkmcnt(0)")
        a("s_mov_b32 s4, s16")
        a("s_mov_b32 s5, s17")
        a("s_mov_b32 s8, s22")
        a("s_mov_b32 s9, s23")
        if self.b0_early:
            a("s_barrier")
        a("buffer_load_dwordx4 v[12:15], v8, s[4:7], 0 offen")
        a("buffer_load_dwordx4 v[16:19], v8, s[4:7], 0 offen offset:16")
        a("buffer_load_dword v20, v8, s[4:7], 0 offen offset:32")
        for t in range(18):
            a(f"buffer_load_dwordx4 v[{96 + 4 * t}:{99 + 4 * t}], v9, s[8:11], s48 offen nt")
            if t < 17:
                a("s_add_u32 s48, s48, 8192")
        if self.b0_fast and not self.b0_early:
            a("s_barrier")
        a(f"s_load_dword s55, s[40:41], {EPOCH}")
        a("L_join:")
        if not (self.b0_early or self.b0_fast):
            self.lds_init()
        a("s_and_b32 s48, s43, 7")
        a("s_cmp_eq_u32 s44, s48")
        a("s_cselect_b32 s45, 1, 0")
        a(f"s_mov_b32 s14, {WS_SPAN}")
        a("s_mov_b32 s15, 0x20000")
        self.consts()
        if not self.b0_fast:
            a("s_waitcnt lgkmcnt(0)")
        a("s_mov_b32 s12, s40")
        a("s_mov_b32 s13, s41")
        if not (self.b0_early or self.b0_fast):
            a("s_barrier")
        a("s_cmp_lt_u32 s3, 4")
        a("s_cbranch_scc1 L_stream")

    def lds_init(self):
        a = self.a
        for i in range(4):
            a(f"v_mov_b32 v{4 + i}, 0")
        a("v_mov_b32 v66, 4")
        a("v_mov_b32 v64, 0")
        a("v_mov_b32 v65, 0")
        a(f"ds_write_b128 v4, v[4:7] offset:{L_CNT - 8}")
        a(f"ds_write_b96 v4, v[64:66] offset:{L_CNT2}")

    def consts(self):
        a = self.a
        a("s_mov_b32 s46, 0")
        a(f"s_cmp_eq_u32 s2, {FINAL_WG[0]}")
        a("s_cselect_b32 s46, 1, s46")
        a(f"s_cmp_eq_u32 s2, {FINAL_WG[1]}")
        a("s_cselect_b32 s46, 2, s46")
        a("s_mov_b32 s60, 0x00ff00ff")
        a("s_mov_b32 s61, 0xff00ff00")
        a(f"s_mov_b32 s62, {hx(LOG2E)}")
        a(f"s_mov_b32 s63, {hx(128 ** -0.5)}")
        a("s_mov_b32 s64, 0x07060501")
        a("s_mov_b32 s65, 0x07060502")
        a("s_mov_b32 s66, 0x07060503")
        a("s_mov_b32 s67, 0x04000c0c")
        a("s_mov_b32 s68, 0x0706000c")
        a("s_mov_b32 s98, 0")

    def helper_start(self):
        a = self.a
        a(f"s_setprio {self.hprio}")
        a("s_sub_u32 s56, s3, 4")
        a("s_load_dword s69, s[34:35], 0")
        a("s_cmp_eq_u32 s56, 0")
        a("s_cbranch_scc1 L_qphase")
        if self.h_delay:
            a(f"s_sleep {self.h_delay}")
        if self.code_pf:
            a("s_getpc_b64 s[50:51]")
            a("L_pc:")
            a(f"s_sub_u32 s50, s50, L_pc-{NAME}_kernel")
            a("s_subb_u32 s51, s51, 0")
            a("s_sub_u32 s48, s56, 1")
            a("s_lshl_b32 s48, s48, 13")
            a("v_lshlrev_b32 v1, 7, v0")
            a("v_add_u32 v1, s48, v1")
            a(f"v_min_u32 v1, L_code_end-{NAME}_kernel-4, v1")
            a("global_load_dword v8, v1, s[50:51]")
        self.load_wo("L_nowo_a", "L_pre_b2")
        for _ in range(self.mlp_delay):
            a("s_sleep 16")
        a("s_mul_i32 s48, s56, 2560")
        a("s_sub_u32 s48, s48, 1024")
        self.issue_mlp(10, 10)
        a("s_waitcnt vmcnt(0)")
        self.unpack_mlp(10, 10)
        a("s_branch L_table")

    def qphase(self):
        a = self.a
        rb = self.rb
        X = 168
        a("L_qphase:")
        nm = 0
        self.masks(4, 22, 23)
        a("s_waitcnt vmcnt(18) lgkmcnt(0)")
        self.stamp(7)
        for k in range(9):
            a(f"v_lshlrev_b32 v{X + 2 * k}, 16, v{12 + k}")
            a(f"v_and_b32 v{X + 1 + 2 * k}, 0xffff0000, v{12 + k}")
        a("s_add_u32 s55, s55, 1")
        a("s_mul_i32 s47, s55, 0x9E3779B1")
        a(f"v_add_f32 v22, v{X}, v{X + 1}")
        a(f"v_add_f32 v23, v{X + 2}, v{X + 3}")
        for k in range(4, 18, 2):
            a(f"v_add_f32 v22, v22, v{X + k}")
            a(f"v_add_f32 v23, v23, v{X + k + 1}")
        a("v_add_f32 v22, v22, v23")
        self.red16("v_add_f32", "v22")
        self.xrow(16, "v_add_f32", "v22", "v23")
        a(f"v_mul_f32 v22, {hx(1.0 / 576)}, v22")
        a("v_mov_b32 v24, 0")
        a("v_mov_b32 v25, 0")
        for k in range(0, 18, 2):
            a(f"v_sub_f32 v23, v{X + k}, v22")
            a(f"v_sub_f32 v26, v{X + k + 1}, v22")
            a("v_fmac_f32 v24, v23, v23")
            a("v_fmac_f32 v25, v26, v26")
        a("v_add_f32 v24, v24, v25")
        self.red16("v_add_f32", "v24")
        self.xrow(16, "v_add_f32", "v24", "v23")
        a(f"v_mul_f32 v24, {hx(1.0 / 576)}, v24")
        rb("v22", "v22")
        rb("v24", "v24")
        a(f"v_add_f32 v24, {hx(1e-5)}, v24")
        rb("v24", "v24")
        a("v_sqrt_f32 v24, v24")
        for k in range(18):
            a(f"v_sub_f32 v{X + k}, v{X + k}, v22")
        rb("v24", "v24")
        a("v_rcp_f32 v24, v24")
        for k in range(18):
            rb(f"v{X + k}", f"v{X + k}")
        for k in range(18):
            a(f"v_mul_f32 v{X + k}, v{X + k}, v24")
        for k in range(9):
            a(f"v_cvt_pk_bf16_f32 v{12 + k}, v{X + 2 * k}, v{X + 1 + 2 * k}")
        a("v_bfe_u32 v1, v0, 3, 1")
        a("v_lshlrev_b32 v1, 5, v1")
        a("v_lshrrev_b32 v2, 4, v0")
        a("v_add_u32 v1, v1, v2")
        a("s_lshl_b32 s48, s44, 2")
        a("v_add_lshl_u32 v1, v1, s48, 2")
        for k in range(9):
            a(f"ds_bpermute_b32 v{24 + k}, v1, v{12 + k}")
        a("s_mov_b32 s48, 0x01000100")
        a("s_mov_b32 s49, 0x03020302")
        a("s_waitcnt lgkmcnt(0)")
        for t in range(18):
            ab = 36 + 4 * (t & 1)
            a(f"v_perm_b32 v33, v{24 + t // 2}, v{24 + t // 2}, s{48 + (t & 1)}")
            for q in range(4):
                a(f"v_and_b32 v{ab + q}, v33, v{4 + q}")
            a(f"s_waitcnt vmcnt({17 - t})")
            c = "0" if t == 0 else "v[8:11]"
            a(f"v_mfma_f32_16x16x32_bf16 v[8:11], v[{ab}:{ab + 3}], v[{96 + 4 * t}:{99 + 4 * t}], {c}")
        a("s_lshl_b32 s48, s43, 14")
        a("s_lshl_b32 s49, s42, 12")
        a("s_add_u32 s49, s49, s48")
        a("s_lshl_b32 s50, s44, 9")
        a("s_add_u32 s49, s49, s50")
        a(f"s_add_u32 s49, s49, {QX}")
        a("v_lshrrev_b32 v1, 5, v0")
        a("v_lshlrev_b32 v1, 13, v1")
        a("v_and_b32 v2, 31, v0")
        a("v_lshl_add_u32 v1, v2, 4, v1")
        a("v_mov_b32 v15, s47")
        self.pack3(12, 8)
        a("buffer_store_dwordx4 v[12:15], v1, s[12:15], s49 offen sc1")
        self.stamp(1)
        if self.xlocal:
            a("s_getreg_b32 s99, hwreg(HW_REG_XCC_ID, 0, 4)")
            a("s_lshl_b32 s57, s43, 8")
            a(f"s_add_u32 s57, s57, {XI}")
            a("v_lshlrev_b32 v44, 7, v0")
            a("s_cmp_eq_u32 s45, 0")
            a("s_cbranch_scc1 L_noxi")
            a("v_mov_b32 v40, s99")
            a("v_mov_b32 v43, s47")
            a("s_lshl_b64 exec, 1, s42")
            a("buffer_store_dwordx4 v[40:43], v44, s[12:15], s57 offen sc1")
            a("s_mov_b64 exec, -1")
            a("L_noxi:")
        if self.h0_mlp_early:
            a("s_cmp_lg_u32 s45, 0")
            a("s_cbranch_scc1 L_h0_nomlp")
            a("s_mov_b32 s48, 0")
            self.issue_mlp(6, 14)
            a("L_h0_nomlp:")
        a("s_lshl_b32 s48, s43, 14")
        a("s_lshl_b32 s49, s42, 13")
        a("s_add_u32 s48, s48, s49")
        a(f"s_add_u32 s48, s48, {QX}")
        a("s_add_u32 s49, s48, 4096")
        a("v_lshlrev_b32 v1, 4, v0")
        a("s_mov_b32 s50, 0")
        if self.q_sleep0:
            a(f"s_sleep {self.q_sleep0}")
        a("L_qpoll:")
        for u in range(8):
            so = "s48" if u < 4 else "s49"
            a(f"buffer_load_dwordx4 v[{8 + 4 * u}:{11 + 4 * u}], v1, s[12:15], {so} offen offset:{1024 * (u & 3)} sc1")
        if self.xlocal:
            a("v_mov_b32 v43, s47")
            a("s_mov_b64 exec, 3")
            a("buffer_load_dwordx4 v[40:43], v44, s[12:15], s57 offen sc1")
            a("s_mov_b64 exec, -1")
        a("s_waitcnt vmcnt(0)")
        self.tags_bad([11 + 4 * u for u in range(8)] + ([43] if self.xlocal else []), 2, 3)
        a("s_cbranch_vccz L_qgot")
        self.retry("L_qpoll", self.q_sleep)
        a("L_qgot:")
        if self.pollcnt:
            a("s_mul_i32 s84, s50, 100")
            a("s_add_u32 s84, s84, s70")
            a("s_addc_u32 s85, s71, 0")
        for u in range(8):
            self.unpack4th(8 + 4 * u)
        for hh in range(2):
            for e in range(4):
                g = 8 + 16 * hh + e
                a(f"v_add_f32 v{g}, v{g}, v{g + 4}")
                a(f"v_add_f32 v{g + 8}, v{g + 8}, v{g + 12}")
            for e in range(4):
                g = 8 + 16 * hh + e
                a(f"v_add_f32 v{g}, v{g}, v{g + 8}")
        for e in range(4):
            a(f"v_permlane32_swap_b32 v{8 + e}, v{24 + e}")
        for e in range(4):
            a(f"v_add_f32 v{8 + e}, v{8 + e}, v{24 + e}")
        a("v_cvt_pk_bf16_f32 v12, v8, v9")
        a("v_cvt_pk_bf16_f32 v13, v10, v11")
        a("v_lshrrev_b32 v1, 5, v0")
        a("v_lshlrev_b32 v1, 8, v1")
        a("v_and_b32 v2, 15, v0")
        a("v_lshl_add_u32 v1, v2, 4, v1")
        a("v_bfe_u32 v2, v0, 4, 1")
        a("v_lshl_add_u32 v1, v2, 3, v1")
        a(f"ds_write_b64 v1, v[12:13] offset:{L_Q}")
        a("v_mov_b32 v14, s47")
        a("v_mov_b32 v15, s55")
        a("v_mov_b32 v2, 0")
        a("v_mov_b32 v3, 1")
        a(f"ds_write_b64 v2, v[14:15] offset:{L_TAG}")
        if self.xlocal:
            a("v_cmp_eq_u32 vcc, s99, v40")
            a("s_and_b32 s48, vcc_lo, 3")
            a("v_mov_b32 v16, s48")
            a(f"ds_write_b32 v2, v16 offset:{L_SAME}")
        a("s_waitcnt lgkmcnt(0)")
        a(f"ds_write_b32 v2, v3 offset:{L_FLAG}")
        self.stamp(2)
        self.load_wo("L_nowo_b", "L_pre_b2")
        if not self.h0_mlp_early:
            a("s_mov_b32 s48, 0")
            self.issue_mlp(6, 14)
            a("s_waitcnt vmcnt(0)")
        self.unpack_mlp(6, 14)

    def table(self):
        a = self.a
        rb = self.rb
        a("L_table:")
        a(f"s_setprio {self.tprio}")
        a("s_lshr_b32 s48, s2, 3")
        a("s_mul_i32 s48, s48, 7")
        a("s_add_u32 s48, s48, s44")
        a("s_and_b32 s49, s43, 7")
        a("s_cmp_gt_u32 s44, s49")
        a("s_cselect_b32 s49, 1, 0")
        a("s_sub_u32 s54, s48, s49")
        a(f"s_mul_i32 s53, s54, {TPW}")
        self.gelu_consts(28)
        a(f"s_mul_i32 s48, s56, {4 * TPW}")
        a("v_mov_b32 v3, s48")
        a(f"s_mov_b32 s57, {1 if self.no_table else TPW}")
        a("L_tloop:")
        a(f"s_cmp_ge_u32 s53, {TAB_N}")
        a(f"s_cselect_b32 s48, {0x8000 - TAB_N}, 0")
        a("s_add_u32 s48, s48, s53")
        a(f"s_add_u32 s48, s48, {TAB_LO}")
        a("s_lshl_b32 s58, s48, 16")
        a("v_mov_b32 v26, 0")
        a("v_mov_b32 v27, 0")
        for (p0, n) in ((0, 3), (3, 3), (6, 4)):
            if p0 == 6:
                a("s_cmp_eq_u32 s56, 0")
                a("s_cbranch_scc1 L_tskip")
            items = [(W1 + 2 * (p0 + i), B1 + 2 * (p0 + i), W2 + 2 * (p0 + i), 8 + 4 * i, 10 + 4 * i) for i in range(n)]
            self.gelu_pk(items, 28, 30, 32, 26, "s[58:59]")
        a("L_tskip:")
        a("v_add_f32 v26, v26, v27")
        self.red16("v_add_f32", "v26")
        self.xrow(16, "v_add_f32", "v26", "v27")
        self.xrow(32, "v_add_f32", "v26", "v27")
        a(f"ds_write_b32 v3, v26 offset:{L_TP}")
        a("v_add_u32 v3, 4, v3")
        a("s_add_u32 s53, s53, 1")
        a("s_sub_u32 s57, s57, 1")
        a("s_cmp_lg_u32 s57, 0")
        a("s_cbranch_scc1 L_tloop")
        a("v_mov_b32 v2, 0")
        self.wait_flag("tflag", 2, 8)
        a(f"ds_read_b64 v[10:11], v2 offset:{L_TAG}")
        a("v_mov_b32 v8, 1")
        a("s_mov_b64 exec, 1")
        a(f"ds_add_rtn_u32 v9, v2, v8 offset:{L_CNT}")
        a("s_mov_b64 exec, -1")
        a("s_waitcnt lgkmcnt(0)")
        a("v_readfirstlane_b32 s47, v10")
        a("v_readfirstlane_b32 s55, v11")
        a("v_readfirstlane_b32 s48, v9")
        a("s_cmp_eq_u32 s48, 3")
        a("s_cbranch_scc0 L_tdone")
        a("v_lshlrev_b32 v3, 2, v0")
        a(f"s_mov_b64 exec, {hex((1 << TPW) - 1)}")
        for w in range(4):
            a(f"ds_read_b32 v{8 + w}, v3 offset:{L_TP + 4 * TPW * w}")
        a("v_lshlrev_b32 v3, 1, v0")
        a("s_lshl_b32 s48, s69, 16")
        a("s_waitcnt lgkmcnt(0)")
        a("v_add_f32 v8, v8, v9")
        a("v_add_f32 v10, v10, v11")
        a("v_add_f32 v8, v8, v10")
        rb("v8", "v8")
        a("v_add_f32 v8, s48, v8")
        a("v_cvt_pk_bf16_f32 v8, v8, 0")
        a(f"ds_write_b16 v3, v8 offset:{L_TY}")
        a("s_mov_b64 exec, 15")
        a("v_mul_u32_u24 v3, 12, v0")
        a("s_waitcnt lgkmcnt(0)")
        for i in range(3):
            a(f"ds_read_b32 v{8 + i}, v3 offset:{L_TY + 4 * i}")
        a("v_mov_b32 v11, s47")
        a("v_lshlrev_b32 v3, 4, v0")
        a("s_lshl_b32 s48, s54, 6")
        a(f"s_add_u32 s48, s48, {TAB}")
        a("s_waitcnt lgkmcnt(0)")
        a("buffer_store_dwordx4 v[8:11], v3, s[12:15], s48 offen sc1")
        a("s_mov_b64 exec, -1")
        a("L_tdone:")
        self.stamp(3)
        a("s_cmp_lg_u32 s46, 0")
        a("s_cbranch_scc1 L_final")
        if self.dry:
            a("s_cmp_eq_u32 s56, 1")
            a("s_cbranch_scc0 L_nowarm")
            a("s_mov_b32 s98, 1")
            a("v_mov_b32 v2, 0")
            a("v_mov_b32 v87, 0")
            a("s_branch L_pub")
            a("L_nowarm:")
        if self.stamps:
            a("s_cmp_eq_u32 s56, 0")
            a("s_cbranch_scc0 L_end")
            a("s_setprio 0")
            a("v_mov_b32 v2, 0")
            self.wait_flag("stdone", 2, 3, L_DONE, 8)
            self.stamp_flush(0, 7, 8)
        a("s_endpgm")

    def grab(self):
        a = self.a
        a("s_mov_b64 exec, 1")
        a(f"ds_add_rtn_u32 v57, v56, v59 offset:{L_NEXT}")
        a("s_mov_b64 exec, -1")

    def issue_k(self, slot):
        a = self.a
        a(f"s_add_u32 m0, s56, {4096 * slot}")
        for c in range(4):
            a(f"buffer_load_dwordx4 v{60 + c}, s[4:7], s52 offen offset:{1024 * c}{self.kvpol} lds")

    def issue_tile(self, slot, grab=True, mid=None, xslot=None):
        a = self.a
        vb = VRING + 16 * slot
        so = "s52"
        if grab:
            a("s_waitcnt lgkmcnt(0)")
            a("v_readfirstlane_b32 s48, v57")
            if self.kahead:
                a("s_mov_b32 s96, s52")
                so = "s96"
            self.grab()
            a("s_lshl_b32 s52, s48, 12")
            a("s_add_u32 s52, s52, s51")
            a("s_cmp_lt_u32 s48, s49")
            a("s_addc_u32 s54, s54, 0")
        self.issue_k((slot + 1) % self.ring if (self.kahead and grab) else slot)
        if self.kahead and not grab:
            return
        if mid is not None:
            a(f"s_waitcnt vmcnt({mid})")
        for c in range(4):
            a(f"buffer_load_dwordx4 v[{vb + 4 * c}:{vb + 3 + 4 * c}], v2, s[8:11], {so} offen offset:{1024 * c}{self.kvpol}")

    def loop_plain(self):
        a = self.a
        rb = self.rb
        ring = self.ring
        L = self.look
        a("s_getreg_b32 s97, hwreg(HW_REG_XCC_ID, 0, 4)")
        a("L_loop:")
        for slot in range(ring):
            kb = KREG
            vb = VRING + 16 * slot
            if slot < ring - L:
                a("s_cmp_lg_u32 s53, 0")
                a(f"s_cbranch_scc1 L_noissue{slot}")
            if self.xthr is not None:
                a("s_bitcmp1_b32 s97, 0")
                a(f"s_cbranch_scc1 L_xo{slot}")
                a(f"s_waitcnt vmcnt({self.xthr})")
                a(f"L_xo{slot}:")
            self.issue_tile((slot + L) % ring, xslot=slot)
            if slot < ring - L:
                a("s_add_u32 s53, s53, 1")
                a(f"L_noissue{slot}:")
                a("s_sub_u32 s53, s53, 1")
            a(f"s_waitcnt vmcnt({8 * L + 4})")
            if self.dynprio:
                a("s_setprio 3")
            for c in range(4):
                a(f"ds_read_b128 v[{kb + 4 * c}:{kb + 4 * c + 3}], v{80 + c} offset:{4096 * slot}")
            for c in range(4):
                a(f"s_waitcnt lgkmcnt({3 - c})")
                cc = "0" if c == 0 else "v[12:15]"
                a(f"v_mfma_f32_16x16x32_bf16 v[12:15], v[{kb + 4 * c}:{kb + 4 * c + 3}], v[{40 + 4 * c}:{43 + 4 * c}], {cc}")
            a("s_sub_u32 s54, s54, 1")
            for r in range(4):
                rb(f"v{12 + r}", f"v{12 + r}")
            for r in range(4):
                a(f"v_mul_f32 v{12 + r}, s63, v{12 + r}")
            for r in range(4):
                rb(f"v{12 + r}", f"v{12 + r}")
            a("v_max3_f32 v18, v12, v13, v14")
            a("v_max3_f32 v18, v18, v15, v16")
            self.xrow(32, "v_max_f32", "v18", "v19")
            self.xrow(16, "v_max_f32", "v18", "v19")
            a("v_sub_f32 v20, v16, v18")
            a("v_mul_f32 v21, s62, v18")
            a("v_mul_f32 v20, s62, v20")
            a("v_mov_b32 v16, v18")
            a("v_exp_f32 v20, v20")
            for r in range(4):
                a(f"v_fma_f32 v{12 + r}, v{12 + r}, s62, -v21")
            for r in range(4):
                a(f"v_exp_f32 v{12 + r}, v{12 + r}")
            a("v_cndmask_b32_dpp v22, v20, v20, vcc row_ror:8 row_mask:0xf bank_mask:0xf")
            a("v_add_f32 v18, v12, v13")
            a("v_add_f32 v19, v14, v15")
            for r in range(4):
                a(f"v_cvt_pk_bf16_f32 v{12 + r}, v{12 + r}, v{12 + r}")
            a("v_add_f32 v18, v18, v19")
            for r in range(4):
                a(f"v_mul_f32 v{8 + r}, v22, v{8 + r}")
            a("v_fma_f32 v17, v17, v20, v18")
            for r in range(4):
                for q in range(4):
                    a(f"v_and_b32 v{24 + 4 * r + q}, v{12 + r}, v{4 + q}")
            a(f"s_waitcnt vmcnt({8 * L})")
            for r in range(4):
                a(f"v_mfma_f32_16x16x32_bf16 v[8:11], v[{24 + 4 * r}:{27 + 4 * r}], v[{vb + 4 * r}:{vb + 4 * r + 3}], v[8:11]")
            self.trace_pt()
            a("s_cmp_eq_u32 s54, 0")
            a("s_cbranch_scc1 L_sdone")
            if self.dynprio:
                a("s_setprio 0")
        a("s_branch L_loop")

    def softmax_part(self, slot, ab, al):
        a = self.a
        rb = self.rb
        kb = KREG
        for c in range(4):
            a(f"ds_read_b128 v[{kb + 4 * c}:{kb + 4 * c + 3}], v{80 + c} offset:{4096 * slot}")
        for c in range(4):
            a(f"s_waitcnt lgkmcnt({3 - c})")
            cc = "0" if c == 0 else "v[12:15]"
            a(f"v_mfma_f32_16x16x32_bf16 v[12:15], v[{kb + 4 * c}:{kb + 4 * c + 3}], v[{40 + 4 * c}:{43 + 4 * c}], {cc}")
        for r in range(4):
            rb(f"v{12 + r}", f"v{12 + r}")
        for r in range(4):
            a(f"v_mul_f32 v{12 + r}, s63, v{12 + r}")
        for r in range(4):
            rb(f"v{12 + r}", f"v{12 + r}")
        a("v_max3_f32 v18, v12, v13, v14")
        a("v_max3_f32 v18, v18, v15, v16")
        self.xrow(32, "v_max_f32", "v18", "v19")
        self.xrow(16, "v_max_f32", "v18", "v19")
        a("v_sub_f32 v20, v16, v18")
        a("v_mul_f32 v21, s62, v18")
        a("v_mul_f32 v20, s62, v20")
        a("v_mov_b32 v16, v18")
        a("v_exp_f32 v20, v20")
        for r in range(4):
            a(f"v_fma_f32 v{12 + r}, v{12 + r}, s62, -v21")
        for r in range(4):
            a(f"v_exp_f32 v{12 + r}, v{12 + r}")
        a(f"v_cndmask_b32_dpp v{al}, v20, v20, vcc row_ror:8 row_mask:0xf bank_mask:0xf")
        a("v_add_f32 v18, v12, v13")
        a("v_add_f32 v19, v14, v15")
        for r in range(4):
            a(f"v_cvt_pk_bf16_f32 v{12 + r}, v{12 + r}, v{12 + r}")
        a("v_add_f32 v18, v18, v19")
        a("v_fma_f32 v17, v17, v20, v18")
        for r in range(4):
            for q in range(4):
                a(f"v_and_b32 v{ab + 4 * r + q}, v{12 + r}, v{4 + q}")

    def stats_out(self):
        a = self.a
        self.xrow(32, "v_add_f32", "v17", "v19")
        self.xrow(16, "v_add_f32", "v17", "v19")
        a("v_cndmask_b32_dpp v18, v16, v16, vcc row_ror:8 row_mask:0xf bank_mask:0xf")
        a("v_cndmask_b32_dpp v19, v17, v17, vcc row_ror:8 row_mask:0xf bank_mask:0xf")
        a(f"ds_write_b64 v85, v[18:19] offset:{L_PS}")

    def loop_kahead(self):
        a = self.a
        ring = self.ring
        L = self.look
        AB = (24, 96)
        AL = (22, 23)
        a(f"s_waitcnt vmcnt({8 * L})")
        a("s_setprio 3")
        self.softmax_part(0, AB[0], AL[0])
        a("s_setprio 0")
        a("L_loop:")
        for slot in range(ring):
            vb = VRING + 16 * slot
            cur, nxt = AB[slot & 1], AB[(slot + 1) & 1]
            if slot < ring - 1 - L:
                a("s_cmp_lg_u32 s53, 0")
                a(f"s_cbranch_scc1 L_noissue{slot}")
            self.issue_tile((slot + L) % ring)
            if slot < ring - 1 - L:
                a("s_add_u32 s53, s53, 1")
                a(f"L_noissue{slot}:")
                a("s_sub_u32 s53, s53, 1")
            for r in range(4):
                a(f"v_mul_f32 v{8 + r}, v{AL[slot & 1]}, v{8 + r}")
            a("s_cmp_eq_u32 s54, 1")
            a(f"s_cbranch_scc1 L_last{slot}")
            a(f"s_waitcnt vmcnt({8 * L + 4})")
            a("s_setprio 3")
            self.softmax_part((slot + 1) % ring, nxt, AL[(slot + 1) & 1])
            a("s_sub_u32 s54, s54, 1")
            a(f"s_waitcnt vmcnt({8 * L})")
            for r in range(4):
                a(f"v_mfma_f32_16x16x32_bf16 v[8:11], v[{cur + 4 * r}:{cur + 3 + 4 * r}], v[{vb + 4 * r}:{vb + 4 * r + 3}], v[8:11]")
            self.trace_pt()
            a("s_setprio 0")
        a("s_branch L_loop")
        for slot in range(ring):
            vb = VRING + 16 * slot
            cur = AB[slot & 1]
            a(f"L_last{slot}:")
            a("s_setprio 3")
            self.stats_out()
            a(f"s_waitcnt vmcnt({8 * L})")
            for r in range(4):
                a(f"v_mfma_f32_16x16x32_bf16 v[8:11], v[{cur + 4 * r}:{cur + 3 + 4 * r}], v[{vb + 4 * r}:{vb + 4 * r + 3}], v[8:11]")
            self.trace_pt()
            if slot < ring - 1:
                a("s_branch L_sdone")

    def stream(self):
        a = self.a
        rb = self.rb
        ring = self.ring
        L = self.look
        a("L_stream:")
        if self.h0_first and not (self.b0_early or self.b0_fast):
            self.issue_tile(0, grab=False)
        if self.trace:
            a("s_mov_b32 s59, 0")
            a("v_mov_b32 v58, 0")
        self.trace_pt()
        a("v_mov_b32 v56, 0")
        a("v_mov_b32 v59, 1")
        self.grab()
        a("s_mov_b32 s54, 1")
        if self.kahead:
            self.issue_tile(0)
        if self.half_thr is not None:
            a(f"s_waitcnt vmcnt({self.half_thr})")
        self.issue_tile(1, mid=self.half_thr)
        self.trace_pt()
        self.masks(4, 18, 19)
        for r in range(4):
            a(f"v_mov_b32 v{8 + r}, 0")
        a("v_mov_b32 v16, 0xff7fffff")
        a("v_mov_b32 v17, 0")
        a("v_bfe_u32 v3, v0, 3, 1")
        a("v_lshlrev_b32 v3, 8, v3")
        a("v_lshrrev_b32 v18, 4, v0")
        a("v_lshl_add_u32 v3, v18, 4, v3")
        a("v_and_b32 v19, 15, v0")
        a("v_xor_b32 v18, v18, v19")
        a("v_lshlrev_b32 v18, 4, v18")
        a("v_and_b32 v19, 3, v0")
        a("v_lshl_add_u32 v18, v19, 10, v18")
        a("v_bfe_u32 v19, v0, 2, 2")
        a("v_lshl_add_u32 v18, v19, 8, v18")
        for c in range(4):
            a(f"v_xor_b32 v{80 + c}, {64 * c}, v18")
        for c in range(4):
            a(f"v_add_u32 v{80 + c}, s56, v{80 + c}")
        a("s_lshl_b32 s48, s3, 10")
        a("v_add_u32 v84, s48, v2")
        a("v_lshlrev_b32 v87, 3, v0")
        a("s_lshl_b32 s48, s3, 9")
        a("v_add_u32 v85, s48, v87")
        a("s_lshl_b32 s57, s43, 5")
        a("s_lshl_b32 s48, s42, 3")
        a("s_add_u32 s57, s57, s48")
        a("s_add_u32 s57, s57, s44")
        a("s_mul_i32 s57, s57, 640")
        a(f"s_add_u32 s57, s57, {E1}")
        a("v_lshrrev_b32 v88, 5, v0")
        a(f"v_mul_u32_u24 v88, {16 * 640}, v88")
        a("v_and_b32 v89, 15, v0")
        a("v_lshl_add_u32 v89, v89, 5, v88")
        a("v_bfe_u32 v18, v0, 4, 1")
        a("v_lshl_add_u32 v89, v18, 4, v89")
        a("v_and_b32 v18, 7, v0")
        a("v_lshl_add_u32 v88, v18, 4, v88")
        a("v_mov_b32 v18, 0")
        if self.no_qwait:
            a(f"s_mov_b32 s53, 0")
            a("s_branch L_qskip")
        npre = ring - 1 if self.kahead else ring
        for t in range(2, npre):
            a(f"s_waitcnt vmcnt({self.pre_throttle if self.half_thr is None else self.half_thr})")
            if self.early and t > L:
                a(f"ds_read_b32 v19, v18 offset:{L_FLAG}")
                a(f"s_mov_b32 s53, {t - L}")
                a("s_waitcnt lgkmcnt(0)")
                a("v_readfirstlane_b32 s48, v19")
                a("s_cmp_lg_u32 s48, 0")
                a("s_cbranch_scc1 L_qwait_ok")
            self.issue_tile(t, mid=self.half_thr)
            self.trace_pt()
        a(f"s_mov_b32 s53, {npre - L}")
        self.wait_flag("qwait", 18, 19)
        a("L_qskip:")
        self.stamp(1)
        for c in range(4):
            a(f"ds_read_b128 v[{40 + 4 * c}:{43 + 4 * c}], v3 offset:{L_Q + 64 * c}")
        a(f"ds_read_b64 v[20:21], v18 offset:{L_TAG}")
        if self.xlocal:
            a(f"ds_read_b32 v22, v18 offset:{L_SAME}")
        a("s_mov_b64 vcc, s[60:61]")
        a("s_waitcnt lgkmcnt(0)")
        if self.xlocal:
            a("v_readfirstlane_b32 s99, v22")
            a("s_bfe_i32 s100, s99, 0x10000")
            a("s_bfe_i32 s101, s99, 0x10001")
        a("v_readfirstlane_b32 s47, v20")
        a("v_readfirstlane_b32 s55, v21")
        self.stamp(2)
        if self.kahead:
            self.loop_kahead()
        else:
            self.loop_plain()
        a("L_sdone:")
        self.stamp(3)
        if self.no_qwait:
            a("v_mov_b32 v18, 0")
            a(f"ds_read_b64 v[56:57], v18 offset:{L_TAG}")
            a("s_waitcnt lgkmcnt(0)")
            a("v_readfirstlane_b32 s47, v56")
            a("v_readfirstlane_b32 s55, v57")
        if not self.kahead:
            self.stats_out()
        a(f"ds_write_b128 v84, v[8:11] offset:{L_P}")
        a("s_mov_b64 exec, 1")
        a(f"ds_add_rtn_u32 v50, v56, v59 offset:{L_CNT2}")
        a("s_mov_b64 exec, -1")
        if not self.spec:
            a("s_waitcnt lgkmcnt(0)")
            a("v_readfirstlane_b32 s48, v50")
            a("s_cmp_eq_u32 s48, 3")
            a("s_cbranch_scc0 L_after_pub")
        a("L_pub:")
        for w in range(4):
            a(f"ds_read_b64 v[{24 + 2 * w}:{25 + 2 * w}], v87 offset:{L_PS + 512 * w}")
        for w in range(4):
            a(f"ds_read_b128 v[{32 + 4 * w}:{35 + 4 * w}], v2 offset:{L_P + 1024 * w}")
        if self.spec:
            a("s_waitcnt lgkmcnt(8)")
            a("v_readfirstlane_b32 s48, v50")
            a("s_cmp_eq_u32 s48, 3")
            a("s_cselect_b32 s48, 1, s98")
            a("s_cmp_lg_u32 s48, 0")
            a("s_cbranch_scc0 L_after_pub")
        a("s_waitcnt lgkmcnt(4)")
        a("v_max_f32 v12, v24, v26")
        a("v_max3_f32 v12, v12, v28, v30")
        for w in range(4):
            a(f"v_sub_f32 v{24 + 2 * w}, v{24 + 2 * w}, v12")
        for w in range(4):
            a(f"v_mul_f32 v{24 + 2 * w}, s62, v{24 + 2 * w}")
        for w in range(4):
            a(f"v_exp_f32 v{24 + 2 * w}, v{24 + 2 * w}")
        a("v_mul_f32 v13, v24, v25")
        a("s_waitcnt lgkmcnt(0)")
        for r in range(4):
            a(f"v_mul_f32 v{8 + r}, v24, v{32 + r}")
        for w in range(1, 4):
            for r in range(4):
                a(f"v_fmac_f32 v{8 + r}, v{24 + 2 * w}, v{32 + 4 * w + r}")
        for w in range(1, 4):
            a(f"v_fmac_f32 v13, v{24 + 2 * w}, v{25 + 2 * w}")
        self.pack3(16, 8)
        a("v_mov_b32 v19, s47")
        a("v_mov_b32 v14, 0")
        a("v_mov_b32 v15, s47")
        a("v_mov_b32 v20, 0")
        a("v_mov_b32 v21, 1")
        if self.dry:
            a("s_cmp_lg_u32 s98, 0")
            a("s_cbranch_scc1 L_pub_dry_ret")
        if self.xlocal:
            a("s_mov_b64 exec, s[100:101]")
            a("s_cbranch_execz L_pub_far")
            a("buffer_store_dwordx4 v[16:19], v89, s[12:15], s57 offen")
            a(f"s_and_b32 exec_lo, exec_lo, {0xff if self.fullstat else 1}")
            a(f"s_and_b32 exec_hi, exec_hi, {0xff if self.fullstat else 1}")
            a("buffer_store_dwordx4 v[12:15], v88, s[12:15], s57 offen offset:512")
            a("L_pub_far:")
            a("s_not_b64 exec, s[100:101]")
            a("s_cbranch_execz L_pub_end")
        a("buffer_store_dwordx4 v[16:19], v89, s[12:15], s57 offen sc1")
        a(f"s_and_b32 exec_lo, exec_lo, {0xff if self.fullstat else 1}")
        a(f"s_and_b32 exec_hi, exec_hi, {0xff if self.fullstat else 1}")
        a("buffer_store_dwordx4 v[12:15], v88, s[12:15], s57 offen offset:512 sc1")
        a("L_pub_end:")
        a("s_mov_b64 exec, -1")
        a(f"ds_write_b32 v20, v21 offset:{L_DONE}")
        self.stamp(4)
        self.stamp_flush(0, 4, 0)
        a("L_after_pub:")
        if self.trace:
            a("v_mov_b32 v60, 0")
            self.wait_flag("trdone", 60, 61, L_DONE, 4)
            a("s_lshl_b32 s48, s2, 2")
            a("s_add_u32 s48, s48, s3")
            a("s_lshl_b32 s48, s48, 8")
            a(f"s_add_u32 s48, s48, {STAMP + 0x20000}")
            a("v_lshlrev_b32 v57, 2, v0")
            a("buffer_store_dword v58, v57, s[12:15], s48 offen")
        a("s_cmp_lg_u32 s46, 0")
        a("s_cbranch_scc1 L_final")
        a("s_endpgm")
        if self.dry:
            a("L_pub_dry_ret:")
            a("s_cmp_eq_u32 s98, 2")
            a("s_cbranch_scc1 L_owner_setup")
            a("s_endpgm")

    def owner(self):
        a = self.a
        a("L_pre_b2:")
        a("v_mov_b32 v3, 0")
        self.wait_flag("oflag", 3, 8)
        a(f"ds_read_b64 v[10:11], v3 offset:{L_TAG}")
        a("s_waitcnt vmcnt(0) lgkmcnt(0)")
        a("v_readfirstlane_b32 s47, v10")
        a("s_setprio 0")
        if self.dry:
            a("s_cmp_eq_u32 s56, 1")
            a("s_cbranch_scc0 L_owner_setup")
            a("s_mov_b32 s98, 2")
            a("v_mov_b32 v2, 0")
            a("v_mov_b32 v87, 0")
            a("s_branch L_pub")
        a("L_owner_setup:")
        self.masks(4, 8, 9)
        a("s_lshl_b32 s57, s43, 1")
        a("s_add_u32 s57, s57, s42")
        a(f"s_mul_i32 s49, s57, {16 * 640}")
        a(f"s_add_u32 s49, s49, {E1}")
        a("v_and_b32 v1, 15, v0")
        a("v_mul_u32_u24 v1, 640, v1")
        a("v_lshrrev_b32 v2, 4, v0")
        a("s_lshl_b32 s50, s56, 3")
        a("v_add_lshl_u32 v2, v2, s50, 4")
        a("v_add_u32 v2, v1, v2")
        a("s_mul_i32 s50, s56, 4608")
        a(f"s_add_u32 s50, s50, {L_R}")
        a("v_lshrrev_b32 v36, 5, v0")
        a("v_mul_u32_u24 v36, 2304, v36")
        a("v_and_b32 v37, 15, v0")
        a("v_lshl_add_u32 v36, v37, 5, v36")
        a("v_bfe_u32 v37, v0, 4, 1")
        a("v_lshl_add_u32 v36, v37, 4, v36")
        a("v_add_u32 v36, s50, v36")
        a("s_mul_i32 s50, s56, 48")
        a("v_add_u32 v37, s50, v0")
        a("v_mul_u32_u24 v37, 24, v37")
        a(f"v_add_u32 v37, {L_R}, v37")
        a("v_lshlrev_b32 v38, 4, v0")
        a("s_lshr_b32 s50, s56, 1")
        a("s_lshl_b32 s53, s50, 3")
        a("s_lshl_b32 s50, s50, 5")
        a("s_add_u32 s50, s50, s57")
        a("s_mul_i32 s50, s50, 1536")
        a("s_and_b32 s51, s56, 1")
        a("s_mul_i32 s51, s51, 768")
        a("s_add_u32 s51, s50, s51")
        a(f"s_add_u32 s51, s51, {FIN}")
        a("v_mov_b32 v35, s47")
        a("v_mov_b32 v3, 0")
        if self.dry:
            a("s_mov_b32 s98, 1")
            a("s_branch L_ogot")
            a("L_owner_real:")
            a("s_mov_b64 exec, -1")
            a("s_mov_b32 s98, 0")
        self.stamp(4)

        def oload(b):
            r = (8, 12, 16) if b == 8 else (92, 24, 28)
            a(f"buffer_load_dwordx4 v[{r[0]}:{r[0] + 3}], v1, s[12:15], s49 offen offset:512 sc1")
            a(f"buffer_load_dwordx4 v[{r[1]}:{r[1] + 3}], v2, s[12:15], s49 offen sc1")
            a(f"buffer_load_dwordx4 v[{r[2]}:{r[2] + 3}], v2, s[12:15], s49 offen offset:64 sc1")

        if self.pretouch:
            a("s_cmp_lg_u32 s56, 0")
            a("s_cbranch_scc1 L_notouch")
            a("s_mov_b64 exec, 0xffff")
            a("buffer_load_dword v8, v1, s[12:15], s49 offen offset:512 sc1")
            a("s_mov_b64 exec, -1")
            if self.pretouch > 1:
                a("v_lshrrev_b32 v9, 4, v0")
                a("v_lshl_add_u32 v9, v9, 7, v1")
                a("buffer_load_dword v10, v9, s[12:15], s49 offen sc1")
            a("L_notouch:")
        self.wait_flag("odone", 3, 22, L_DONE, self.done_sleep)
        a("s_setprio 3")
        a("s_mov_b32 s50, 0")
        if self.opipe:
            oload(8)
            a("s_sleep 2")
            a("L_opoll:")
            oload(40)
            a("s_waitcnt vmcnt(3)")
            self.tags_bad([11, 15, 19], 20, 21)
            a("s_cbranch_vccz L_ogot")
            oload(8)
            a("s_waitcnt vmcnt(3)")
            self.tags_bad([95, 27, 31], 20, 21)
            a("s_cbranch_vccnz L_oagain")
            a("s_waitcnt vmcnt(0)")
            for i in range(2):
                a(f"v_mov_b32 v{8 + i}, v{92 + i}")
            for i in (0, 1, 2, 4, 5, 6):
                a(f"v_mov_b32 v{12 + i}, v{24 + i}")
            a("s_branch L_ogot")
            a("L_oagain:")
            self.retry("L_opoll", 0)
        else:
            a("L_opoll:")
            oload(8)
            a("s_waitcnt vmcnt(0)")
            self.tags_bad([11, 15, 19], 20, 21)
            a("s_cbranch_vccz L_ogot")
            self.retry("L_opoll", self.tail_sleep)
        a("L_ogot:")
        self.stamp(5)
        if self.odiag:
            a("s_memtime s[72:73]")
        a("v_max_f32_dpp v10, v8, v8 quad_perm:[1,0,3,2] row_mask:0xf bank_mask:0xf")
        a("v_perm_b32 v15, v14, v13, s67")
        a("v_perm_b32 v19, v18, v17, s67")
        self.dpp("v_max_f32", "v10", "quad_perm:[2,3,0,1]")
        a("v_perm_b32 v15, v15, v12, s68")
        a("v_perm_b32 v19, v19, v16, s68")
        self.dpp("v_max_f32", "v10", "row_half_mirror")
        a("v_sub_f32 v8, v8, v10")
        a("v_mul_f32 v8, s62, v8")
        a("v_exp_f32 v8, v8")
        for e in range(8):
            a(f"v_mul_f32 v{12 + e}, v8, v{12 + e}")
        a("v_mul_f32 v9, v8, v9")
        for c in ("quad_perm:[1,0,3,2]", "quad_perm:[2,3,0,1]"):
            for e in range(8):
                self.dpp("v_add_f32", f"v{12 + e}", c)
            self.dpp("v_add_f32", "v9", c)

        def mf(t, cg):
            r = 96 + 4 * (5 * t + cg)
            d = 72 + 4 * cg
            ab = 40 + 4 * t
            c = "0" if t == 0 else f"v[{d}:{d + 3}]"
            a(f"v_mfma_f32_16x16x32_bf16 v[{d}:{d + 3}], v[{ab}:{ab + 3}], v[{r}:{r + 3}], {c}")

        def prep(t):
            self.dpp("v_add_f32", f"v{12 + t}", "row_half_mirror")
            a(f"v_cvt_pk_bf16_f32 v{12 + t}, v{12 + t}, v{12 + t}")
            for q in range(4):
                a(f"v_and_b32 v{40 + 4 * t + q}, v{12 + t}, v{4 + q}")

        def wr(cg):
            if cg == 4:
                a("s_mov_b32 exec_lo, 0x00ff00ff")
                a("s_mov_b32 exec_hi, 0x00ff00ff")
            a(f"ds_write_b128 v36, v[{72 + 4 * cg}:{75 + 4 * cg}] offset:{512 * cg}")

        if self.odiag:
            a("s_memtime s[74:75]")
        prep(0)
        for t in range(8):
            mf(t, 0)
            if t < 7:
                self.dpp("v_add_f32", f"v{13 + t}", "row_half_mirror")
                a(f"v_cvt_pk_bf16_f32 v{13 + t}, v{13 + t}, v{13 + t}")
            else:
                self.dpp("v_add_f32", "v9", "row_half_mirror")
            mf(t, 1)
            if t < 7:
                for q in range(2):
                    a(f"v_and_b32 v{44 + 4 * t + q}, v{13 + t}, v{4 + q}")
            mf(t, 2)
            if t < 7:
                for q in range(2, 4):
                    a(f"v_and_b32 v{44 + 4 * t + q}, v{13 + t}, v{4 + q}")
            else:
                a("v_rcp_f32 v9, v9")
        for t in range(8):
            mf(t, 3)
            if t in (3, 5, 7):
                wr((t - 3) // 2)
        for t in range(8):
            mf(t, 4)
            if t == 1:
                a("v_readlane_b32 s52, v9, s53")
            if t == 6:
                wr(3)
        wr(4)
        if self.odiag:
            a("s_memtime s[76:77]")
        a("s_mov_b32 exec_lo, -1")
        a("s_mov_b32 exec_hi, 0xffff")
        a("s_waitcnt vmcnt(0) lgkmcnt(0)")
        if self.dry:
            a("s_cmp_lg_u32 s98, 0")
            a("s_cbranch_scc1 L_o_nobar")
        a("s_barrier")
        a("L_o_nobar:")
        if self.odiag:
            a("s_memtime s[78:79]")
        for w in range(4):
            for i in range(3):
                a(f"ds_read_b64 v[{8 + 6 * w + 2 * i}:{9 + 6 * w + 2 * i}], v37 offset:{4608 * w + 8 * i}")
        a("s_waitcnt lgkmcnt(6)")
        for i in range(6):
            a(f"v_add_f32 v{8 + i}, v{8 + i}, v{14 + i}")
        a("s_waitcnt lgkmcnt(3)")
        for i in range(6):
            a(f"v_add_f32 v{8 + i}, v{8 + i}, v{20 + i}")
        a("s_waitcnt lgkmcnt(0)")
        for i in range(6):
            a(f"v_add_f32 v{8 + i}, v{8 + i}, v{26 + i}")
        for i in range(6):
            a(f"v_mul_f32 v{8 + i}, s52, v{8 + i}")
        for i in range(3):
            a(f"v_cvt_pk_bf16_f32 v{32 + i}, v{8 + 2 * i}, v{9 + 2 * i}")
        if self.dry:
            a("s_cmp_lg_u32 s98, 0")
            a("s_cbranch_scc1 L_owner_real")
        a("buffer_store_dwordx4 v[32:35], v38, s[12:15], s51 offen sc1")
        if self.odiag:
            a("s_memtime s[84:85]")
        a("s_mov_b64 exec, -1")
        self.stamp(6)
        if self.stamps:
            a("s_cmp_eq_u32 s56, 0")
            a("s_cbranch_scc0 L_end")
            self.stamp_flush(0, 7, 8)
        a("s_endpgm")

    def gather(self):
        a = self.a
        a("s_sub_u32 s48, s3, 4")
        a("s_mul_i32 s86, s48, 224")
        a("s_mul_i32 s48, s48, 3584")
        a(f"s_add_u32 s48, s48, {TAB}")
        a("v_lshlrev_b32 v100, 4, v0")
        a("s_mov_b32 s50, 0")
        a("L_gpoll:")
        a("v_mov_b32 v79, s47")
        for u in range(3):
            a(f"buffer_load_dwordx4 v[{64 + 4 * u}:{67 + 4 * u}], v100, s[12:15], s48 offen offset:{1024 * u} sc1")
        a("s_mov_b32 exec_hi, 0")
        a("buffer_load_dwordx4 v[76:79], v100, s[12:15], s48 offen offset:3072 sc1")
        a("s_mov_b32 exec_hi, -1")
        a("v_add_u32 v101, s86, v0")
        a("v_lshrrev_b32 v102, 2, v101")
        a(f"v_mul_u32_u24 v102, {2 * TPW}, v102")
        a("v_and_b32 v101, 3, v101")
        a("v_mad_u32_u24 v102, v101, 12, v102")
        a(f"v_add_u32 v102, {L_TAB}, v102")
        a("v_cmp_ne_u32 s[90:91], 3, v101")
        a("s_waitcnt vmcnt(0)")
        self.tags_bad([67, 71, 75, 79], 103, 104)
        a("s_cbranch_vccz L_ggot")
        self.retry("L_gpoll", 4)
        a("L_ggot:")
        for half in range(2):
            for u in range(4):
                if u == 3:
                    a("s_mov_b32 exec_hi, 0")
                for i in range(3 * half, 3 * half + 3):
                    op = "ds_write_b16_d16_hi" if i & 1 else "ds_write_b16"
                    a(f"{op} v102, v{64 + 4 * u + i // 2} offset:{16 * 2 * TPW * u + 2 * i}")
            a("s_mov_b64 exec, s[90:91]" if half == 0 else "s_mov_b64 exec, -1")

    def final(self):
        a = self.a
        rb = self.rb
        a("L_final:")
        a("s_sub_u32 s46, s46, 1")
        a("s_waitcnt lgkmcnt(0)")
        a("v_and_b32 v8, 1, v0")
        a("v_cmp_eq_u32 vcc, 1, v8")
        a("v_mov_b32 v8, 0x3f80")
        a("v_mov_b32 v9, 0x3f800000")
        a("v_cndmask_b32 v8, v8, v9, vcc")
        a("v_and_b32 v9, 14, v0")
        for q in range(3):
            a(f"v_cmp_eq_u32 vcc, {4 * q}, v9")
            a(f"v_cndmask_b32 v{4 + q}, 0, v8, vcc")
        a("v_mov_b32 v7, 0")
        a("v_and_b32 v1, 15, v0")
        a("s_mul_i32 s52, s46, 1152")
        a("s_mul_i32 s48, s3, 192")
        a("s_add_u32 s52, s52, s48")
        a("v_mul_u32_u24 v3, 12, v1")
        a("v_lshrrev_b32 v2, 4, v0")
        a("v_lshl_add_u32 v3, v2, 2, v3")
        self.srd(4, 16, 2304)
        self.srd(8, 36, 2304)
        a("buffer_load_dword v56, v3, s[4:7], s52 offen")
        a("v_mul_u32_u24 v2, 1536, v2")
        a("v_lshl_add_u32 v34, v1, 4, v2")
        a("s_lshl_b32 s48, s3, 3")
        a("v_mov_b32 v1, s48")
        a("v_mov_b32 v2, 0")
        a(f"s_mul_i32 s57, s46, {32 * 1536}")
        a("s_lshl_b32 s49, s3, 8")
        a("s_add_u32 s57, s57, s49")
        a(f"s_add_u32 s57, s57, {FIN}")
        a("s_mov_b32 s88, -1")
        a("s_mov_b32 s89, 0xffff")
        a(f"s_movk_i32 s56, {2 * TAB_N}")
        a(f"s_mov_b32 s54, {L_TAB - 2 * TAB_LO}")
        a("s_waitcnt vmcnt(0)")
        a("v_lshlrev_b32 v40, 16, v56")
        a("v_and_b32 v41, 0xffff0000, v56")
        a("v_cndmask_b32 v40, 0, v40, s[88:89]")
        a("v_cndmask_b32 v41, 0, v41, s[88:89]")
        a("v_mov_b32 v35, s55")
        a("s_or_b32 s99, s46, s3")
        if self.dry:
            a("s_cmp_lt_u32 s3, 4")
            a("s_cbranch_scc1 L_final_real")
            a("s_mov_b32 s98, 1")
            a("s_branch L_fgot")
        a("L_final_real:")
        a("s_mov_b64 exec, -1")
        a("s_mov_b32 s98, 0")
        for r in range(4):
            a(f"v_mov_b32 v{8 + r}, 0")
        for r in range(2):
            a(f"v_mov_b32 v{48 + r}, 0")
        self.wait_flag("fdone", 2, 13, L_DONE, self.done_sleep)
        a("s_setprio 3")
        a("s_cmp_lt_u32 s3, 4")
        a("s_cbranch_scc1 L_nogather")
        self.gather()
        a("s_cmp_ge_u32 s3, 6")
        a("s_cbranch_scc1 L_end")
        a("L_nogather:")
        a("s_mov_b32 s53, 0xff")
        a("s_mov_b32 s50, 0")
        for pg in range(8):
            a(f"s_add_u32 s49, s57, {pg * 4 * 1536}")
            a(f"buffer_load_dwordx4 v[{64 + 4 * pg}:{67 + 4 * pg}], v34, s[12:15], s49 offen sc1")
        a("L_fpoll:")
        for pg in range(8):
            a("s_waitcnt vmcnt(7)")
            a(f"s_bitcmp1_b32 s53, {pg}")
            a(f"s_cbranch_scc0 L_fidle{pg}")
            a(f"v_cmp_ne_u32 vcc, s47, v{67 + 4 * pg}")
            a(f"v_mov_b32 v{67 + 4 * pg}, 0")
            a(f"s_cbranch_vccz L_ftake{pg}")
            a(f"s_add_u32 s49, s57, {pg * 4 * 1536}")
            a(f"buffer_load_dwordx4 v[{64 + 4 * pg}:{67 + 4 * pg}], v34, s[12:15], s49 offen sc1")
            a(f"s_branch L_fnext{pg}")
            a(f"L_ftake{pg}:")
            a(f"v_mfma_f32_16x16x32_bf16 v[8:11], v[4:7], v[{64 + 4 * pg}:{67 + 4 * pg}], v[8:11]")
            a(f"s_bitset0_b32 s53, {pg}")
            a("s_cmp_eq_u32 s53, 0")
            a("s_cbranch_scc1 L_fgot")
            a(f"L_fidle{pg}:")
            a("buffer_load_dword v100, v2, s[12:15], s14 offen")
            a(f"L_fnext{pg}:")
        self.retry("L_fpoll", 0)
        a("L_fgot:")
        self.stamp(5)
        if self.fdiag:
            a("s_memtime s[72:73]")
        rb("v8", "v8")
        rb("v9", "v9")
        a("v_add_f32 v12, v40, v8")
        a("v_add_f32 v13, v41, v9")
        rb("v12", "v12")
        rb("v13", "v13")
        a("v_mul_f32 v17, v12, v12")
        a("v_add_f32 v16, v12, v13")
        a("v_fmac_f32 v17, v13, v13")
        for c in ("quad_perm:[1,0,3,2]", "quad_perm:[2,3,0,1]", "row_half_mirror", "row_ror:8"):
            self.dpp("v_add_f32", "v16", c)
            self.dpp("v_add_f32", "v17", c)
        for c in ("row_bcast:15 row_mask:0xa", "row_bcast:31 row_mask:0xc"):
            a(f"v_add_f32_dpp v16, v16, v16 {c} bank_mask:0xf")
            a(f"v_add_f32_dpp v17, v17, v17 {c} bank_mask:0xf")
        a("s_mov_b32 exec_lo, 0")
        a("s_mov_b32 exec_hi, 0x80000000")
        a(f"ds_write_b64 v1, v[16:17] offset:{L_ST}")
        if self.fdiag:
            a("s_memtime s[74:75]")
        a("s_cmp_lg_u32 s99, 0")
        a("s_cbranch_scc1 L_noepoch")
        a(f"buffer_store_dword v35, v2, s[12:15], 0 offen offset:{EPOCH} sc1")
        a("L_noepoch:")
        a("s_mov_b64 exec, -1")
        a("s_waitcnt lgkmcnt(0)")
        if self.dry:
            a("s_cmp_lg_u32 s98, 0")
            a("s_cbranch_scc1 L_f_nobar")
        a("s_barrier")
        a("L_f_nobar:")
        if self.fdiag:
            a("s_memtime s[76:77]")
        for i, d in enumerate((24, 28, 20)):
            a(f"ds_read_b128 v[{d}:{d + 3}], v2 offset:{L_ST + 16 * i}")
        a("s_waitcnt lgkmcnt(1)")
        a("v_add_f32 v16, v24, v26")
        a("v_add_f32 v17, v25, v27")
        a("v_add_f32 v18, v28, v30")
        a("v_add_f32 v19, v29, v31")
        a("s_waitcnt lgkmcnt(0)")
        a("v_add_f32 v24, v20, v22")
        a("v_add_f32 v25, v21, v23")
        a("v_add_f32 v16, v16, v18")
        a("v_add_f32 v17, v17, v19")
        a("v_add_f32 v16, v16, v24")
        a("v_add_f32 v17, v17, v25")
        a(f"v_mul_f32 v16, {hx(1.0 / 576)}, v16")
        a(f"v_mul_f32 v17, {hx(1.0 / 576)}, v17")
        rb("v18", "v16")
        a("v_fma_f32 v17, -v16, v16, v17")
        a("v_sub_f32 v20, v12, v18")
        a("v_max_f32 v17, 0, v17")
        a("v_sub_f32 v21, v13, v18")
        rb("v19", "v17")
        a("v_sub_f32 v16, v16, v18")
        a(f"v_add_f32 v19, {hx(1e-5)}, v19")
        rb("v19", "v19")
        a("v_sqrt_f32 v19, v19")
        rb("v20", "v20")
        rb("v19", "v19")
        a("v_rcp_f32 v19, v19")
        rb("v21", "v21")
        a("v_mul_f32 v17, v17, v19")
        a("v_mul_f32 v16, v16, v19")
        a("v_mul_f32 v17, v17, v19")
        a("v_mul_f32 v20, v20, v19")
        rb("v17", "v17")
        a("v_mul_f32 v21, v21, v19")
        a(f"v_add_f32 v17, {hx(1e-5)}, v17")
        rb("v16", "v16")
        rb("v17", "v17")
        rb("v20", "v20")
        a("v_sqrt_f32 v17, v17")
        rb("v21", "v21")
        rb("v17", "v17")
        a("v_sub_f32 v20, v20, v16")
        a("v_rcp_f32 v17, v17")
        a("v_sub_f32 v21, v21, v16")
        rb("v20", "v20")
        rb("v21", "v21")
        a("v_mul_f32 v20, v20, v17")
        a("v_mul_f32 v21, v21, v17")
        rb("v20", "v20")
        rb("v21", "v21")
        for r in range(2):
            a(f"v_ashrrev_i32 v{44 + r}, 31, v{20 + r}")
            a(f"v_bfe_u32 v{24 + r}, v{20 + r}, 15, 16")
        for r in range(2):
            a(f"v_and_b32 v{44 + r}, s56, v{44 + r}")
        for r in range(2):
            a(f"v_add3_u32 v{44 + r}, v{44 + r}, v{24 + r}, s54")
        for r in range(2):
            a(f"ds_read_u16_d16_hi v{48 + r}, v{44 + r}")
        if self.fdiag:
            a("s_memtime s[78:79]")
        for r in range(2):
            a(f"v_subrev_u32 v{24 + r}, {2 * (self.slow_lo or TAB_LO)}, v{24 + r}")
        a("s_mov_b64 exec, s[88:89]")
        for r in range(2):
            a(f"v_cmp_le_u32 s[{90 + 2 * r}:{91 + 2 * r}], s56, v{24 + r}")
        a("s_or_b64 s[86:87], s[90:91], s[92:93]")
        a("s_cbranch_scc1 L_slow")
        a("L_slow_ret:")
        a("s_waitcnt lgkmcnt(0)")
        a("v_add_f32 v12, v12, v48")
        a("v_add_f32 v13, v13, v49")
        a("v_cvt_pk_bf16_f32 v16, v12, v13")
        if self.dry:
            a("s_cmp_lg_u32 s98, 0")
            a("s_cbranch_scc1 L_final_real")
        if self.qprobe or self.probe:
            i, d = self.probe
            a("s_cmp_eq_u32 s3, 0")
            a("s_cbranch_scc0 L_probe_done")
            a("L_probe:")
            a("s_memrealtime s[86:87]")
            a("s_waitcnt lgkmcnt(0)")
            a(f"s_sub_u32 s86, s86, s{70 + 2 * i}")
            a(f"s_cmp_lt_u32 s86, {d}")
            a("s_cbranch_scc1 L_probe")
            a("L_probe_done:")
        a(f"buffer_store_dword v16, v3, s[8:11], s52 offen{self.outpol}")
        if self.fdiag:
            a("s_memtime s[84:85]")
        a("s_mov_b64 exec, -1")
        self.stamp(6)
        if self.stamps:
            a("s_cmp_eq_u32 s3, 1")
            a("s_cbranch_scc0 L_end")
            self.stamp_flush(1 if self.fdiag else 5, 7 if self.fdiag else 6, 16)
        a("L_end:")
        a("s_endpgm")

    def slow(self):
        a = self.a
        rb = self.rb
        a("L_slow:")
        if self.dry:
            a("s_cmp_lg_u32 s98, 0")
            a("s_cbranch_scc1 L_slow_ret")
        a("s_mov_b64 exec, -1")
        self.gelu_consts(28)
        a("s_load_dword s69, s[34:35], 0")
        a("v_lshlrev_b32 v1, 4, v0")
        a("s_waitcnt lgkmcnt(0)")
        a("s_lshl_b32 s69, s69, 16")
        for r in range(2):
            m = f"s[{90 + 2 * r}:{91 + 2 * r}]"
            a(f"L_slow_r{r}:")
            a(f"s_cmp_eq_u64 {m}, 0")
            a(f"s_cbranch_scc1 L_slow_n{r}")
            a(f"s_ff1_i32_b64 s54, {m}")
            a(f"s_bitset0_b64 {m}, s54")
            a(f"v_readlane_b32 s58, v{20 + r}, s54")
            a("v_mov_b32 v26, 0")
            a("v_mov_b32 v27, 0")
            a("s_mov_b32 s53, 0")
            a(f"L_slow_l{r}:")
            for sp, dst in ((28, 64), (30, 68), (32, 72)):
                self.srd(4, sp, 9216)
                a(f"buffer_load_dwordx4 v[{dst}:{dst + 3}], v1, s[4:7], s53 offen")
            a("s_waitcnt vmcnt(0)")
            for (src, out) in ((64, 80), (68, 88), (72, 96)):
                for k in range(4):
                    a(f"v_lshlrev_b32 v{out + 2 * k}, 16, v{src + k}")
                    a(f"v_and_b32 v{out + 2 * k + 1}, 0xffff0000, v{src + k}")
            items = [(80 + 2 * i, 88 + 2 * i, 96 + 2 * i, 104 + 4 * i, 106 + 4 * i) for i in range(4)]
            self.gelu_pk(items, 28, 30, 32, 26, "s[58:59]")
            a("s_add_u32 s53, s53, 1024")
            a("s_cmp_lt_u32 s53, 9216")
            a(f"s_cbranch_scc1 L_slow_l{r}")
            a("v_add_f32 v26, v26, v27")
            self.red16("v_add_f32", "v26")
            self.xrow(16, "v_add_f32", "v26", "v27")
            self.xrow(32, "v_add_f32", "v26", "v27")
            rb("v26", "v26")
            a("v_add_f32 v26, s69, v26")
            rb("v26", "v26")
            a("s_lshl_b64 exec, 1, s54")
            a(f"v_mov_b32 v{48 + r}, v26")
            a("s_mov_b64 exec, -1")
            a(f"s_branch L_slow_r{r}")
            a(f"L_slow_n{r}:")
        a("s_mov_b64 exec, s[88:89]")
        a("s_branch L_slow_ret")
        a("L_code_end:")

    def build(self):
        a = self.a
        a.raw(f"; @launch grid=(256,1,1) block=(512,1,1) lds={LDS_BYTES}")
        a.raw('.amdgcn_target "amdgcn-amd-amdhsa--gfx950"')
        a.raw(".text")
        a.raw(f".globl {NAME}_kernel")
        a.raw(".p2align 8")
        a.raw(f".type {NAME}_kernel,@function")
        a.raw(f"{NAME}_kernel:")
        self.prologue()
        self.helper_start()
        self.stream()
        self.qphase()
        self.table()
        self.owner()
        self.final()
        self.slow()
        a.raw('.section .rodata,"a"')
        a.raw(".p2align 6")
        a.raw(f".amdhsa_kernel {NAME}_kernel")
        a.raw("  .amdhsa_next_free_vgpr 256")
        a.raw("  .amdhsa_next_free_sgpr 102")
        a.raw("  .amdhsa_accum_offset 256")
        a.raw("  .amdhsa_group_segment_fixed_size 0")
        a.raw("  .amdhsa_kernarg_size 104")
        a.raw("  .amdhsa_user_sgpr_count 2")
        a.raw("  .amdhsa_user_sgpr_kernarg_segment_ptr 1")
        a.raw("  .amdhsa_system_sgpr_workgroup_id_x 1")
        a.raw("  .amdhsa_float_denorm_mode_32 3")
        a.raw(".end_amdhsa_kernel")
        return a.finish()


HEADER = open("cdna_kernels/" + NAME + ".s.ref").read().split("; Override launch geometry")[0]

if __name__ == "__main__":
    out = sys.argv[1] if len(sys.argv) > 1 else "k.s"
    kw = eval(sys.argv[2]) if len(sys.argv) > 2 else {}
    open(out, "w").write(HEADER + Gen(**kw).build())
```

```python
import re

TRANS = ("v_exp_f32", "v_log_f32", "v_rcp_f32", "v_rsq_f32", "v_sqrt_f32", "v_sin_f32", "v_cos_f32")


def regs_of(tok):
    tok = tok.strip()
    tok = tok.lstrip("-")
    m = re.fullmatch(r"abs\((.*)\)|\|(.*)\|", tok)
    if m:
        tok = m.group(1) or m.group(2)
    m = re.fullmatch(r"([vsa])\[(\d+):(\d+)\]", tok)
    if m:
        return {f"{m.group(1)}{i}" for i in range(int(m.group(2)), int(m.group(3)) + 1)}
    if re.fullmatch(r"[vsa]\d+", tok):
        return {tok}
    if tok in ("vcc", "vcc_lo", "vcc_hi"):
        return {"vcc"}
    if tok in ("exec", "exec_lo", "exec_hi"):
        return {"exec"}
    if tok == "m0":
        return {"m0"}
    return set()


class Ins:
    def __init__(self, text):
        self.text = text
        body = text.split(";")[0].strip()
        parts = body.split(None, 1)
        self.op = parts[0]
        rest = parts[1] if len(parts) > 1 else ""
        ops = []
        depth = 0
        cur = ""
        for ch in rest:
            if ch in "[(":
                depth += 1
            if ch in "])":
                depth -= 1
            if ch == "," and depth == 0:
                ops.append(cur.strip())
                cur = ""
            else:
                cur += ch
        if cur.strip():
            ops.append(cur.strip())
        self.mods = ""
        if ops:
            last = ops[-1].split(None, 1)
            ops[-1] = last[0]
            if len(last) > 1:
                self.mods = last[1]
        self.ops = ops
        op = self.op
        self.is_mfma = op.startswith(("v_mfma", "v_smfmac"))
        self.is_valu = op.startswith("v_") and not self.is_mfma
        self.is_trans = any(op.startswith(t) for t in TRANS)
        self.is_dpp = "_dpp" in op or "quad_perm" in self.mods or "row_" in self.mods
        self.is_permlane = op.startswith("v_permlane")
        self.is_readlane = op.startswith("v_readlane") or op.startswith("v_readfirstlane")
        self.is_vmem = op.startswith(("buffer_", "global_", "flat_"))
        self.is_ds = op.startswith("ds_")
        self.is_salu = op.startswith("s_")
        self.defs, self.uses = set(), set()
        R = [regs_of(o) for o in ops]
        if self.is_mfma:
            self.defs = R[0]
            self.srcA, self.srcB, self.srcC = R[1], R[2], R[3]
            if op.startswith("v_smfmac"):
                self.srcB, self.srcC = R[2] | R[3], R[0]
            self.uses = self.srcA | self.srcB | self.srcC
        elif self.is_valu:
            if op.startswith("v_cmp"):
                self.defs = R[0]
                self.uses = set().union(*R[1:])
            elif self.is_permlane:
                self.defs = R[0] | R[1]
                self.uses = R[0] | R[1]
            elif op.startswith(("v_add_co", "v_sub_co", "v_addc_co", "v_subb_co")):
                self.defs = R[0] | R[1]
                self.uses = set().union(*R[2:])
            else:
                self.defs = R[0]
                self.uses = set().union(*R[1:]) if len(R) > 1 else set()
                if op.startswith(("v_fmac", "v_writelane", "v_dot2c")) or self.is_dpp:
                    self.uses |= R[0]
        elif self.is_vmem:
            if "store" in op or ("atomic" in op and "sc0" not in self.mods):
                self.uses = set().union(*R)
                if op.startswith("buffer_"):
                    self.store_data = R[0]
                else:
                    self.store_data = R[1]
            else:
                self.defs = R[0]
                self.uses = set().union(*R[1:])
                if "atomic" in op and op.startswith("buffer_"):
                    self.uses |= R[0]
        elif self.is_ds:
            if op.startswith(("ds_write", "ds_add_f32", "ds_add_u32")) and "rtn" not in op:
                self.uses = set().union(*R)
            else:
                self.defs = R[0]
                self.uses = set().union(*R[1:])
        elif self.is_salu:
            if op.startswith(("s_cmp", "s_cbranch", "s_branch", "s_waitcnt", "s_nop", "s_barrier", "s_endpgm",
                              "s_sleep", "s_setprio")):
                self.uses = set().union(*R) if R else set()
            else:
                self.defs = R[0] if R else set()
                self.uses = set().union(*R[1:]) if len(R) > 1 else set()

    def states(self):
        if self.op == "s_nop":
            return int(self.ops[0], 0) + 1
        return 1


def need(prod, cons):
    n = 0
    vdefs = {r for r in prod.defs if r[0] in "va" and r != "vcc"}
    sdefs = {r for r in prod.defs if r[0] == "s" or r == "vcc"}
    if prod.is_valu:
        if vdefs & cons.uses:
            if cons.is_mfma:
                n = max(n, 2)
            if cons.is_dpp or cons.is_permlane:
                n = max(n, 2)
            if cons.is_readlane:
                n = max(n, 1)
            if prod.is_trans and cons.is_valu and not cons.is_trans:
                n = max(n, 1)
            if prod.is_trans and not cons.is_valu:
                n = max(n, 1)
        if sdefs:
            cu = set(cons.uses)
            if cons.op.startswith("v_cndmask") and len(cons.ops) == 3:
                cu.add("vcc")
            if sdefs & cu:
                if cons.is_valu:
                    n = max(n, 4 if cons.op.startswith(("v_readlane", "v_writelane")) else 2)
                if cons.is_vmem:
                    n = max(n, 5)
                if cons.is_salu:
                    n = max(n, 2)
            if "vcc" in sdefs and cons.op in ("s_cbranch_vccz", "s_cbranch_vccnz"):
                n = max(n, 5)
    if prod.is_mfma:
        p = 8 if "32x32" in prod.op else 4
        raw = {4: 8, 8: 12}[p]
        ovl = {4: 6, 8: 10}[p]
        war = {4: 3, 8: 7}[p]
        if cons.is_mfma:
            if prod.defs & (cons.srcA | cons.srcB):
                n = max(n, raw)
            if prod.defs & cons.srcC and prod.defs != cons.srcC:
                n = max(n, ovl)
            if prod.defs & cons.defs and prod.defs != cons.srcC:
                n = max(n, raw)
        else:
            if prod.defs & (cons.uses | cons.defs):
                n = max(n, raw)
            if cons.is_valu and prod.srcC & cons.defs:
                n = max(n, war)
    if prod.is_vmem and hasattr(prod, "store_data") and len(prod.store_data) >= 3:
        if prod.store_data & cons.defs:
            n = max(n, 2)
    if prod.is_salu and "m0" in prod.defs and (cons.is_vmem and "lds" in cons.mods):
        n = max(n, 1)
    return n


MAXD = 12


class Asm:
    def __init__(self):
        self.items = []

    def __call__(self, text):
        for line in text.strip().split("\n"):
            line = line.strip()
            if line:
                self.items.append(line)

    def raw(self, text):
        self.items.append("#RAW " + text)

    def finish(self):
        out = []
        hist = []

        def worst_pending():
            worst = 0
            d = 0
            for p in reversed(hist):
                if p is None:
                    break
                w = 0
                if p.is_mfma:
                    w = 12 if "32x32" in p.op else 8
                elif p.is_valu:
                    w = 5 if any(r[0] == "s" or r == "vcc" for r in p.defs) else 2
                elif p.is_vmem and hasattr(p, "store_data") and len(p.store_data) >= 3:
                    w = 2
                worst = max(worst, w - d)
                d += p.states()
                if d >= MAXD:
                    break
            return worst

        def pad(n):
            while n > 0:
                k = min(n, 16)
                t = f"s_nop {k - 1}"
                out.append("    " + t)
                hist.append(Ins(t))
                n -= k

        for it in self.items:
            if it.startswith("#RAW "):
                out.append(it[5:])
                continue
            if it.startswith(";"):
                out.append("    " + it)
                continue
            if it.endswith(":"):
                pad(worst_pending())
                out.append(it)
                hist.append(None)
                continue
            if it.startswith("."):
                out.append(it)
                continue
            ins = Ins(it)
            req = 0
            d = 0
            for p in reversed(hist):
                if p is None:
                    break
                req = max(req, need(p, ins) - d)
                d += p.states()
                if d >= MAXD:
                    break
            if ins.op.startswith(("s_cbranch", "s_branch")):
                req = max(req, worst_pending() - 1)
            pad(req)
            out.append("    " + it)
            hist.append(ins)
        return "\n".join(out) + "\n"
```

```python
import struct
import sys
from asmlib import Asm

NAME = "sequential_preLN__gqa_block_cached__mixer_token_mlp__decode"

EPOCH = 0
QX = 0x10000
E1 = 0x60000
FIN = 0xC0000
TAB = 0xE0000
XI = 0xE8000
STAMP = 0x100000
WS_SPAN = 0x200000
L_Q = 0
L_TAG = 512
L_CNT = 520
L_FLAG = 524
L_CNT2 = 528
L_DONE = 532
L_NEXT = 536
L_SAME = 540
L_TP = 576
L_TY = 928
L_P = 1024
L_PS = 5120
L_ST = 7168
L_KR = 7424
L_U = L_KR + 4 * 8 * 4096
L_R = L_U
L_TAB = L_U
LDS_BYTES = L_U + 18432

TAB_LO = 0x3800
TAB_N = 2304
TPW = 21
LOG2E = 1.4426950408889634
BETA = 0.7978845608028654
C0 = -2.0 * BETA * LOG2E
C1 = C0 * 0.044715
FINAL_WG = (4, 133)
KREG = 64
VRING = 128
W1, B1, W2 = 36, 56, 76
SPIN = 0x100000


def f2u(x):
    return struct.unpack("<I", struct.pack("<f", x))[0]


def hx(x):
    return hex(f2u(x))


class Gen:
    def __init__(self, Tn=66, To=50, stamps=False, dbg=False, ring=8, pre_throttle=8, first_tiles=1,
                 q_sleep0=32, q_sleep=4, tail_sleep=0, prio=0, hprio=3, code_pf=True, mimic=True, mlp_pol="",
                 b0=1, no_mlp=False, no_wo=False, no_table=False, h0_mlp_late=True, tprio=1, trace=False, look=2, mlp_delay=0, gather_sleep0=64, gather_sleep=32, dynprio=True, early=True, h0_mlp_early=True, done_sleep=1, h0_first=True, half_thr=4, pollcnt=False, no_qwait=False, kvpol=' nt', kpol=None, vpol=None, dry=True, odiag=False, probe=None, qprobe=None, b0_early=False, b0_fast=True, h_delay=0, fdiag=False, xthr=None, xmid=None, nbig=5, k0_early=False, outpol='', slow_lo=None, fullstat=True, opol=' sc1', predirty=0, froll_sleep=0, sdiag=False, pretouch=1, opipe=False, kahead=True, remap=True, xlocal=True, roll=True, spec=True):
        self.__dict__.update(locals())
        self.a = Asm()

    def stamp(self, i):
        if self.stamps or self.dbg or self.probe or self.qprobe:
            self.a(f"s_memrealtime s[{70 + 2 * i}:{71 + 2 * i}]")

    def stamp_flush(self, first, last, slot_base):
        if not self.stamps:
            return
        a = self.a
        a("s_waitcnt lgkmcnt(0)")
        a("s_mov_b64 exec, 1")
        a("s_lshl_b32 s48, s2, 8")
        a(f"s_add_u32 s48, s48, {STAMP}")
        a("v_mov_b32 v60, 0")
        for i in range(first, last + 1):
            a(f"v_mov_b32 v62, s{70 + 2 * i}")
            a(f"v_mov_b32 v63, s{71 + 2 * i}")
            a(f"buffer_store_dwordx2 v[62:63], v60, s[12:15], s48 offen offset:{(slot_base + i) * 8}")
            a("s_nop 1")
        a("s_mov_b64 exec, -1")

    def trace_pt(self):
        if not self.trace:
            return
        a = self.a
        a("s_memrealtime s[92:93]")
        a("s_waitcnt lgkmcnt(0)")
        a("s_mov_b32 m0, s59")
        a("v_writelane_b32 v58, s92, m0")
        a("s_add_u32 s59, s59, 1")

    def rb(self, dst, src):
        self.a(f"v_cvt_pk_bf16_f32 {dst}, 0, {src}")

    def srd(self, base, ptr, size):
        a = self.a
        a(f"s_mov_b32 s{base}, s{ptr}")
        a(f"s_mov_b32 s{base + 1}, s{ptr + 1}")
        a(f"s_mov_b32 s{base + 2}, {size}")
        a(f"s_mov_b32 s{base + 3}, 0x20000")

    def dpp(self, op, v, ctrl):
        self.a(f"{op}_dpp {v}, {v}, {v} {ctrl} row_mask:0xf bank_mask:0xf")

    def red8(self, op, v):
        for c in ("quad_perm:[1,0,3,2]", "quad_perm:[2,3,0,1]", "row_half_mirror"):
            self.dpp(op, v, c)

    def red16(self, op, v):
        self.red8(op, v)
        self.dpp(op, v, "row_ror:8")

    def xrow(self, n, op, v, t):
        self.a(f"v_mov_b32 {t}, {v}")
        self.a(f"v_permlane{n}_swap_b32 {v}, {t}")
        self.a(f"{op} {v}, {v}, {t}")

    def pack3(self, d, s):
        for i in range(3):
            self.a(f"v_perm_b32 v{d + i}, v{s + i}, v{s + 3}, s{64 + i}")

    def unpack4th(self, g):
        self.a(f"v_perm_b32 v{g + 3}, v{g + 2}, v{g + 1}, s67")
        self.a(f"v_perm_b32 v{g + 3}, v{g + 3}, v{g}, s68")

    def masks(self, base, t0, t1):
        a = self.a
        a(f"v_and_b32 v{t0}, 1, v0")
        a(f"v_cmp_eq_u32 vcc, 1, v{t0}")
        a(f"v_mov_b32 v{t0}, 0xffff")
        a(f"v_mov_b32 v{t1}, 0xffff0000")
        a(f"v_cndmask_b32 v{t0}, v{t0}, v{t1}, vcc")
        a(f"v_bfe_u32 v{t1}, v0, 1, 2")
        for q in range(4):
            a(f"v_cmp_eq_u32 vcc, {q}, v{t1}")
            a(f"v_cndmask_b32 v{base + q}, 0, v{t0}, vcc")

    def tags_bad(self, regs, acc, t):
        a = self.a
        a(f"v_xor_b32 v{acc}, s47, v{regs[0]}")
        for r in regs[1:]:
            a(f"v_xor_b32 v{t}, s47, v{r}")
            a(f"v_or_b32 v{acc}, v{acc}, v{t}")
        a(f"v_cmp_ne_u32 vcc, 0, v{acc}")

    def retry(self, loop, sleep, cnt="s50"):
        a = self.a
        if sleep:
            a(f"s_sleep {sleep}")
        a(f"s_add_u32 {cnt}, {cnt}, 1")
        a(f"s_cmp_lt_u32 {cnt}, {SPIN}")
        a(f"s_cbranch_scc1 {loop}")

    def wait_flag(self, name, vz, vt, off=L_FLAG, sleep=1):
        a = self.a
        a("s_mov_b32 s50, 0")
        a(f"L_{name}:")
        a(f"ds_read_b32 v{vt}, v{vz} offset:{off}")
        a("s_waitcnt lgkmcnt(0)")
        a(f"v_readfirstlane_b32 s48, v{vt}")
        a("s_cmp_lg_u32 s48, 0")
        a(f"s_cbranch_scc1 L_{name}_ok")
        if sleep:
            a(f"s_sleep {sleep}")
        a("s_add_u32 s50, s50, 1")
        a(f"s_cmp_lt_u32 s50, {SPIN * 16}")
        a(f"s_cbranch_scc1 L_{name}")
        a(f"L_{name}_ok:")

    def gelu_pk(self, items, c0, c1, one, acc, sa):
        a = self.a
        P = lambda r: f"v[{r}:{r + 1}]"

        def rnd(sel):
            if self.mimic:
                for it in items:
                    r = it[sel]
                    self.rb(f"v{r}", f"v{r}")
                    self.rb(f"v{r + 1}", f"v{r + 1}")

        for (w1, b1, w2, u, t) in items:
            a(f"v_pk_mul_f32 {P(u)}, {sa}, {P(w1)} op_sel_hi:[0,1]")
        rnd(3)
        for (w1, b1, w2, u, t) in items:
            a(f"v_pk_add_f32 {P(u)}, {P(u)}, {P(b1)}")
        rnd(3)
        for (w1, b1, w2, u, t) in items:
            a(f"v_pk_mul_f32 {P(t)}, {P(u)}, {P(u)}")
        for (w1, b1, w2, u, t) in items:
            a(f"v_pk_fma_f32 {P(t)}, {P(t)}, {P(c1)}, {P(c0)}")
        for (w1, b1, w2, u, t) in items:
            a(f"v_pk_mul_f32 {P(t)}, {P(t)}, {P(u)}")
        for (w1, b1, w2, u, t) in items:
            a(f"v_exp_f32 v{t}, v{t}")
            a(f"v_exp_f32 v{t + 1}, v{t + 1}")
        for (w1, b1, w2, u, t) in items:
            a(f"v_pk_add_f32 {P(t)}, {P(t)}, {P(one)}")
        for (w1, b1, w2, u, t) in items:
            a(f"v_rcp_f32 v{t}, v{t}")
            a(f"v_rcp_f32 v{t + 1}, v{t + 1}")
        for (w1, b1, w2, u, t) in items:
            a(f"v_pk_mul_f32 {P(t)}, {P(t)}, {P(u)}")
        rnd(4)
        for (w1, b1, w2, u, t) in items:
            a(f"v_pk_fma_f32 {P(acc)}, {P(t)}, {P(w2)}, {P(acc)}")

    def gelu_consts(self, base):
        for i in range(2):
            self.a(f"v_mov_b32 v{base + i}, {hx(C0)}")
            self.a(f"v_mov_b32 v{base + 2 + i}, {hx(C1)}")
            self.a(f"v_mov_b32 v{base + 4 + i}, 1.0")

    def issue_mlp(self, ndw, rawofs):
        a = self.a
        if self.no_mlp:
            return
        a("v_lshlrev_b32 v1, 4, v0")
        a("v_lshlrev_b32 v2, 3, v0")
        for sp, D in ((28, W1), (30, B1), (32, W2)):
            dst = D + rawofs
            self.srd(4, sp, 9216)
            o = 0
            while o < ndw:
                n = 4 if ndw - o >= 4 else 2
                a(f"buffer_load_dwordx{n} v[{dst + o}:{dst + o + n - 1}], v{1 if n == 4 else 2}, s[4:7], s48 offen offset:{256 * o}{self.mlp_pol}")
                o += n

    def unpack_mlp(self, ndw, rawofs):
        a = self.a
        for D in (W1, B1, W2):
            for i in range(ndw):
                src = D + rawofs + i
                for j in range(i + 1, ndw):
                    assert D + rawofs + j not in (D + 2 * i, D + 2 * i + 1)
                assert D + 2 * i != src
                a(f"v_lshlrev_b32 v{D + 2 * i}, 16, v{src}")
                a(f"v_and_b32 v{D + 2 * i + 1}, 0xffff0000, v{src}")

    def load_wo(self, label, after):
        a = self.a
        a("s_cmp_eq_u32 s45, 0")
        a(f"s_cbranch_scc1 {label}")
        if self.no_wo:
            a(f"s_branch {after}")
            a(f"{label}:")
            return
        self.srd(8, 24, 4718592)
        a("s_lshl_b32 s48, s43, 1")
        a("s_add_u32 s48, s48, s42")
        a(f"s_mul_i32 s48, s48, {128 * 1152}")
        a(f"s_mul_i32 s49, s56, {32 * 1152}")
        a("s_add_u32 s48, s48, s49")
        a("v_lshrrev_b32 v1, 5, v0")
        a("v_bfe_u32 v2, v0, 4, 1")
        a("v_lshl_add_u32 v1, v1, 2, v2")
        a("v_mul_u32_u24 v1, 1152, v1")
        a("v_and_b32 v2, 15, v0")
        a("v_lshl_add_u32 v1, v2, 4, v1")
        for last in (False, True):
            if last:
                a("s_mov_b32 exec_lo, 0x00ff00ff")
                a("s_mov_b32 exec_hi, 0x00ff00ff")
            for P in range(4):
                for T in range(2):
                    a(f"s_add_u32 s49, s48, {(16 * (P >> 1) + 2 * (P & 1) + 8 * T) * 1152}")
                    for cg in ((4,) if last else range(4)):
                        r = 96 + 8 * (5 * P + cg) + 4 * T
                        a(f"buffer_load_dwordx4 v[{r}:{r + 3}], v1, s[8:11], s49 offen offset:{256 * cg} nt")
        a("s_mov_b64 exec, -1")
        a(f"s_branch {after}")
        a(f"{label}:")

    def prologue(self):
        a = self.a
        Tn, To = self.Tn, self.To
        self.stamp(0)
        if self.stamps:
            for i in range(72, 86, 2):
                a(f"s_mov_b64 s[{i}:{i + 1}], 0")
        a("s_cmp_ge_u32 s2, 256")
        a("s_cbranch_scc1 L_end")
        a("s_load_dwordx16 s[16:31], s[0:1], 0")
        a("s_load_dwordx8 s[32:39], s[0:1], 64")
        a("s_load_dwordx2 s[40:41], s[0:1], 96")
        a("v_lshrrev_b32 v1, 6, v0")
        a("v_and_b32 v0, 63, v0")
        a("s_lshr_b32 s42, s2, 7")
        a("v_readfirstlane_b32 s3, v1")
        if self.remap:
            a("s_and_b32 s43, s2, 15")
            a("s_bfe_u32 s44, s2, 0x30004")
            a("s_lshl_b32 s2, s42, 4")
            a("s_add_u32 s2, s2, s43")
            a("s_lshl_b32 s2, s2, 3")
            a("s_add_u32 s2, s2, s44")
        else:
            a("s_bfe_u32 s43, s2, 0x40003")
            a("s_and_b32 s44, s2, 7")
        if self.b0_early or self.b0_fast:
            self.lds_init()
        a("s_mov_b32 s7, 0x20000")
        a("s_mov_b32 s11, 0x20000")
        a("s_cmp_eq_u32 s3, 4")
        a("s_cbranch_scc1 L_h0_start")
        nb = self.nbig
        To = 512 - nb * Tn - (7 - nb) * (Tn - 1)
        a("s_and_b32 s48, s43, 7")
        a("s_cmp_gt_u32 s44, s48")
        a("s_cselect_b32 s50, 1, 0")
        a("s_sub_u32 s51, s44, s50")
        a(f"s_mul_i32 s52, s50, {To}")
        a(f"s_min_u32 s50, s51, {nb}")
        a(f"s_cmp_lt_u32 s51, {nb}")
        a("s_cselect_b32 s49, 1, 0")
        a(f"s_add_u32 s49, s49, {Tn - 1}")
        a(f"s_mul_i32 s51, s51, {Tn - 1}")
        a("s_add_u32 s51, s51, s50")
        a("s_add_u32 s51, s51, s52")
        a("s_cmp_eq_u32 s44, s48")
        a(f"s_cselect_b32 s49, {To}, s49")
        a("s_lshr_b32 s52, s2, 3")
        a("s_lshl_b32 s52, s52, 9")
        a("s_add_u32 s52, s52, s51")
        a("s_add_u32 s6, s52, s49")
        a("s_lshl_b32 s6, s6, 12")
        a("s_mov_b32 s10, s6")
        a("s_lshl_b32 s51, s52, 12")
        a("s_add_u32 s52, s52, s3")
        a("s_lshl_b32 s52, s52, 12")
        a("v_lshlrev_b32 v2, 4, v0")
        a("v_lshrrev_b32 v1, 4, v0")
        a("v_lshlrev_b32 v1, 6, v1")
        a("v_xor_b32 v60, v2, v1")
        for c in range(1, 4):
            a(f"v_xor_b32 v{60 + c}, {16 * c}, v60")
        a("s_lshl_b32 s56, s3, 15")
        a(f"s_add_u32 s56, s56, {L_KR}")
        a("s_cmp_gt_u32 s3, 4")
        a("s_waitcnt lgkmcnt(0)")
        a("s_mov_b32 s4, s18")
        a("s_mov_b32 s5, s19")
        a("s_mov_b32 s8, s20")
        a("s_mov_b32 s9, s21")
        if self.k0_early:
            a("s_cbranch_scc1 L_nok0")
            self.issue_tile(0, grab=False)
            a("L_nok0:")
            a("s_barrier")
        else:
            if self.sdiag:
                a("s_memrealtime s[82:83]")
            a("s_barrier")
            if self.sdiag:
                a("s_memrealtime s[84:85]")
            a("s_cbranch_scc1 L_join")
            self.issue_tile(0, grab=False)
        a("s_branch L_join")
        a("L_h0_start:")
        a(f"s_setprio {self.hprio}")
        a("v_mov_b32 v2, 0")
        for c in range(4):
            a(f"v_mov_b32 v{60 + c}, 0")
        a("v_lshrrev_b32 v8, 5, v0")
        a("v_mul_u32_u24 v8, 1152, v8")
        a("v_and_b32 v10, 31, v0")
        a("v_mul_u32_u24 v10, 36, v10")
        a("v_add_u32 v8, v8, v10")
        a("v_lshrrev_b32 v9, 4, v0")
        a(f"v_mul_u32_u24 v9, {18 * 8192}, v9")
        a("v_and_b32 v10, 15, v0")
        a("v_lshl_add_u32 v9, v10, 4, v9")
        a("s_lshl_b32 s48, s43, 1")
        a("s_add_u32 s48, s48, s42")
        a("s_lshl_b32 s48, s48, 8")
        a(f"s_mul_i32 s49, s44, {72 * 8192}")
        a("s_add_u32 s48, s48, s49")
        a("s_mov_b32 s6, 2304")
        a("s_mov_b32 s10, 4718592")
        a("s_waitcnt lgkmcnt(0)")
        a("s_mov_b32 s4, s16")
        a("s_mov_b32 s5, s17")
        a("s_mov_b32 s8, s22")
        a("s_mov_b32 s9, s23")
        if self.b0_early:
            a("s_barrier")
        a("buffer_load_dwordx4 v[12:15], v8, s[4:7], 0 offen")
        a("buffer_load_dwordx4 v[16:19], v8, s[4:7], 0 offen offset:16")
        a("buffer_load_dword v20, v8, s[4:7], 0 offen offset:32")
        for t in range(18):
            a(f"buffer_load_dwordx4 v[{96 + 4 * t}:{99 + 4 * t}], v9, s[8:11], s48 offen nt")
            if t < 17:
                a("s_add_u32 s48, s48, 8192")
        if self.b0_fast and not self.b0_early:
            a("s_barrier")
        a(f"s_load_dword s55, s[40:41], {EPOCH}")
        a("L_join:")
        if not (self.b0_early or self.b0_fast):
            self.lds_init()
        a("s_and_b32 s48, s43, 7")
        a("s_cmp_eq_u32 s44, s48")
        a("s_cselect_b32 s45, 1, 0")
        a(f"s_mov_b32 s14, {WS_SPAN}")
        a("s_mov_b32 s15, 0x20000")
        self.consts()
        if not self.b0_fast:
            a("s_waitcnt lgkmcnt(0)")
        a("s_mov_b32 s12, s40")
        a("s_mov_b32 s13, s41")
        if not (self.b0_early or self.b0_fast):
            a("s_barrier")
        a("s_cmp_lt_u32 s3, 4")
        a("s_cbranch_scc1 L_stream")

    def lds_init(self):
        a = self.a
        for i in range(4):
            a(f"v_mov_b32 v{4 + i}, 0")
        a("v_mov_b32 v66, 4")
        a("v_mov_b32 v64, 0")
        a("v_mov_b32 v65, 0")
        a(f"ds_write_b128 v4, v[4:7] offset:{L_CNT - 8}")
        a(f"ds_write_b96 v4, v[64:66] offset:{L_CNT2}")

    def consts(self):
        a = self.a
        a("s_mov_b32 s46, 0")
        a(f"s_cmp_eq_u32 s2, {FINAL_WG[0]}")
        a("s_cselect_b32 s46, 1, s46")
        a(f"s_cmp_eq_u32 s2, {FINAL_WG[1]}")
        a("s_cselect_b32 s46, 2, s46")
        a("s_mov_b32 s60, 0x00ff00ff")
        a("s_mov_b32 s61, 0xff00ff00")
        a(f"s_mov_b32 s62, {hx(LOG2E)}")
        a(f"s_mov_b32 s63, {hx(128 ** -0.5)}")
        a("s_mov_b32 s64, 0x07060501")
        a("s_mov_b32 s65, 0x07060502")
        a("s_mov_b32 s66, 0x07060503")
        a("s_mov_b32 s67, 0x04000c0c")
        a("s_mov_b32 s68, 0x0706000c")
        a("s_mov_b32 s98, 0")

    def helper_start(self):
        a = self.a
        a(f"s_setprio {self.hprio}")
        a("s_sub_u32 s56, s3, 4")
        a("s_load_dword s69, s[34:35], 0")
        a("s_cmp_eq_u32 s56, 0")
        a("s_cbranch_scc1 L_qphase")
        if self.h_delay:
            a(f"s_sleep {self.h_delay}")
        if self.code_pf:
            a("s_getpc_b64 s[50:51]")
            a("L_pc:")
            a(f"s_sub_u32 s50, s50, L_pc-{NAME}_kernel")
            a("s_subb_u32 s51, s51, 0")
            a("s_sub_u32 s48, s56, 1")
            a("s_lshl_b32 s48, s48, 13")
            a("v_lshlrev_b32 v1, 7, v0")
            a("v_add_u32 v1, s48, v1")
            a(f"v_min_u32 v1, L_code_end-{NAME}_kernel-4, v1")
            a("global_load_dword v8, v1, s[50:51]")
        self.load_wo("L_nowo_a", "L_pre_b2")
        for _ in range(self.mlp_delay):
            a("s_sleep 16")
        a("s_mul_i32 s48, s56, 2560")
        a("s_sub_u32 s48, s48, 1024")
        self.issue_mlp(10, 10)
        a("s_waitcnt vmcnt(0)")
        self.unpack_mlp(10, 10)
        a("s_branch L_table")

    def qphase(self):
        a = self.a
        rb = self.rb
        X = 168
        a("L_qphase:")
        nm = 0
        self.masks(4, 22, 23)
        a("s_waitcnt vmcnt(18) lgkmcnt(0)")
        self.stamp(7)
        for k in range(9):
            a(f"v_lshlrev_b32 v{X + 2 * k}, 16, v{12 + k}")
            a(f"v_and_b32 v{X + 1 + 2 * k}, 0xffff0000, v{12 + k}")
        a("s_add_u32 s55, s55, 1")
        a("s_mul_i32 s47, s55, 0x9E3779B1")
        a(f"v_add_f32 v22, v{X}, v{X + 1}")
        a(f"v_add_f32 v23, v{X + 2}, v{X + 3}")
        for k in range(4, 18, 2):
            a(f"v_add_f32 v22, v22, v{X + k}")
            a(f"v_add_f32 v23, v23, v{X + k + 1}")
        a("v_add_f32 v22, v22, v23")
        self.red16("v_add_f32", "v22")
        self.xrow(16, "v_add_f32", "v22", "v23")
        a(f"v_mul_f32 v22, {hx(1.0 / 576)}, v22")
        a("v_mov_b32 v24, 0")
        a("v_mov_b32 v25, 0")
        for k in range(0, 18, 2):
            a(f"v_sub_f32 v23, v{X + k}, v22")
            a(f"v_sub_f32 v26, v{X + k + 1}, v22")
            a("v_fmac_f32 v24, v23, v23")
            a("v_fmac_f32 v25, v26, v26")
        a("v_add_f32 v24, v24, v25")
        self.red16("v_add_f32", "v24")
        self.xrow(16, "v_add_f32", "v24", "v23")
        a(f"v_mul_f32 v24, {hx(1.0 / 576)}, v24")
        rb("v22", "v22")
        rb("v24", "v24")
        a(f"v_add_f32 v24, {hx(1e-5)}, v24")
        rb("v24", "v24")
        a("v_sqrt_f32 v24, v24")
        for k in range(18):
            a(f"v_sub_f32 v{X + k}, v{X + k}, v22")
        rb("v24", "v24")
        a("v_rcp_f32 v24, v24")
        for k in range(18):
            rb(f"v{X + k}", f"v{X + k}")
        for k in range(18):
            a(f"v_mul_f32 v{X + k}, v{X + k}, v24")
        for k in range(9):
            a(f"v_cvt_pk_bf16_f32 v{12 + k}, v{X + 2 * k}, v{X + 1 + 2 * k}")
        a("v_bfe_u32 v1, v0, 3, 1")
        a("v_lshlrev_b32 v1, 5, v1")
        a("v_lshrrev_b32 v2, 4, v0")
        a("v_add_u32 v1, v1, v2")
        a("s_lshl_b32 s48, s44, 2")
        a("v_add_lshl_u32 v1, v1, s48, 2")
        for k in range(9):
            a(f"ds_bpermute_b32 v{24 + k}, v1, v{12 + k}")
        a("s_mov_b32 s48, 0x01000100")
        a("s_mov_b32 s49, 0x03020302")
        a("s_waitcnt lgkmcnt(0)")
        for t in range(18):
            ab = 36 + 4 * (t & 1)
            a(f"v_perm_b32 v33, v{24 + t // 2}, v{24 + t // 2}, s{48 + (t & 1)}")
            for q in range(4):
                a(f"v_and_b32 v{ab + q}, v33, v{4 + q}")
            a(f"s_waitcnt vmcnt({17 - t})")
            c = "0" if t == 0 else "v[8:11]"
            a(f"v_mfma_f32_16x16x32_bf16 v[8:11], v[{ab}:{ab + 3}], v[{96 + 4 * t}:{99 + 4 * t}], {c}")
        a("s_lshl_b32 s48, s43, 14")
        a("s_lshl_b32 s49, s42, 12")
        a("s_add_u32 s49, s49, s48")
        a("s_lshl_b32 s50, s44, 9")
        a("s_add_u32 s49, s49, s50")
        a(f"s_add_u32 s49, s49, {QX}")
        a("v_lshrrev_b32 v1, 5, v0")
        a("v_lshlrev_b32 v1, 13, v1")
        a("v_and_b32 v2, 31, v0")
        a("v_lshl_add_u32 v1, v2, 4, v1")
        a("v_mov_b32 v15, s47")
        self.pack3(12, 8)
        a("buffer_store_dwordx4 v[12:15], v1, s[12:15], s49 offen sc1")
        self.stamp(1)
        if self.xlocal:
            a("s_getreg_b32 s99, hwreg(HW_REG_XCC_ID, 0, 4)")
            a("s_lshl_b32 s57, s43, 8")
            a(f"s_add_u32 s57, s57, {XI}")
            a("v_lshlrev_b32 v44, 4, v0")
            a("v_mov_b32 v40, s99")
            a("v_mov_b32 v43, s47")
            a("s_lshl3_add_u32 s48, s42, s44")
            a("s_lshl_b64 exec, 1, s48")
            a("buffer_store_dwordx4 v[40:43], v44, s[12:15], s57 offen sc1")
            a("s_mov_b64 exec, -1")
        if self.h0_mlp_early:
            a("s_cmp_lg_u32 s45, 0")
            a("s_cbranch_scc1 L_h0_nomlp")
            a("s_mov_b32 s48, 0")
            self.issue_mlp(6, 14)
            a("L_h0_nomlp:")
        a("s_lshl_b32 s48, s43, 14")
        a("s_lshl_b32 s49, s42, 13")
        a("s_add_u32 s48, s48, s49")
        a(f"s_add_u32 s48, s48, {QX}")
        a("s_add_u32 s49, s48, 4096")
        a("v_lshlrev_b32 v1, 4, v0")
        a("s_mov_b32 s50, 0")
        if self.q_sleep0:
            a(f"s_sleep {self.q_sleep0}")
        a("L_qpoll:")
        for u in range(8):
            so = "s48" if u < 4 else "s49"
            a(f"buffer_load_dwordx4 v[{8 + 4 * u}:{11 + 4 * u}], v1, s[12:15], {so} offen offset:{1024 * (u & 3)} sc1")
        if self.xlocal:
            a("v_mov_b32 v43, s47")
            a("s_mov_b64 exec, 0xffff")
            a("buffer_load_dwordx4 v[40:43], v44, s[12:15], s57 offen sc1")
            a("s_mov_b64 exec, -1")
        a("s_waitcnt vmcnt(0)")
        self.tags_bad([11 + 4 * u for u in range(8)] + ([43] if self.xlocal else []), 2, 3)
        a("s_cbranch_vccz L_qgot")
        self.retry("L_qpoll", self.q_sleep)
        a("L_qgot:")
        if self.pollcnt:
            a("s_mul_i32 s84, s50, 100")
            a("s_add_u32 s84, s84, s70")
            a("s_addc_u32 s85, s71, 0")
        for u in range(8):
            self.unpack4th(8 + 4 * u)
        for hh in range(2):
            for e in range(4):
                g = 8 + 16 * hh + e
                a(f"v_add_f32 v{g}, v{g}, v{g + 4}")
                a(f"v_add_f32 v{g + 8}, v{g + 8}, v{g + 12}")
            for e in range(4):
                g = 8 + 16 * hh + e
                a(f"v_add_f32 v{g}, v{g}, v{g + 8}")
        for e in range(4):
            a(f"v_permlane32_swap_b32 v{8 + e}, v{24 + e}")
        for e in range(4):
            a(f"v_add_f32 v{8 + e}, v{8 + e}, v{24 + e}")
        a("v_cvt_pk_bf16_f32 v12, v8, v9")
        a("v_cvt_pk_bf16_f32 v13, v10, v11")
        a("v_lshrrev_b32 v1, 5, v0")
        a("v_lshlrev_b32 v1, 8, v1")
        a("v_and_b32 v2, 15, v0")
        a("v_lshl_add_u32 v1, v2, 4, v1")
        a("v_bfe_u32 v2, v0, 4, 1")
        a("v_lshl_add_u32 v1, v2, 3, v1")
        a(f"ds_write_b64 v1, v[12:13] offset:{L_Q}")
        a("v_mov_b32 v14, s47")
        a("v_mov_b32 v15, s55")
        a("v_mov_b32 v2, 0")
        a("v_mov_b32 v3, 1")
        a(f"ds_write_b64 v2, v[14:15] offset:{L_TAG}")
        if self.xlocal:
            a("v_cmp_ne_u32 vcc, s99, v40")
            a("s_and_b32 s48, vcc_lo, 0xffff")
            a("v_mov_b32 v16, s48")
            a(f"ds_write_b32 v2, v16 offset:{L_SAME}")
        a("s_waitcnt lgkmcnt(0)")
        a(f"ds_write_b32 v2, v3 offset:{L_FLAG}")
        self.stamp(2)
        self.load_wo("L_nowo_b", "L_pre_b2")
        if not self.h0_mlp_early:
            a("s_mov_b32 s48, 0")
            self.issue_mlp(6, 14)
            a("s_waitcnt vmcnt(0)")
        self.unpack_mlp(6, 14)

    def table(self):
        a = self.a
        rb = self.rb
        a("L_table:")
        a(f"s_setprio {self.tprio}")
        a("s_lshr_b32 s48, s2, 3")
        a("s_mul_i32 s48, s48, 7")
        a("s_add_u32 s48, s48, s44")
        a("s_and_b32 s49, s43, 7")
        a("s_cmp_gt_u32 s44, s49")
        a("s_cselect_b32 s49, 1, 0")
        a("s_sub_u32 s54, s48, s49")
        a(f"s_mul_i32 s53, s54, {TPW}")
        self.gelu_consts(28)
        a(f"s_mul_i32 s48, s56, {4 * TPW}")
        a("v_mov_b32 v3, s48")
        a(f"s_mov_b32 s57, {1 if self.no_table else TPW}")
        a("L_tloop:")
        a(f"s_cmp_ge_u32 s53, {TAB_N}")
        a(f"s_cselect_b32 s48, {0x8000 - TAB_N}, 0")
        a("s_add_u32 s48, s48, s53")
        a(f"s_add_u32 s48, s48, {TAB_LO}")
        a("s_lshl_b32 s58, s48, 16")
        a("v_mov_b32 v26, 0")
        a("v_mov_b32 v27, 0")
        for (p0, n) in ((0, 3), (3, 3), (6, 4)):
            if p0 == 6:
                a("s_cmp_eq_u32 s56, 0")
                a("s_cbranch_scc1 L_tskip")
            items = [(W1 + 2 * (p0 + i), B1 + 2 * (p0 + i), W2 + 2 * (p0 + i), 8 + 4 * i, 10 + 4 * i) for i in range(n)]
            self.gelu_pk(items, 28, 30, 32, 26, "s[58:59]")
        a("L_tskip:")
        a("v_add_f32 v26, v26, v27")
        self.red16("v_add_f32", "v26")
        self.xrow(16, "v_add_f32", "v26", "v27")
        self.xrow(32, "v_add_f32", "v26", "v27")
        a(f"ds_write_b32 v3, v26 offset:{L_TP}")
        a("v_add_u32 v3, 4, v3")
        a("s_add_u32 s53, s53, 1")
        a("s_sub_u32 s57, s57, 1")
        a("s_cmp_lg_u32 s57, 0")
        a("s_cbranch_scc1 L_tloop")
        a("v_mov_b32 v2, 0")
        self.wait_flag("tflag", 2, 8)
        a(f"ds_read_b64 v[10:11], v2 offset:{L_TAG}")
        a("v_mov_b32 v8, 1")
        a("s_mov_b64 exec, 1")
        a(f"ds_add_rtn_u32 v9, v2, v8 offset:{L_CNT}")
        a("s_mov_b64 exec, -1")
        a("s_waitcnt lgkmcnt(0)")
        a("v_readfirstlane_b32 s47, v10")
        a("v_readfirstlane_b32 s55, v11")
        a("v_readfirstlane_b32 s48, v9")
        a("s_cmp_eq_u32 s48, 3")
        a("s_cbranch_scc0 L_tdone")
        a("v_lshlrev_b32 v3, 2, v0")
        a(f"s_mov_b64 exec, {hex((1 << TPW) - 1)}")
        for w in range(4):
            a(f"ds_read_b32 v{8 + w}, v3 offset:{L_TP + 4 * TPW * w}")
        a("v_lshlrev_b32 v3, 1, v0")
        a("s_lshl_b32 s48, s69, 16")
        a("s_waitcnt lgkmcnt(0)")
        a("v_add_f32 v8, v8, v9")
        a("v_add_f32 v10, v10, v11")
        a("v_add_f32 v8, v8, v10")
        rb("v8", "v8")
        a("v_add_f32 v8, s48, v8")
        a("v_cvt_pk_bf16_f32 v8, v8, 0")
        a(f"ds_write_b16 v3, v8 offset:{L_TY}")
        a("s_mov_b64 exec, 15")
        a("v_mul_u32_u24 v3, 12, v0")
        a("s_waitcnt lgkmcnt(0)")
        for i in range(3):
            a(f"ds_read_b32 v{8 + i}, v3 offset:{L_TY + 4 * i}")
        a("v_mov_b32 v11, s47")
        a("v_lshlrev_b32 v3, 4, v0")
        a("s_lshl_b32 s48, s54, 6")
        a(f"s_add_u32 s48, s48, {TAB}")
        a("s_waitcnt lgkmcnt(0)")
        a("buffer_store_dwordx4 v[8:11], v3, s[12:15], s48 offen sc1")
        a("s_mov_b64 exec, -1")
        a("L_tdone:")
        self.stamp(3)
        a("s_cmp_lg_u32 s46, 0")
        a("s_cbranch_scc1 L_final")
        if self.dry:
            a("s_cmp_eq_u32 s56, 1")
            a("s_cbranch_scc0 L_nowarm")
            a("s_mov_b32 s98, 1")
            a("v_mov_b32 v2, 0")
            a("v_mov_b32 v87, 0")
            a("s_branch L_pub")
            a("L_nowarm:")
        if self.stamps:
            a("s_cmp_eq_u32 s56, 0")
            a("s_cbranch_scc0 L_end")
            a("s_setprio 0")
            a("v_mov_b32 v2, 0")
            self.wait_flag("stdone", 2, 3, L_DONE, 8)
            self.stamp_flush(0, 7, 8)
        a("s_endpgm")

    def grab(self):
        a = self.a
        a("s_mov_b64 exec, 1")
        a(f"ds_add_rtn_u32 v57, v56, v59 offset:{L_NEXT}")
        a("s_mov_b64 exec, -1")

    def issue_k(self, slot):
        a = self.a
        a(f"s_add_u32 m0, s56, {4096 * slot}")
        for c in range(4):
            a(f"buffer_load_dwordx4 v{60 + c}, s[4:7], s52 offen offset:{1024 * c}{self.kvpol} lds")

    def issue_tile(self, slot, grab=True, mid=None, xslot=None):
        a = self.a
        vb = VRING + 16 * slot
        so = "s52"
        if grab:
            a("s_waitcnt lgkmcnt(0)")
            a("v_readfirstlane_b32 s48, v57")
            if self.kahead:
                a("s_mov_b32 s96, s52")
                so = "s96"
            self.grab()
            a("s_lshl_b32 s52, s48, 12")
            a("s_add_u32 s52, s52, s51")
            a("s_cmp_lt_u32 s48, s49")
            a("s_addc_u32 s54, s54, 0")
        self.issue_k((slot + 1) % self.ring if (self.kahead and grab) else slot)
        if self.kahead and not grab:
            return
        if mid is not None:
            a(f"s_waitcnt vmcnt({mid})")
        for c in range(4):
            a(f"buffer_load_dwordx4 v[{vb + 4 * c}:{vb + 3 + 4 * c}], v2, s[8:11], {so} offen offset:{1024 * c}{self.kvpol}")

    def loop_plain(self):
        a = self.a
        rb = self.rb
        ring = self.ring
        L = self.look
        a("s_getreg_b32 s97, hwreg(HW_REG_XCC_ID, 0, 4)")
        a("L_loop:")
        for slot in range(ring):
            kb = KREG
            vb = VRING + 16 * slot
            if slot < ring - L:
                a("s_cmp_lg_u32 s53, 0")
                a(f"s_cbranch_scc1 L_noissue{slot}")
            if self.xthr is not None:
                a("s_bitcmp1_b32 s97, 0")
                a(f"s_cbranch_scc1 L_xo{slot}")
                a(f"s_waitcnt vmcnt({self.xthr})")
                a(f"L_xo{slot}:")
            self.issue_tile((slot + L) % ring, xslot=slot)
            if slot < ring - L:
                a("s_add_u32 s53, s53, 1")
                a(f"L_noissue{slot}:")
                a("s_sub_u32 s53, s53, 1")
            a(f"s_waitcnt vmcnt({8 * L + 4})")
            if self.dynprio:
                a("s_setprio 3")
            for c in range(4):
                a(f"ds_read_b128 v[{kb + 4 * c}:{kb + 4 * c + 3}], v{80 + c} offset:{4096 * slot}")
            for c in range(4):
                a(f"s_waitcnt lgkmcnt({3 - c})")
                cc = "0" if c == 0 else "v[12:15]"
                a(f"v_mfma_f32_16x16x32_bf16 v[12:15], v[{kb + 4 * c}:{kb + 4 * c + 3}], v[{40 + 4 * c}:{43 + 4 * c}], {cc}")
            a("s_sub_u32 s54, s54, 1")
            for r in range(4):
                rb(f"v{12 + r}", f"v{12 + r}")
            for r in range(4):
                a(f"v_mul_f32 v{12 + r}, s63, v{12 + r}")
            for r in range(4):
                rb(f"v{12 + r}", f"v{12 + r}")
            a("v_max3_f32 v18, v12, v13, v14")
            a("v_max3_f32 v18, v18, v15, v16")
            self.xrow(32, "v_max_f32", "v18", "v19")
            self.xrow(16, "v_max_f32", "v18", "v19")
            a("v_sub_f32 v20, v16, v18")
            a("v_mul_f32 v21, s62, v18")
            a("v_mul_f32 v20, s62, v20")
            a("v_mov_b32 v16, v18")
            a("v_exp_f32 v20, v20")
            for r in range(4):
                a(f"v_fma_f32 v{12 + r}, v{12 + r}, s62, -v21")
            for r in range(4):
                a(f"v_exp_f32 v{12 + r}, v{12 + r}")
            a("v_cndmask_b32_dpp v22, v20, v20, vcc row_ror:8 row_mask:0xf bank_mask:0xf")
            a("v_add_f32 v18, v12, v13")
            a("v_add_f32 v19, v14, v15")
            for r in range(4):
                a(f"v_cvt_pk_bf16_f32 v{12 + r}, v{12 + r}, v{12 + r}")
            a("v_add_f32 v18, v18, v19")
            for r in range(4):
                a(f"v_mul_f32 v{8 + r}, v22, v{8 + r}")
            a("v_fma_f32 v17, v17, v20, v18")
            for r in range(4):
                for q in range(4):
                    a(f"v_and_b32 v{24 + 4 * r + q}, v{12 + r}, v{4 + q}")
            a(f"s_waitcnt vmcnt({8 * L})")
            for r in range(4):
                a(f"v_mfma_f32_16x16x32_bf16 v[8:11], v[{24 + 4 * r}:{27 + 4 * r}], v[{vb + 4 * r}:{vb + 4 * r + 3}], v[8:11]")
            self.trace_pt()
            a("s_cmp_eq_u32 s54, 0")
            a("s_cbranch_scc1 L_sdone")
            if self.dynprio:
                a("s_setprio 0")
        a("s_branch L_loop")

    def softmax_part(self, slot, ab, al):
        a = self.a
        rb = self.rb
        kb = KREG
        for c in range(4):
            a(f"ds_read_b128 v[{kb + 4 * c}:{kb + 4 * c + 3}], v{80 + c} offset:{4096 * slot}")
        for c in range(4):
            a(f"s_waitcnt lgkmcnt({3 - c})")
            cc = "0" if c == 0 else "v[12:15]"
            a(f"v_mfma_f32_16x16x32_bf16 v[12:15], v[{kb + 4 * c}:{kb + 4 * c + 3}], v[{40 + 4 * c}:{43 + 4 * c}], {cc}")
        for r in range(4):
            rb(f"v{12 + r}", f"v{12 + r}")
        for r in range(4):
            a(f"v_mul_f32 v{12 + r}, s63, v{12 + r}")
        for r in range(4):
            rb(f"v{12 + r}", f"v{12 + r}")
        a("v_max3_f32 v18, v12, v13, v14")
        a("v_max3_f32 v18, v18, v15, v16")
        self.xrow(32, "v_max_f32", "v18", "v19")
        self.xrow(16, "v_max_f32", "v18", "v19")
        a("v_sub_f32 v20, v16, v18")
        a("v_mul_f32 v21, s62, v18")
        a("v_mul_f32 v20, s62, v20")
        a("v_mov_b32 v16, v18")
        a("v_exp_f32 v20, v20")
        for r in range(4):
            a(f"v_fma_f32 v{12 + r}, v{12 + r}, s62, -v21")
        for r in range(4):
            a(f"v_exp_f32 v{12 + r}, v{12 + r}")
        a(f"v_cndmask_b32_dpp v{al}, v20, v20, vcc row_ror:8 row_mask:0xf bank_mask:0xf")
        a("v_add_f32 v18, v12, v13")
        a("v_add_f32 v19, v14, v15")
        for r in range(4):
            a(f"v_cvt_pk_bf16_f32 v{12 + r}, v{12 + r}, v{12 + r}")
        a("v_add_f32 v18, v18, v19")
        a("v_fma_f32 v17, v17, v20, v18")
        for r in range(4):
            for q in range(4):
                a(f"v_and_b32 v{ab + 4 * r + q}, v{12 + r}, v{4 + q}")

    def stats_out(self):
        a = self.a
        self.xrow(32, "v_add_f32", "v17", "v19")
        self.xrow(16, "v_add_f32", "v17", "v19")
        a("v_cndmask_b32_dpp v18, v16, v16, vcc row_ror:8 row_mask:0xf bank_mask:0xf")
        a("v_cndmask_b32_dpp v19, v17, v17, vcc row_ror:8 row_mask:0xf bank_mask:0xf")
        a(f"ds_write_b64 v85, v[18:19] offset:{L_PS}")

    def loop_kahead(self):
        a = self.a
        ring = self.ring
        L = self.look
        AB = (24, 96)
        AL = (22, 23)
        a(f"s_waitcnt vmcnt({8 * L})")
        a("s_setprio 3")
        self.softmax_part(0, AB[0], AL[0])
        a("s_setprio 0")
        a("L_loop:")
        for slot in range(ring):
            vb = VRING + 16 * slot
            cur, nxt = AB[slot & 1], AB[(slot + 1) & 1]
            if slot < ring - 1 - L:
                a("s_cmp_lg_u32 s53, 0")
                a(f"s_cbranch_scc1 L_noissue{slot}")
            self.issue_tile((slot + L) % ring)
            if slot < ring - 1 - L:
                a("s_add_u32 s53, s53, 1")
                a(f"L_noissue{slot}:")
                a("s_sub_u32 s53, s53, 1")
            for r in range(4):
                a(f"v_mul_f32 v{8 + r}, v{AL[slot & 1]}, v{8 + r}")
            a("s_cmp_eq_u32 s54, 1")
            a(f"s_cbranch_scc1 L_last{slot}")
            a(f"s_waitcnt vmcnt({8 * L + 4})")
            a("s_setprio 3")
            self.softmax_part((slot + 1) % ring, nxt, AL[(slot + 1) & 1])
            a("s_sub_u32 s54, s54, 1")
            a(f"s_waitcnt vmcnt({8 * L})")
            for r in range(4):
                a(f"v_mfma_f32_16x16x32_bf16 v[8:11], v[{cur + 4 * r}:{cur + 3 + 4 * r}], v[{vb + 4 * r}:{vb + 4 * r + 3}], v[8:11]")
            self.trace_pt()
            a("s_setprio 0")
        a("s_branch L_loop")
        for slot in range(ring):
            vb = VRING + 16 * slot
            cur = AB[slot & 1]
            a(f"L_last{slot}:")
            a("s_setprio 3")
            self.stats_out()
            a(f"s_waitcnt vmcnt({8 * L})")
            for r in range(4):
                a(f"v_mfma_f32_16x16x32_bf16 v[8:11], v[{cur + 4 * r}:{cur + 3 + 4 * r}], v[{vb + 4 * r}:{vb + 4 * r + 3}], v[8:11]")
            self.trace_pt()
            if slot < ring - 1:
                a("s_branch L_sdone")

    def stream(self):
        a = self.a
        rb = self.rb
        ring = self.ring
        L = self.look
        a("L_stream:")
        if self.h0_first and not (self.b0_early or self.b0_fast):
            self.issue_tile(0, grab=False)
        if self.trace:
            a("s_mov_b32 s59, 0")
            a("v_mov_b32 v58, 0")
        self.trace_pt()
        a("v_mov_b32 v56, 0")
        a("v_mov_b32 v59, 1")
        self.grab()
        a("s_mov_b32 s54, 1")
        if self.kahead:
            self.issue_tile(0)
        if self.half_thr is not None:
            a(f"s_waitcnt vmcnt({self.half_thr})")
        self.issue_tile(1, mid=self.half_thr)
        self.trace_pt()
        self.masks(4, 18, 19)
        for r in range(4):
            a(f"v_mov_b32 v{8 + r}, 0")
        a("v_mov_b32 v16, 0xff7fffff")
        a("v_mov_b32 v17, 0")
        a("v_bfe_u32 v3, v0, 3, 1")
        a("v_lshlrev_b32 v3, 8, v3")
        a("v_lshrrev_b32 v18, 4, v0")
        a("v_lshl_add_u32 v3, v18, 4, v3")
        a("v_and_b32 v19, 15, v0")
        a("v_xor_b32 v18, v18, v19")
        a("v_lshlrev_b32 v18, 4, v18")
        a("v_and_b32 v19, 3, v0")
        a("v_lshl_add_u32 v18, v19, 10, v18")
        a("v_bfe_u32 v19, v0, 2, 2")
        a("v_lshl_add_u32 v18, v19, 8, v18")
        for c in range(4):
            a(f"v_xor_b32 v{80 + c}, {64 * c}, v18")
        for c in range(4):
            a(f"v_add_u32 v{80 + c}, s56, v{80 + c}")
        a("s_lshl_b32 s48, s3, 10")
        a("v_add_u32 v84, s48, v2")
        a("v_lshlrev_b32 v87, 3, v0")
        a("s_lshl_b32 s48, s3, 9")
        a("v_add_u32 v85, s48, v87")
        a(f"s_mul_i32 s57, s43, {2 * 10240}")
        a("s_lshl_b32 s48, s44, 4")
        a("s_add_u32 s57, s57, s48")
        a(f"s_add_u32 s57, s57, {E1}")
        a("v_lshrrev_b32 v88, 5, v0")
        a("v_mul_u32_u24 v88, 10240, v88")
        a("v_and_b32 v89, 15, v0")
        a("v_lshl_add_u32 v89, v89, 8, v88")
        a("v_bfe_u32 v18, v0, 4, 1")
        a("v_lshl_add_u32 v89, v18, 7, v89")
        a("s_lshl_b32 s48, s42, 12")
        a("v_add_u32 v89, s48, v89")
        a("s_lshl_b32 s48, s42, 7")
        a("s_add_u32 s48, s48, 8192")
        a("v_add_u32 v88, s48, v88")
        a("v_mov_b32 v18, 0")
        if self.no_qwait:
            a(f"s_mov_b32 s53, 0")
            a("s_branch L_qskip")
        npre = ring - 1 if self.kahead else ring
        for t in range(2, npre):
            a(f"s_waitcnt vmcnt({self.pre_throttle if self.half_thr is None else self.half_thr})")
            if self.early and t > L:
                a(f"ds_read_b32 v19, v18 offset:{L_FLAG}")
                a(f"s_mov_b32 s53, {t - L}")
                a("s_waitcnt lgkmcnt(0)")
                a("v_readfirstlane_b32 s48, v19")
                a("s_cmp_lg_u32 s48, 0")
                a("s_cbranch_scc1 L_qwait_ok")
            self.issue_tile(t, mid=self.half_thr)
            self.trace_pt()
        a(f"s_mov_b32 s53, {npre - L}")
        self.wait_flag("qwait", 18, 19)
        a("L_qskip:")
        self.stamp(1)
        for c in range(4):
            a(f"ds_read_b128 v[{40 + 4 * c}:{43 + 4 * c}], v3 offset:{L_Q + 64 * c}")
        a(f"ds_read_b64 v[20:21], v18 offset:{L_TAG}")
        if self.xlocal:
            a(f"ds_read_b32 v22, v18 offset:{L_SAME}")
        a("s_mov_b64 vcc, s[60:61]")
        a("s_waitcnt lgkmcnt(0)")
        if self.xlocal:
            a("v_readfirstlane_b32 s99, v22")
        a("v_readfirstlane_b32 s47, v20")
        a("v_readfirstlane_b32 s55, v21")
        self.stamp(2)
        if self.kahead:
            self.loop_kahead()
        else:
            self.loop_plain()
        a("L_sdone:")
        self.stamp(3)
        if self.no_qwait:
            a("v_mov_b32 v18, 0")
            a(f"ds_read_b64 v[56:57], v18 offset:{L_TAG}")
            a("s_waitcnt lgkmcnt(0)")
            a("v_readfirstlane_b32 s47, v56")
            a("v_readfirstlane_b32 s55, v57")
        if not self.kahead:
            self.stats_out()
        a(f"ds_write_b128 v84, v[8:11] offset:{L_P}")
        a("s_mov_b64 exec, 1")
        a(f"ds_add_rtn_u32 v50, v56, v59 offset:{L_CNT2}")
        a("s_mov_b64 exec, -1")
        if not self.spec:
            a("s_waitcnt lgkmcnt(0)")
            a("v_readfirstlane_b32 s48, v50")
            a("s_cmp_eq_u32 s48, 3")
            a("s_cbranch_scc0 L_after_pub")
        a("L_pub:")
        for w in range(4):
            a(f"ds_read_b64 v[{24 + 2 * w}:{25 + 2 * w}], v87 offset:{L_PS + 512 * w}")
        for w in range(4):
            a(f"ds_read_b128 v[{32 + 4 * w}:{35 + 4 * w}], v2 offset:{L_P + 1024 * w}")
        if self.spec:
            a("s_waitcnt lgkmcnt(8)")
            a("v_readfirstlane_b32 s48, v50")
            a("s_cmp_eq_u32 s48, 3")
            a("s_cselect_b32 s48, 1, s98")
            a("s_cmp_lg_u32 s48, 0")
            a("s_cbranch_scc0 L_after_pub")
        a("s_waitcnt lgkmcnt(4)")
        a("v_max_f32 v12, v24, v26")
        a("v_max3_f32 v12, v12, v28, v30")
        for w in range(4):
            a(f"v_sub_f32 v{24 + 2 * w}, v{24 + 2 * w}, v12")
        for w in range(4):
            a(f"v_mul_f32 v{24 + 2 * w}, s62, v{24 + 2 * w}")
        for w in range(4):
            a(f"v_exp_f32 v{24 + 2 * w}, v{24 + 2 * w}")
        a("v_mul_f32 v13, v24, v25")
        a("s_waitcnt lgkmcnt(0)")
        for r in range(4):
            a(f"v_mul_f32 v{8 + r}, v24, v{32 + r}")
        for w in range(1, 4):
            for r in range(4):
                a(f"v_fmac_f32 v{8 + r}, v{24 + 2 * w}, v{32 + 4 * w + r}")
        for w in range(1, 4):
            a(f"v_fmac_f32 v13, v{24 + 2 * w}, v{25 + 2 * w}")
        self.pack3(16, 8)
        a("v_mov_b32 v19, s47")
        a("v_mov_b32 v14, 0")
        a("v_mov_b32 v15, s47")
        a("v_mov_b32 v20, 0")
        a("v_mov_b32 v21, 1")
        if self.dry:
            a("s_cmp_lg_u32 s98, 0")
            a("s_cbranch_scc1 L_pub_dry_ret")
        if self.xlocal:
            a("s_cmp_lg_u32 s99, 0")
            a("s_cbranch_scc1 L_pub_far")
            a("buffer_store_dwordx4 v[16:19], v89, s[12:15], s57 offen")
            a("s_mov_b32 exec_lo, 1")
            a("s_mov_b32 exec_hi, 1")
            a("buffer_store_dwordx4 v[12:15], v88, s[12:15], s57 offen")
            a("s_branch L_pub_end")
            a("L_pub_far:")
        a("buffer_store_dwordx4 v[16:19], v89, s[12:15], s57 offen sc1")
        a("s_mov_b32 exec_lo, 1")
        a("s_mov_b32 exec_hi, 1")
        a("buffer_store_dwordx4 v[12:15], v88, s[12:15], s57 offen sc1")
        a("L_pub_end:")
        a("s_mov_b64 exec, -1")
        a(f"ds_write_b32 v20, v21 offset:{L_DONE}")
        self.stamp(4)
        self.stamp_flush(0, 7 if self.sdiag else 4, 0)
        a("L_after_pub:")
        if self.trace:
            a("v_mov_b32 v60, 0")
            self.wait_flag("trdone", 60, 61, L_DONE, 4)
            a("s_lshl_b32 s48, s2, 2")
            a("s_add_u32 s48, s48, s3")
            a("s_lshl_b32 s48, s48, 8")
            a(f"s_add_u32 s48, s48, {STAMP + 0x20000}")
            a("v_lshlrev_b32 v57, 2, v0")
            a("buffer_store_dword v58, v57, s[12:15], s48 offen")
        a("s_cmp_lg_u32 s46, 0")
        a("s_cbranch_scc1 L_final")
        a("s_endpgm")
        if self.dry:
            a("L_pub_dry_ret:")
            a("s_cmp_eq_u32 s98, 2")
            a("s_cbranch_scc1 L_owner_setup")
            a("s_endpgm")

    def owner(self):
        a = self.a
        a("L_pre_b2:")
        a("v_mov_b32 v3, 0")
        self.wait_flag("oflag", 3, 8)
        a(f"ds_read_b64 v[10:11], v3 offset:{L_TAG}")
        a("s_waitcnt vmcnt(0) lgkmcnt(0)")
        a("v_readfirstlane_b32 s47, v10")
        a("s_setprio 0")
        if self.dry:
            a("s_cmp_eq_u32 s56, 1")
            a("s_cbranch_scc0 L_owner_setup")
            a("s_mov_b32 s98, 2")
            a("v_mov_b32 v2, 0")
            a("v_mov_b32 v87, 0")
            a("s_branch L_pub")
        a("L_owner_setup:")
        a("v_and_b32 v4, 3, v0")
        a("v_xor_b32 v5, 1, v4")
        a("v_lshl_add_u32 v4, v5, 2, v4")
        a("v_mul_u32_u24 v4, 0x1111, v4")
        a("s_mov_b32 s90, 0x0f0f0f0f")
        a("s_mov_b32 s91, 0x0f0f0f0f")
        a("s_lshl_b32 s57, s43, 1")
        a("s_add_u32 s57, s57, s42")
        a(f"s_mul_i32 s49, s57, {16 * 640}")
        a(f"s_add_u32 s49, s49, {E1}")
        a("v_and_b32 v1, 15, v0")
        a("v_lshlrev_b32 v1, 4, v1")
        a("v_add_u32 v1, 8192, v1")
        a("v_lshrrev_b32 v2, 4, v0")
        a("s_lshl_b32 s50, s56, 3")
        a("v_add_lshl_u32 v2, v2, s50, 7")
        a("v_bfe_u32 v5, v0, 3, 1")
        a("v_lshl_add_u32 v2, v5, 12, v2")
        a("v_and_b32 v5, 7, v0")
        a("v_lshl_add_u32 v2, v5, 4, v2")
        a("s_mul_i32 s50, s56, 4608")
        a(f"s_add_u32 s50, s50, {L_R}")
        a("v_lshrrev_b32 v36, 5, v0")
        a("v_mul_u32_u24 v36, 2304, v36")
        a("v_and_b32 v37, 15, v0")
        a("v_lshl_add_u32 v36, v37, 5, v36")
        a("v_bfe_u32 v37, v0, 4, 1")
        a("v_lshl_add_u32 v36, v37, 4, v36")
        a("v_add_u32 v36, s50, v36")
        a("s_mul_i32 s50, s56, 48")
        a("v_add_u32 v37, s50, v0")
        a("v_mul_u32_u24 v37, 24, v37")
        a(f"v_add_u32 v37, {L_R}, v37")
        a("v_lshlrev_b32 v38, 4, v0")
        a("s_lshr_b32 s50, s56, 1")
        a("s_lshl_b32 s53, s50, 3")
        a("s_lshl_b32 s50, s50, 5")
        a("s_add_u32 s50, s50, s57")
        a("s_mul_i32 s50, s50, 1536")
        a("s_and_b32 s51, s56, 1")
        a("s_mul_i32 s51, s51, 768")
        a("s_add_u32 s51, s50, s51")
        a(f"s_add_u32 s51, s51, {FIN}")
        a("v_mov_b32 v35, s47")
        a("v_mov_b32 v3, 0")
        if self.dry:
            a("s_mov_b32 s98, 1")
            a("s_branch L_ogot")
            a("L_owner_real:")
            a("s_mov_b64 exec, -1")
            a("s_mov_b32 s98, 0")
        self.stamp(4)

        def oload(b):
            r = (8, 12, 16) if b == 8 else (92, 24, 28)
            a(f"buffer_load_dwordx4 v[{r[0]}:{r[0] + 3}], v1, s[12:15], s49 offen{self.opol}")
            a(f"buffer_load_dwordx4 v[{r[1]}:{r[1] + 3}], v2, s[12:15], s49 offen{self.opol}")
            a(f"buffer_load_dwordx4 v[{r[2]}:{r[2] + 3}], v2, s[12:15], s49 offen offset:512{self.opol}")

        if self.pretouch:
            oload(8)
        for i in range(20):
            a(f"v_mov_b32 v{72 + i}, 0")
        self.wait_flag("odone", 3, 22, L_DONE, self.done_sleep)
        a("s_setprio 3")
        a("s_mov_b32 s50, 0")
        def head(st, d0, d1):
            a(f"v_max_f32_dpp v21, v{st}, v{st} quad_perm:[1,0,3,2] row_mask:0xf bank_mask:0xf")
            a(f"v_perm_b32 v22, v{d0 + 2}, v{d0 + 1}, s67")
            a(f"v_perm_b32 v23, v{d1 + 2}, v{d1 + 1}, s67")
            self.dpp("v_max_f32", "v21", "quad_perm:[2,3,0,1]")
            a(f"v_perm_b32 v22, v22, v{d0}, s68")
            a(f"v_perm_b32 v23, v23, v{d1}, s68")
            self.dpp("v_max_f32", "v21", "row_half_mirror")
            a(f"v_sub_f32 v21, v{st}, v21")
            a("v_mul_f32 v21, s62, v21")
            a("v_exp_f32 v21, v21")
            for e in range(3):
                a(f"v_mul_f32 v{56 + e}, v21, v{d0 + e}")
            a("v_mul_f32 v59, v21, v22")
            for e in range(3):
                a(f"v_mul_f32 v{60 + e}, v21, v{d1 + e}")
            a("v_mul_f32 v63, v21, v23")
            a(f"v_mul_f32 v64, v21, v{st + 1}")

        if self.opipe:
            oload(8)
            if self.opipe > 1:
                a(f"s_sleep {self.opipe - 1}")
            a("L_opoll:")
            oload(40)
            a("s_waitcnt vmcnt(3)")
            self.tags_bad([11, 15, 19], 20, 21)
            a("s_cbranch_vccz L_ogot")
            oload(8)
            a("s_waitcnt vmcnt(3)")
            self.tags_bad([95, 27, 31], 20, 21)
            a("s_cbranch_vccz L_ogot_b")
            self.retry("L_opoll", 0)
            a("L_ogot_b:")
            self.stamp(5)
            head(92, 24, 28)
            a("s_branch L_osum")
        else:
            a("L_opoll:")
            oload(8)
            a("s_waitcnt vmcnt(0)")
            self.tags_bad([11, 15, 19], 20, 21)
            a("s_cbranch_vccz L_ogot")
            self.retry("L_opoll", self.tail_sleep)
        a("L_ogot:")
        self.stamp(5)
        if self.odiag:
            a("s_memtime s[72:73]")
        head(8, 12, 16)
        a("L_osum:")
        for c in ("quad_perm:[1,0,3,2]", "quad_perm:[2,3,0,1]"):
            for e in range(9):
                self.dpp("v_add_f32", f"v{56 + e}", c)

        def mf(P, cg):
            r = 96 + 8 * (5 * P + cg)
            d = 72 + 4 * cg
            ab = 40 + 4 * P
            a(f"v_smfmac_f32_16x16x64_bf16 v[{d}:{d + 3}], v[{ab}:{ab + 3}], v[{r}:{r + 7}], v4")

        def prep(P):
            ops = []
            for h in range(2):
                v = f"v{56 + 2 * P + h}"
                ops.append(f"v_add_f32_dpp {v}, {v}, {v} row_half_mirror row_mask:0xf bank_mask:0xf")
            for h in range(2):
                v = f"v{56 + 2 * P + h}"
                ops.append(f"v_cvt_pk_bf16_f32 {v}, {v}, 0")
            for h in range(2):
                v = f"v{56 + 2 * P + h}"
                ops.append(f"v_cndmask_b32 v{40 + 4 * P + 2 * h}, 0, {v}, s[90:91]")
                ops.append(f"v_cndmask_b32 v{41 + 4 * P + 2 * h}, {v}, 0, s[90:91]")
            return ops

        def wr(cg):
            if cg == 4:
                a("s_mov_b32 exec_lo, 0x00ff00ff")
                a("s_mov_b32 exec_hi, 0x00ff00ff")
            a(f"ds_write_b128 v36, v[{72 + 4 * cg}:{75 + 4 * cg}] offset:{512 * cg}")

        if self.odiag:
            a("s_memtime s[74:75]")
        for op in prep(0):
            a(op)
        for P in range(4):
            nxt = prep(P + 1) if P < 3 else ["v_add_f32_dpp v64, v64, v64 row_half_mirror row_mask:0xf bank_mask:0xf", "v_rcp_f32 v64, v64"]
            for cg in range(3):
                mf(P, cg)
                for op in nxt[3 * cg:3 * cg + 3]:
                    a(op)
        for P in range(4):
            mf(P, 3)
        wr(0)
        wr(1)
        for P in range(4):
            mf(P, 4)
            if P == 0:
                wr(2)
            if P == 2:
                a("v_readlane_b32 s52, v64, s53")
        wr(3)
        wr(4)
        if self.odiag:
            a("s_memtime s[76:77]")
        a("s_mov_b32 exec_lo, -1")
        a("s_mov_b32 exec_hi, 0xffff")
        a("s_waitcnt vmcnt(0) lgkmcnt(0)")
        if self.dry:
            a("s_cmp_lg_u32 s98, 0")
            a("s_cbranch_scc1 L_o_nobar")
        a("s_barrier")
        a("L_o_nobar:")
        if self.odiag:
            a("s_memtime s[78:79]")
        for w in range(4):
            for i in range(3):
                a(f"ds_read_b64 v[{8 + 6 * w + 2 * i}:{9 + 6 * w + 2 * i}], v37 offset:{4608 * w + 8 * i}")
        a("s_waitcnt lgkmcnt(6)")
        for i in range(6):
            a(f"v_add_f32 v{8 + i}, v{8 + i}, v{14 + i}")
        a("s_waitcnt lgkmcnt(3)")
        for i in range(6):
            a(f"v_add_f32 v{8 + i}, v{8 + i}, v{20 + i}")
        a("s_waitcnt lgkmcnt(0)")
        for i in range(6):
            a(f"v_add_f32 v{8 + i}, v{8 + i}, v{26 + i}")
        for i in range(6):
            a(f"v_mul_f32 v{8 + i}, s52, v{8 + i}")
        for i in range(3):
            a(f"v_cvt_pk_bf16_f32 v{32 + i}, v{8 + 2 * i}, v{9 + 2 * i}")
        if self.dry:
            a("s_cmp_lg_u32 s98, 0")
            a("s_cbranch_scc1 L_owner_real")
        a("buffer_store_dwordx4 v[32:35], v38, s[12:15], s51 offen sc1")
        if self.odiag:
            a("s_memtime s[84:85]")
        a("s_mov_b64 exec, -1")
        self.stamp(6)
        if self.stamps:
            a("s_cmp_eq_u32 s56, 0")
            a("s_cbranch_scc0 L_end")
            self.stamp_flush(0, 7, 8)
        a("s_endpgm")

    def gather(self):
        a = self.a
        a("s_sub_u32 s48, s3, 4")
        a("s_mul_i32 s86, s48, 224")
        a("s_mul_i32 s48, s48, 3584")
        a(f"s_add_u32 s48, s48, {TAB}")
        a("v_lshlrev_b32 v100, 4, v0")
        a("s_mov_b32 s50, 0")
        a("L_gpoll:")
        a("v_mov_b32 v79, s47")
        for u in range(3):
            a(f"buffer_load_dwordx4 v[{64 + 4 * u}:{67 + 4 * u}], v100, s[12:15], s48 offen offset:{1024 * u} sc1")
        a("s_mov_b32 exec_hi, 0")
        a("buffer_load_dwordx4 v[76:79], v100, s[12:15], s48 offen offset:3072 sc1")
        a("s_mov_b32 exec_hi, -1")
        a("v_add_u32 v101, s86, v0")
        a("v_lshrrev_b32 v102, 2, v101")
        a(f"v_mul_u32_u24 v102, {2 * TPW}, v102")
        a("v_and_b32 v101, 3, v101")
        a("v_mad_u32_u24 v102, v101, 12, v102")
        a(f"v_add_u32 v102, {L_TAB}, v102")
        a("v_cmp_ne_u32 s[90:91], 3, v101")
        a("s_waitcnt vmcnt(0)")
        self.tags_bad([67, 71, 75, 79], 103, 104)
        a("s_cbranch_vccz L_ggot")
        self.retry("L_gpoll", 4)
        a("L_ggot:")
        for half in range(2):
            for u in range(4):
                if u == 3:
                    a("s_mov_b32 exec_hi, 0")
                for i in range(3 * half, 3 * half + 3):
                    op = "ds_write_b16_d16_hi" if i & 1 else "ds_write_b16"
                    a(f"{op} v102, v{64 + 4 * u + i // 2} offset:{16 * 2 * TPW * u + 2 * i}")
            a("s_mov_b64 exec, s[90:91]" if half == 0 else "s_mov_b64 exec, -1")

    def final(self):
        a = self.a
        rb = self.rb
        a("L_final:")
        a("s_sub_u32 s46, s46, 1")
        a("s_waitcnt lgkmcnt(0)")
        a("v_and_b32 v8, 1, v0")
        a("v_cmp_eq_u32 vcc, 1, v8")
        a("v_mov_b32 v8, 0x3f80")
        a("v_mov_b32 v9, 0x3f800000")
        a("v_cndmask_b32 v8, v8, v9, vcc")
        a("v_and_b32 v9, 14, v0")
        for q in range(3):
            a(f"v_cmp_eq_u32 vcc, {4 * q}, v9")
            a(f"v_cndmask_b32 v{4 + q}, 0, v8, vcc")
        a("v_mov_b32 v7, 0")
        a("v_and_b32 v1, 15, v0")
        a("s_mul_i32 s52, s46, 1152")
        a("s_mul_i32 s48, s3, 192")
        a("s_add_u32 s52, s52, s48")
        a("v_mul_u32_u24 v3, 12, v1")
        a("v_lshrrev_b32 v2, 4, v0")
        a("v_lshl_add_u32 v3, v2, 2, v3")
        self.srd(4, 16, 2304)
        self.srd(8, 36, 2304)
        a("buffer_load_dword v56, v3, s[4:7], s52 offen")
        a("v_mul_u32_u24 v2, 1536, v2")
        a("v_lshl_add_u32 v34, v1, 4, v2")
        a("s_lshl_b32 s48, s3, 3")
        a("v_mov_b32 v1, s48")
        a("v_mov_b32 v2, 0")
        a(f"s_mul_i32 s57, s46, {32 * 1536}")
        a("s_lshl_b32 s49, s3, 8")
        a("s_add_u32 s57, s57, s49")
        a(f"s_add_u32 s57, s57, {FIN}")
        a("s_mov_b32 s88, -1")
        a("s_mov_b32 s89, 0xffff")
        a(f"s_movk_i32 s56, {2 * TAB_N}")
        a(f"s_mov_b32 s54, {L_TAB - 2 * TAB_LO}")
        a("s_waitcnt vmcnt(0)")
        a("v_lshlrev_b32 v40, 16, v56")
        a("v_and_b32 v41, 0xffff0000, v56")
        a("v_cndmask_b32 v40, 0, v40, s[88:89]")
        a("v_cndmask_b32 v41, 0, v41, s[88:89]")
        a("v_mov_b32 v35, s55")
        a("s_or_b32 s99, s46, s3")
        if self.dry:
            a("s_cmp_lt_u32 s3, 4")
            a("s_cbranch_scc1 L_final_real")
            a("s_mov_b32 s98, 1")
            a("s_branch L_fgot")
        a("L_final_real:")
        a("s_mov_b64 exec, -1")
        a("s_mov_b32 s98, 0")
        for r in range(4):
            a(f"v_mov_b32 v{8 + r}, 0")
        for r in range(2):
            a(f"v_mov_b32 v{48 + r}, 0")
        self.wait_flag("fdone", 2, 13, L_DONE, self.done_sleep)
        a("s_setprio 3")
        a("s_cmp_lt_u32 s3, 4")
        a("s_cbranch_scc1 L_nogather")
        self.gather()
        a("s_cmp_ge_u32 s3, 6")
        a("s_cbranch_scc1 L_end")
        a("L_nogather:")
        a("s_mov_b32 s53, 0xff")
        a("s_mov_b32 s50, 0")
        for pg in range(8):
            a(f"s_add_u32 s49, s57, {pg * 4 * 1536}")
            a(f"buffer_load_dwordx4 v[{64 + 4 * pg}:{67 + 4 * pg}], v34, s[12:15], s49 offen sc1")
        a("L_fpoll:")
        for pg in range(8):
            a("s_waitcnt vmcnt(7)")
            a(f"s_bitcmp1_b32 s53, {pg}")
            a(f"s_cbranch_scc0 L_fidle{pg}")
            a(f"v_cmp_ne_u32 vcc, s47, v{67 + 4 * pg}")
            a(f"v_mov_b32 v{67 + 4 * pg}, 0")
            a(f"s_cbranch_vccz L_ftake{pg}")
            a(f"s_add_u32 s49, s57, {pg * 4 * 1536}")
            a(f"buffer_load_dwordx4 v[{64 + 4 * pg}:{67 + 4 * pg}], v34, s[12:15], s49 offen sc1")
            a(f"s_branch L_fnext{pg}")
            a(f"L_ftake{pg}:")
            a(f"v_mfma_f32_16x16x32_bf16 v[8:11], v[4:7], v[{64 + 4 * pg}:{67 + 4 * pg}], v[8:11]")
            a(f"s_bitset0_b32 s53, {pg}")
            a("s_cmp_eq_u32 s53, 0")
            a("s_cbranch_scc1 L_fgot")
            a(f"L_fidle{pg}:")
            a("buffer_load_dword v100, v2, s[12:15], s14 offen")
            a(f"L_fnext{pg}:")
        self.retry("L_fpoll", self.froll_sleep)
        a("L_fgot:")
        self.stamp(5)
        if self.fdiag:
            a("s_memtime s[72:73]")
        rb("v8", "v8")
        rb("v9", "v9")
        a("v_add_f32 v12, v40, v8")
        a("v_add_f32 v13, v41, v9")
        rb("v12", "v12")
        rb("v13", "v13")
        a("v_mul_f32 v17, v12, v12")
        a("v_add_f32 v16, v12, v13")
        a("v_fmac_f32 v17, v13, v13")
        for c in ("quad_perm:[1,0,3,2]", "quad_perm:[2,3,0,1]", "row_half_mirror", "row_ror:8"):
            self.dpp("v_add_f32", "v16", c)
            self.dpp("v_add_f32", "v17", c)
        for c in ("row_bcast:15 row_mask:0xa", "row_bcast:31 row_mask:0xc"):
            a(f"v_add_f32_dpp v16, v16, v16 {c} bank_mask:0xf")
            a(f"v_add_f32_dpp v17, v17, v17 {c} bank_mask:0xf")
        a("s_mov_b32 exec_lo, 0")
        a("s_mov_b32 exec_hi, 0x80000000")
        a(f"ds_write_b64 v1, v[16:17] offset:{L_ST}")
        if self.fdiag:
            a("s_memtime s[74:75]")
        a("s_cmp_lg_u32 s99, 0")
        a("s_cbranch_scc1 L_noepoch")
        a(f"buffer_store_dword v35, v2, s[12:15], 0 offen offset:{EPOCH} sc1")
        a("L_noepoch:")
        a("s_mov_b64 exec, -1")
        a("s_waitcnt lgkmcnt(0)")
        if self.dry:
            a("s_cmp_lg_u32 s98, 0")
            a("s_cbranch_scc1 L_f_nobar")
        a("s_barrier")
        a("L_f_nobar:")
        if self.fdiag:
            a("s_memtime s[76:77]")
        for i, d in enumerate((24, 28, 20)):
            a(f"ds_read_b128 v[{d}:{d + 3}], v2 offset:{L_ST + 16 * i}")
        a("s_waitcnt lgkmcnt(1)")
        a("v_add_f32 v16, v24, v26")
        a("v_add_f32 v17, v25, v27")
        a("v_add_f32 v18, v28, v30")
        a("v_add_f32 v19, v29, v31")
        a("s_waitcnt lgkmcnt(0)")
        a("v_add_f32 v24, v20, v22")
        a("v_add_f32 v25, v21, v23")
        a("v_add_f32 v16, v16, v18")
        a("v_add_f32 v17, v17, v19")
        a("v_add_f32 v16, v16, v24")
        a("v_add_f32 v17, v17, v25")
        a(f"v_mul_f32 v16, {hx(1.0 / 576)}, v16")
        a(f"v_mul_f32 v17, {hx(1.0 / 576)}, v17")
        rb("v18", "v16")
        a("v_fma_f32 v17, -v16, v16, v17")
        a("v_sub_f32 v20, v12, v18")
        a("v_max_f32 v17, 0, v17")
        a("v_sub_f32 v21, v13, v18")
        rb("v19", "v17")
        a("v_sub_f32 v16, v16, v18")
        a(f"v_add_f32 v19, {hx(1e-5)}, v19")
        rb("v19", "v19")
        a("v_sqrt_f32 v19, v19")
        rb("v20", "v20")
        rb("v19", "v19")
        a("v_rcp_f32 v19, v19")
        rb("v21", "v21")
        a("v_mul_f32 v17, v17, v19")
        a("v_mul_f32 v16, v16, v19")
        a("v_mul_f32 v17, v17, v19")
        a("v_mul_f32 v20, v20, v19")
        rb("v17", "v17")
        a("v_mul_f32 v21, v21, v19")
        a(f"v_add_f32 v17, {hx(1e-5)}, v17")
        rb("v16", "v16")
        rb("v17", "v17")
        rb("v20", "v20")
        a("v_sqrt_f32 v17, v17")
        rb("v21", "v21")
        rb("v17", "v17")
        a("v_sub_f32 v20, v20, v16")
        a("v_rcp_f32 v17, v17")
        a("v_sub_f32 v21, v21, v16")
        rb("v20", "v20")
        rb("v21", "v21")
        a("v_mul_f32 v20, v20, v17")
        a("v_mul_f32 v21, v21, v17")
        rb("v20", "v20")
        rb("v21", "v21")
        for r in range(2):
            a(f"v_ashrrev_i32 v{44 + r}, 31, v{20 + r}")
            a(f"v_bfe_u32 v{24 + r}, v{20 + r}, 15, 16")
        for r in range(2):
            a(f"v_and_b32 v{44 + r}, s56, v{44 + r}")
        for r in range(2):
            a(f"v_add3_u32 v{44 + r}, v{44 + r}, v{24 + r}, s54")
        for r in range(2):
            a(f"ds_read_u16_d16_hi v{48 + r}, v{44 + r}")
        if self.fdiag:
            a("s_memtime s[78:79]")
        for r in range(2):
            a(f"v_subrev_u32 v{24 + r}, {2 * (self.slow_lo or TAB_LO)}, v{24 + r}")
        a("s_mov_b64 exec, s[88:89]")
        for r in range(2):
            a(f"v_cmp_le_u32 s[{90 + 2 * r}:{91 + 2 * r}], s56, v{24 + r}")
        a("s_or_b64 s[86:87], s[90:91], s[92:93]")
        a("s_cbranch_scc1 L_slow")
        a("L_slow_ret:")
        a("s_waitcnt lgkmcnt(0)")
        a("v_add_f32 v12, v12, v48")
        a("v_add_f32 v13, v13, v49")
        a("v_cvt_pk_bf16_f32 v16, v12, v13")
        if self.dry:
            a("s_cmp_lg_u32 s98, 0")
            a("s_cbranch_scc1 L_final_real")
        if self.qprobe or self.probe:
            i, d = self.probe
            a("s_cmp_eq_u32 s3, 0")
            a("s_cbranch_scc0 L_probe_done")
            a("L_probe:")
            a("s_memrealtime s[86:87]")
            a("s_waitcnt lgkmcnt(0)")
            a(f"s_sub_u32 s86, s86, s{70 + 2 * i}")
            a(f"s_cmp_lt_u32 s86, {d}")
            a("s_cbranch_scc1 L_probe")
            a("L_probe_done:")
        a(f"buffer_store_dword v16, v3, s[8:11], s52 offen{self.outpol}")
        if self.fdiag:
            a("s_memtime s[84:85]")
        a("s_mov_b64 exec, -1")
        self.stamp(6)
        if self.stamps:
            a("s_cmp_eq_u32 s3, 1")
            a("s_cbranch_scc0 L_end")
            self.stamp_flush(1 if self.fdiag else 5, 7 if self.fdiag else 6, 16)
        a("L_end:")
        a("s_endpgm")

    def slow(self):
        a = self.a
        rb = self.rb
        a("L_slow:")
        if self.dry:
            a("s_cmp_lg_u32 s98, 0")
            a("s_cbranch_scc1 L_slow_ret")
        a("s_mov_b64 exec, -1")
        self.gelu_consts(28)
        a("s_load_dword s69, s[34:35], 0")
        a("v_lshlrev_b32 v1, 4, v0")
        a("s_waitcnt lgkmcnt(0)")
        a("s_lshl_b32 s69, s69, 16")
        for r in range(2):
            m = f"s[{90 + 2 * r}:{91 + 2 * r}]"
            a(f"L_slow_r{r}:")
            a(f"s_cmp_eq_u64 {m}, 0")
            a(f"s_cbranch_scc1 L_slow_n{r}")
            a(f"s_ff1_i32_b64 s54, {m}")
            a(f"s_bitset0_b64 {m}, s54")
            a(f"v_readlane_b32 s58, v{20 + r}, s54")
            a("v_mov_b32 v26, 0")
            a("v_mov_b32 v27, 0")
            a("s_mov_b32 s53, 0")
            a(f"L_slow_l{r}:")
            for sp, dst in ((28, 64), (30, 68), (32, 72)):
                self.srd(4, sp, 9216)
                a(f"buffer_load_dwordx4 v[{dst}:{dst + 3}], v1, s[4:7], s53 offen")
            a("s_waitcnt vmcnt(0)")
            for (src, out) in ((64, 80), (68, 88), (72, 96)):
                for k in range(4):
                    a(f"v_lshlrev_b32 v{out + 2 * k}, 16, v{src + k}")
                    a(f"v_and_b32 v{out + 2 * k + 1}, 0xffff0000, v{src + k}")
            items = [(80 + 2 * i, 88 + 2 * i, 96 + 2 * i, 104 + 4 * i, 106 + 4 * i) for i in range(4)]
            self.gelu_pk(items, 28, 30, 32, 26, "s[58:59]")
            a("s_add_u32 s53, s53, 1024")
            a("s_cmp_lt_u32 s53, 9216")
            a(f"s_cbranch_scc1 L_slow_l{r}")
            a("v_add_f32 v26, v26, v27")
            self.red16("v_add_f32", "v26")
            self.xrow(16, "v_add_f32", "v26", "v27")
            self.xrow(32, "v_add_f32", "v26", "v27")
            rb("v26", "v26")
            a("v_add_f32 v26, s69, v26")
            rb("v26", "v26")
            a("s_lshl_b64 exec, 1, s54")
            a(f"v_mov_b32 v{48 + r}, v26")
            a("s_mov_b64 exec, -1")
            a(f"s_branch L_slow_r{r}")
            a(f"L_slow_n{r}:")
        a("s_mov_b64 exec, s[88:89]")
        a("s_branch L_slow_ret")
        a("L_code_end:")

    def build(self):
        a = self.a
        a.raw(f"; @launch grid=(256,1,1) block=(512,1,1) lds={LDS_BYTES}")
        a.raw('.amdgcn_target "amdgcn-amd-amdhsa--gfx950"')
        a.raw(".text")
        a.raw(f".globl {NAME}_kernel")
        a.raw(".p2align 8")
        a.raw(f".type {NAME}_kernel,@function")
        a.raw(f"{NAME}_kernel:")
        self.prologue()
        self.helper_start()
        self.stream()
        self.qphase()
        self.table()
        self.owner()
        self.final()
        self.slow()
        a.raw('.section .rodata,"a"')
        a.raw(".p2align 6")
        a.raw(f".amdhsa_kernel {NAME}_kernel")
        a.raw("  .amdhsa_next_free_vgpr 256")
        a.raw("  .amdhsa_next_free_sgpr 102")
        a.raw("  .amdhsa_accum_offset 256")
        a.raw("  .amdhsa_group_segment_fixed_size 0")
        a.raw("  .amdhsa_kernarg_size 104")
        a.raw("  .amdhsa_user_sgpr_count 2")
        a.raw("  .amdhsa_user_sgpr_kernarg_segment_ptr 1")
        a.raw("  .amdhsa_system_sgpr_workgroup_id_x 1")
        a.raw("  .amdhsa_float_denorm_mode_32 3")
        a.raw(".end_amdhsa_kernel")
        return a.finish()


HEADER = open("cdna_kernels/" + NAME + ".s.ref").read().split("; Override launch geometry")[0]

if __name__ == "__main__":
    out = sys.argv[1] if len(sys.argv) > 1 else "k.s"
    kw = eval(sys.argv[2]) if len(sys.argv) > 2 else {}
    open(out, "w").write(HEADER + Gen(**kw).build())
```

```python
import struct
import sys
from asmlib import Asm

NAME = "sequential_preLN__gqa_block_cached__mixer_token_mlp__decode"

EPOCH = 0
QX = 0x10000
E1 = 0x60000
FIN = 0xC0000
TAB = 0xE0000
XI = 0xE8000
STAMP = 0x100000
WS_SPAN = 0x200000
L_Q = 0
L_TAG = 512
L_CNT = 520
L_FLAG = 524
L_CNT2 = 528
L_DONE = 532
L_NEXT = 536
L_SAME = 540
L_TP = 576
L_TY = 928
L_P = 1024
L_PS = 5120
L_ST = 7168
L_KR = 7424
L_U = L_KR + 4 * 8 * 4096
L_R = L_U
L_TAB = L_U
LDS_BYTES = L_U + 18432

TAB_LO = 0x3800
TAB_N = 2304
TPW = 21
LOG2E = 1.4426950408889634
BETA = 0.7978845608028654
C0 = -2.0 * BETA * LOG2E
C1 = C0 * 0.044715
FINAL_WG = (4, 133)
KREG = 64
VRING = 128
W1, B1, W2 = 36, 56, 76
SPIN = 0x100000


def f2u(x):
    return struct.unpack("<I", struct.pack("<f", x))[0]


def hx(x):
    return hex(f2u(x))


class Gen:
    def __init__(self, Tn=66, To=50, stamps=False, dbg=False, ring=8, pre_throttle=8, first_tiles=1,
                 q_sleep0=32, q_sleep=4, tail_sleep=0, prio=0, hprio=3, code_pf=True, mimic=True, mlp_pol="",
                 b0=1, no_mlp=False, no_wo=False, no_table=False, h0_mlp_late=True, tprio=1, trace=False, look=2, mlp_delay=0, gather_sleep0=64, gather_sleep=32, dynprio=True, early=True, h0_mlp_early=True, done_sleep=1, h0_first=True, half_thr=4, pollcnt=False, kvpol=' nt', kpol=None, vpol=None, dry=True, odiag=False, probe=None, qprobe=None, b0_early=False, b0_fast=True, h_delay=0, fdiag=False, xthr=None, xmid=None, nbig=5, k0_early=False, outpol='', slow_lo=None, fullstat=True, opol=' sc1', predirty=0, froll_sleep=0, sdiag=False, blkswz=True, tlbwarm=False, pretouch=1, opipe=False, kahead=True, remap=True, xlocal=True, roll=True, spec=True):
        self.__dict__.update(locals())
        self.a = Asm()

    def stamp(self, i):
        if self.stamps or self.dbg or self.probe or self.qprobe:
            self.a(f"s_memrealtime s[{70 + 2 * i}:{71 + 2 * i}]")

    def stamp_flush(self, first, last, slot_base):
        if not self.stamps:
            return
        a = self.a
        a("s_waitcnt lgkmcnt(0)")
        a("s_mov_b64 exec, 1")
        a("s_lshl_b32 s48, s2, 8")
        a(f"s_add_u32 s48, s48, {STAMP}")
        a("v_mov_b32 v60, 0")
        for i in range(first, last + 1):
            a(f"v_mov_b32 v62, s{70 + 2 * i}")
            a(f"v_mov_b32 v63, s{71 + 2 * i}")
            a(f"buffer_store_dwordx2 v[62:63], v60, s[12:15], s48 offen offset:{(slot_base + i) * 8}")
            a("s_nop 1")
        a("s_mov_b64 exec, -1")

    def trace_pt(self):
        if not self.trace:
            return
        a = self.a
        a("s_memrealtime s[92:93]")
        a("s_waitcnt lgkmcnt(0)")
        a("s_mov_b32 m0, s59")
        a("v_writelane_b32 v58, s92, m0")
        a("s_add_u32 s59, s59, 1")

    def rb(self, dst, src):
        self.a(f"v_cvt_pk_bf16_f32 {dst}, 0, {src}")

    def srd(self, base, ptr, size):
        a = self.a
        a(f"s_mov_b32 s{base}, s{ptr}")
        a(f"s_mov_b32 s{base + 1}, s{ptr + 1}")
        a(f"s_mov_b32 s{base + 2}, {size}")
        a(f"s_mov_b32 s{base + 3}, 0x20000")

    def dpp(self, op, v, ctrl):
        self.a(f"{op}_dpp {v}, {v}, {v} {ctrl} row_mask:0xf bank_mask:0xf")

    def red8(self, op, v):
        for c in ("quad_perm:[1,0,3,2]", "quad_perm:[2,3,0,1]", "row_half_mirror"):
            self.dpp(op, v, c)

    def red16(self, op, v):
        self.red8(op, v)
        self.dpp(op, v, "row_ror:8")

    def xrow(self, n, op, v, t):
        self.a(f"v_mov_b32 {t}, {v}")
        self.a(f"v_permlane{n}_swap_b32 {v}, {t}")
        self.a(f"{op} {v}, {v}, {t}")

    def pack3(self, d, s):
        for i in range(3):
            self.a(f"v_perm_b32 v{d + i}, v{s + i}, v{s + 3}, s{64 + i}")

    def unpack4th(self, g):
        self.a(f"v_perm_b32 v{g + 3}, v{g + 2}, v{g + 1}, s67")
        self.a(f"v_perm_b32 v{g + 3}, v{g + 3}, v{g}, s68")

    def masks(self, base, t0, t1):
        a = self.a
        a(f"v_and_b32 v{t0}, 1, v0")
        a(f"v_cmp_eq_u32 vcc, 1, v{t0}")
        a(f"v_mov_b32 v{t0}, 0xffff")
        a(f"v_mov_b32 v{t1}, 0xffff0000")
        a(f"v_cndmask_b32 v{t0}, v{t0}, v{t1}, vcc")
        a(f"v_bfe_u32 v{t1}, v0, 1, 2")
        for q in range(4):
            a(f"v_cmp_eq_u32 vcc, {q}, v{t1}")
            a(f"v_cndmask_b32 v{base + q}, 0, v{t0}, vcc")

    def tags_bad(self, regs, acc, t):
        a = self.a
        a(f"v_xor_b32 v{acc}, s47, v{regs[0]}")
        for r in regs[1:]:
            a(f"v_xor_b32 v{t}, s47, v{r}")
            a(f"v_or_b32 v{acc}, v{acc}, v{t}")
        a(f"v_cmp_ne_u32 vcc, 0, v{acc}")

    def retry(self, loop, sleep, cnt="s50"):
        a = self.a
        if sleep:
            a(f"s_sleep {sleep}")
        a(f"s_add_u32 {cnt}, {cnt}, 1")
        a(f"s_cmp_lt_u32 {cnt}, {SPIN}")
        a(f"s_cbranch_scc1 {loop}")

    def wait_flag(self, name, vz, vt, off=L_FLAG, sleep=1):
        a = self.a
        a("s_mov_b32 s50, 0")
        a(f"L_{name}:")
        a(f"ds_read_b32 v{vt}, v{vz} offset:{off}")
        a("s_waitcnt lgkmcnt(0)")
        a(f"v_readfirstlane_b32 s48, v{vt}")
        a("s_cmp_lg_u32 s48, 0")
        a(f"s_cbranch_scc1 L_{name}_ok")
        if sleep:
            a(f"s_sleep {sleep}")
        a("s_add_u32 s50, s50, 1")
        a(f"s_cmp_lt_u32 s50, {SPIN * 16}")
        a(f"s_cbranch_scc1 L_{name}")
        a(f"L_{name}_ok:")

    def gelu_pk(self, items, c0, c1, one, acc, sa):
        a = self.a
        P = lambda r: f"v[{r}:{r + 1}]"

        def rnd(sel):
            if self.mimic:
                for it in items:
                    r = it[sel]
                    self.rb(f"v{r}", f"v{r}")
                    self.rb(f"v{r + 1}", f"v{r + 1}")

        for (w1, b1, w2, u, t) in items:
            a(f"v_pk_mul_f32 {P(u)}, {sa}, {P(w1)} op_sel_hi:[0,1]")
        rnd(3)
        for (w1, b1, w2, u, t) in items:
            a(f"v_pk_add_f32 {P(u)}, {P(u)}, {P(b1)}")
        rnd(3)
        for (w1, b1, w2, u, t) in items:
            a(f"v_pk_mul_f32 {P(t)}, {P(u)}, {P(u)}")
        for (w1, b1, w2, u, t) in items:
            a(f"v_pk_fma_f32 {P(t)}, {P(t)}, {P(c1)}, {P(c0)}")
        for (w1, b1, w2, u, t) in items:
            a(f"v_pk_mul_f32 {P(t)}, {P(t)}, {P(u)}")
        for (w1, b1, w2, u, t) in items:
            a(f"v_exp_f32 v{t}, v{t}")
            a(f"v_exp_f32 v{t + 1}, v{t + 1}")
        for (w1, b1, w2, u, t) in items:
            a(f"v_pk_add_f32 {P(t)}, {P(t)}, {P(one)}")
        for (w1, b1, w2, u, t) in items:
            a(f"v_rcp_f32 v{t}, v{t}")
            a(f"v_rcp_f32 v{t + 1}, v{t + 1}")
        for (w1, b1, w2, u, t) in items:
            a(f"v_pk_mul_f32 {P(t)}, {P(t)}, {P(u)}")
        rnd(4)
        for (w1, b1, w2, u, t) in items:
            a(f"v_pk_fma_f32 {P(acc)}, {P(t)}, {P(w2)}, {P(acc)}")

    def gelu_consts(self, base):
        for i in range(2):
            self.a(f"v_mov_b32 v{base + i}, {hx(C0)}")
            self.a(f"v_mov_b32 v{base + 2 + i}, {hx(C1)}")
            self.a(f"v_mov_b32 v{base + 4 + i}, 1.0")

    def issue_mlp(self, ndw, rawofs):
        a = self.a
        if self.no_mlp:
            return
        a("v_lshlrev_b32 v1, 4, v0")
        a("v_lshlrev_b32 v2, 3, v0")
        for sp, D in ((28, W1), (30, B1), (32, W2)):
            dst = D + rawofs
            self.srd(4, sp, 9216)
            o = 0
            while o < ndw:
                n = 4 if ndw - o >= 4 else 2
                a(f"buffer_load_dwordx{n} v[{dst + o}:{dst + o + n - 1}], v{1 if n == 4 else 2}, s[4:7], s48 offen offset:{256 * o}{self.mlp_pol}")
                o += n

    def unpack_mlp(self, ndw, rawofs):
        a = self.a
        for D in (W1, B1, W2):
            for i in range(ndw):
                src = D + rawofs + i
                for j in range(i + 1, ndw):
                    assert D + rawofs + j not in (D + 2 * i, D + 2 * i + 1)
                assert D + 2 * i != src
                a(f"v_lshlrev_b32 v{D + 2 * i}, 16, v{src}")
                a(f"v_and_b32 v{D + 2 * i + 1}, 0xffff0000, v{src}")

    def load_wo(self, label, after):
        a = self.a
        a("s_cmp_eq_u32 s45, 0")
        a(f"s_cbranch_scc1 {label}")
        if self.no_wo:
            a(f"s_branch {after}")
            a(f"{label}:")
            return
        self.srd(8, 24, 4718592)
        a("s_lshl_b32 s48, s43, 1")
        a("s_add_u32 s48, s48, s42")
        a(f"s_mul_i32 s48, s48, {128 * 1152}")
        a(f"s_mul_i32 s49, s56, {32 * 1152}")
        a("s_add_u32 s48, s48, s49")
        a("v_lshrrev_b32 v1, 5, v0")
        a("v_bfe_u32 v2, v0, 4, 1")
        a("v_lshl_add_u32 v1, v1, 2, v2")
        a("v_mul_u32_u24 v1, 1152, v1")
        a("v_and_b32 v2, 15, v0")
        a("v_lshl_add_u32 v1, v2, 4, v1")
        for last in (False, True):
            if last:
                a("s_mov_b32 exec_lo, 0x00ff00ff")
                a("s_mov_b32 exec_hi, 0x00ff00ff")
            for P in range(4):
                for T in range(2):
                    a(f"s_add_u32 s49, s48, {(16 * (P >> 1) + 2 * (P & 1) + 8 * T) * 1152}")
                    for cg in ((4,) if last else range(4)):
                        r = 96 + 8 * (5 * P + cg) + 4 * T
                        a(f"buffer_load_dwordx4 v[{r}:{r + 3}], v1, s[8:11], s49 offen offset:{256 * cg} nt")
        a("s_mov_b64 exec, -1")
        a(f"s_branch {after}")
        a(f"{label}:")

    def prologue(self):
        a = self.a
        Tn, To = self.Tn, self.To
        self.stamp(0)
        if self.stamps:
            for i in range(72, 86, 2):
                a(f"s_mov_b64 s[{i}:{i + 1}], 0")
        a("s_cmp_ge_u32 s2, 256")
        a("s_cbranch_scc1 L_end")
        a("s_load_dwordx16 s[16:31], s[0:1], 0")
        a("s_load_dwordx8 s[32:39], s[0:1], 64")
        a("s_load_dwordx2 s[40:41], s[0:1], 96")
        a("v_lshrrev_b32 v1, 6, v0")
        a("v_and_b32 v0, 63, v0")
        a("s_lshr_b32 s42, s2, 7")
        a("v_readfirstlane_b32 s3, v1")
        if self.remap:
            a("s_and_b32 s43, s2, 15")
            a("s_bfe_u32 s44, s2, 0x30004")
            a("s_lshl_b32 s2, s42, 4")
            a("s_add_u32 s2, s2, s43")
            a("s_lshl_b32 s2, s2, 3")
            a("s_add_u32 s2, s2, s44")
        else:
            a("s_bfe_u32 s43, s2, 0x40003")
            a("s_and_b32 s44, s2, 7")
        if self.b0_early or self.b0_fast:
            self.lds_init()
        a("s_mov_b32 s7, 0x20000")
        a("s_mov_b32 s11, 0x20000")
        a("s_cmp_eq_u32 s3, 4")
        a("s_cbranch_scc1 L_h0_start")
        nb = self.nbig
        To = 512 - nb * Tn - (7 - nb) * (Tn - 1)
        a("s_and_b32 s48, s43, 7")
        a("s_cmp_gt_u32 s44, s48")
        a("s_cselect_b32 s50, 1, 0")
        a("s_sub_u32 s51, s44, s50")
        a(f"s_mul_i32 s52, s50, {To}")
        a(f"s_min_u32 s50, s51, {nb}")
        a(f"s_cmp_lt_u32 s51, {nb}")
        a("s_cselect_b32 s49, 1, 0")
        a(f"s_add_u32 s49, s49, {Tn - 1}")
        a(f"s_mul_i32 s51, s51, {Tn - 1}")
        a("s_add_u32 s51, s51, s50")
        a("s_add_u32 s51, s51, s52")
        a("s_cmp_eq_u32 s44, s48")
        a(f"s_cselect_b32 s49, {To}, s49")
        a("s_lshr_b32 s52, s2, 3")
        a("s_lshl_b32 s52, s52, 9")
        a("s_add_u32 s52, s52, s51")
        a("s_add_u32 s6, s52, s49")
        a("s_lshl_b32 s6, s6, 12")
        a("s_mov_b32 s10, s6")
        a("s_lshl_b32 s51, s52, 12")
        a("s_add_u32 s52, s52, s3")
        a("s_lshl_b32 s52, s52, 12")
        a("v_lshlrev_b32 v2, 4, v0")
        if self.blkswz:
            for c in range(4):
                a(f"v_xor_b32 v{60 + c}, {64 * c}, v2")
        else:
            a("v_lshrrev_b32 v1, 4, v0")
            a("v_lshlrev_b32 v1, 6, v1")
            a("v_xor_b32 v60, v2, v1")
            for c in range(1, 4):
                a(f"v_xor_b32 v{60 + c}, {16 * c}, v60")
        a("s_lshl_b32 s56, s3, 15")
        a(f"s_add_u32 s56, s56, {L_KR}")
        a("s_cmp_gt_u32 s3, 4")
        a("s_waitcnt lgkmcnt(0)")
        a("s_mov_b32 s4, s18")
        a("s_mov_b32 s5, s19")
        a("s_mov_b32 s8, s20")
        a("s_mov_b32 s9, s21")
        if self.k0_early:
            a("s_cbranch_scc1 L_nok0")
            self.issue_tile(0, grab=False)
            a("L_nok0:")
            a("s_barrier")
        else:
            if self.sdiag:
                a("s_memrealtime s[82:83]")
            a("s_barrier")
            if self.sdiag:
                a("s_memrealtime s[84:85]")
            a("s_cbranch_scc1 L_join")
            self.issue_tile(0, grab=False)
        a("s_branch L_join")
        a("L_h0_start:")
        a(f"s_setprio {self.hprio}")
        a("v_mov_b32 v2, 0")
        for c in range(4):
            a(f"v_mov_b32 v{60 + c}, 0")
        a("v_lshrrev_b32 v8, 5, v0")
        a("v_mul_u32_u24 v8, 1152, v8")
        a("v_and_b32 v10, 31, v0")
        a("v_mul_u32_u24 v10, 36, v10")
        a("v_add_u32 v8, v8, v10")
        a("v_lshrrev_b32 v9, 4, v0")
        a(f"v_mul_u32_u24 v9, {18 * 8192}, v9")
        a("v_and_b32 v10, 15, v0")
        a("v_lshl_add_u32 v9, v10, 4, v9")
        a("s_lshl_b32 s48, s43, 1")
        a("s_add_u32 s48, s48, s42")
        a("s_lshl_b32 s48, s48, 8")
        a(f"s_mul_i32 s49, s44, {72 * 8192}")
        a("s_add_u32 s48, s48, s49")
        a("s_mov_b32 s6, 2304")
        a("s_mov_b32 s10, 4718592")
        a("s_waitcnt lgkmcnt(0)")
        a("s_mov_b32 s4, s16")
        a("s_mov_b32 s5, s17")
        a("s_mov_b32 s8, s22")
        a("s_mov_b32 s9, s23")
        if self.b0_early:
            a("s_barrier")
        a("buffer_load_dwordx4 v[12:15], v8, s[4:7], 0 offen")
        a("buffer_load_dwordx4 v[16:19], v8, s[4:7], 0 offen offset:16")
        a("buffer_load_dword v20, v8, s[4:7], 0 offen offset:32")
        for t in range(18):
            a(f"buffer_load_dwordx4 v[{96 + 4 * t}:{99 + 4 * t}], v9, s[8:11], s48 offen nt")
            if t < 17:
                a("s_add_u32 s48, s48, 8192")
        if self.b0_fast and not self.b0_early:
            a("s_barrier")
        a(f"s_load_dword s55, s[40:41], {EPOCH}")
        a("L_join:")
        if not (self.b0_early or self.b0_fast):
            self.lds_init()
        a("s_and_b32 s48, s43, 7")
        a("s_cmp_eq_u32 s44, s48")
        a("s_cselect_b32 s45, 1, 0")
        a(f"s_mov_b32 s14, {WS_SPAN}")
        a("s_mov_b32 s15, 0x20000")
        self.consts()
        if not self.b0_fast:
            a("s_waitcnt lgkmcnt(0)")
        a("s_mov_b32 s12, s40")
        a("s_mov_b32 s13, s41")
        if not (self.b0_early or self.b0_fast):
            a("s_barrier")
        a("s_cmp_lt_u32 s3, 4")
        a("s_cbranch_scc1 L_stream")

    def lds_init(self):
        a = self.a
        for i in range(4):
            a(f"v_mov_b32 v{4 + i}, 0")
        a("v_mov_b32 v66, 4")
        a("v_mov_b32 v64, 0")
        a("v_mov_b32 v65, 0")
        a(f"ds_write_b128 v4, v[4:7] offset:{L_CNT - 8}")
        a(f"ds_write_b96 v4, v[64:66] offset:{L_CNT2}")

    def consts(self):
        a = self.a
        a("s_mov_b32 s46, 0")
        a(f"s_cmp_eq_u32 s2, {FINAL_WG[0]}")
        a("s_cselect_b32 s46, 1, s46")
        a(f"s_cmp_eq_u32 s2, {FINAL_WG[1]}")
        a("s_cselect_b32 s46, 2, s46")
        a("s_mov_b32 s60, 0x00ff00ff")
        a("s_mov_b32 s61, 0xff00ff00")
        a(f"s_mov_b32 s62, {hx(LOG2E)}")
        a(f"s_mov_b32 s63, {hx(128 ** -0.5)}")
        a("s_mov_b32 s64, 0x07060501")
        a("s_mov_b32 s65, 0x07060502")
        a("s_mov_b32 s66, 0x07060503")
        a("s_mov_b32 s67, 0x04000c0c")
        a("s_mov_b32 s68, 0x0706000c")
        a("s_mov_b32 s98, 0")

    def helper_start(self):
        a = self.a
        a(f"s_setprio {self.hprio}")
        a("s_sub_u32 s56, s3, 4")
        a("s_load_dword s69, s[34:35], 0")
        a("s_cmp_eq_u32 s56, 0")
        a("s_cbranch_scc1 L_qphase")
        if self.h_delay:
            a(f"s_sleep {self.h_delay}")
        if self.code_pf:
            a("s_getpc_b64 s[50:51]")
            a("L_pc:")
            a(f"s_sub_u32 s50, s50, L_pc-{NAME}_kernel")
            a("s_subb_u32 s51, s51, 0")
            a("s_sub_u32 s48, s56, 1")
            a("s_lshl_b32 s48, s48, 13")
            a("v_lshlrev_b32 v1, 7, v0")
            a("v_add_u32 v1, s48, v1")
            a(f"v_min_u32 v1, L_code_end-{NAME}_kernel-4, v1")
            a("global_load_dword v8, v1, s[50:51]")
        self.load_wo("L_nowo_a", "L_pre_b2")
        for _ in range(self.mlp_delay):
            a("s_sleep 16")
        a("s_mul_i32 s48, s56, 2560")
        a("s_sub_u32 s48, s48, 1024")
        self.issue_mlp(10, 10)
        a("s_waitcnt vmcnt(0)")
        self.unpack_mlp(10, 10)
        a("s_branch L_table")

    def qphase(self):
        a = self.a
        rb = self.rb
        X = 168
        a("L_qphase:")
        nm = 0
        self.masks(4, 22, 23)
        a("s_waitcnt vmcnt(18) lgkmcnt(0)")
        self.stamp(7)
        for k in range(9):
            a(f"v_lshlrev_b32 v{X + 2 * k}, 16, v{12 + k}")
            a(f"v_and_b32 v{X + 1 + 2 * k}, 0xffff0000, v{12 + k}")
        a("s_add_u32 s55, s55, 1")
        a("s_mul_i32 s47, s55, 0x9E3779B1")
        a(f"v_add_f32 v22, v{X}, v{X + 1}")
        a(f"v_add_f32 v23, v{X + 2}, v{X + 3}")
        for k in range(4, 18, 2):
            a(f"v_add_f32 v22, v22, v{X + k}")
            a(f"v_add_f32 v23, v23, v{X + k + 1}")
        a("v_add_f32 v22, v22, v23")
        self.red16("v_add_f32", "v22")
        self.xrow(16, "v_add_f32", "v22", "v23")
        a(f"v_mul_f32 v22, {hx(1.0 / 576)}, v22")
        a("v_mov_b32 v24, 0")
        a("v_mov_b32 v25, 0")
        for k in range(0, 18, 2):
            a(f"v_sub_f32 v23, v{X + k}, v22")
            a(f"v_sub_f32 v26, v{X + k + 1}, v22")
            a("v_fmac_f32 v24, v23, v23")
            a("v_fmac_f32 v25, v26, v26")
        a("v_add_f32 v24, v24, v25")
        self.red16("v_add_f32", "v24")
        self.xrow(16, "v_add_f32", "v24", "v23")
        a(f"v_mul_f32 v24, {hx(1.0 / 576)}, v24")
        rb("v22", "v22")
        rb("v24", "v24")
        a(f"v_add_f32 v24, {hx(1e-5)}, v24")
        rb("v24", "v24")
        a("v_sqrt_f32 v24, v24")
        for k in range(18):
            a(f"v_sub_f32 v{X + k}, v{X + k}, v22")
        rb("v24", "v24")
        a("v_rcp_f32 v24, v24")
        for k in range(18):
            rb(f"v{X + k}", f"v{X + k}")
        for k in range(18):
            a(f"v_mul_f32 v{X + k}, v{X + k}, v24")
        for k in range(9):
            a(f"v_cvt_pk_bf16_f32 v{12 + k}, v{X + 2 * k}, v{X + 1 + 2 * k}")
        a("v_bfe_u32 v1, v0, 3, 1")
        a("v_lshlrev_b32 v1, 5, v1")
        a("v_lshrrev_b32 v2, 4, v0")
        a("v_add_u32 v1, v1, v2")
        a("s_lshl_b32 s48, s44, 2")
        a("v_add_lshl_u32 v1, v1, s48, 2")
        for k in range(9):
            a(f"ds_bpermute_b32 v{24 + k}, v1, v{12 + k}")
        a("s_mov_b32 s48, 0x01000100")
        a("s_mov_b32 s49, 0x03020302")
        a("s_waitcnt lgkmcnt(0)")
        for t in range(18):
            ab = 36 + 4 * (t & 1)
            a(f"v_perm_b32 v33, v{24 + t // 2}, v{24 + t // 2}, s{48 + (t & 1)}")
            for q in range(4):
                a(f"v_and_b32 v{ab + q}, v33, v{4 + q}")
            a(f"s_waitcnt vmcnt({17 - t})")
            c = "0" if t == 0 else "v[8:11]"
            a(f"v_mfma_f32_16x16x32_bf16 v[8:11], v[{ab}:{ab + 3}], v[{96 + 4 * t}:{99 + 4 * t}], {c}")
        a("s_lshl_b32 s48, s43, 14")
        a("s_lshl_b32 s49, s42, 12")
        a("s_add_u32 s49, s49, s48")
        a("s_lshl_b32 s50, s44, 9")
        a("s_add_u32 s49, s49, s50")
        a(f"s_add_u32 s49, s49, {QX}")
        a("v_lshrrev_b32 v1, 5, v0")
        a("v_lshlrev_b32 v1, 13, v1")
        a("v_and_b32 v2, 31, v0")
        a("v_lshl_add_u32 v1, v2, 4, v1")
        a("v_mov_b32 v15, s47")
        self.pack3(12, 8)
        a("buffer_store_dwordx4 v[12:15], v1, s[12:15], s49 offen sc1")
        self.stamp(1)
        if self.xlocal:
            a("s_getreg_b32 s99, hwreg(HW_REG_XCC_ID, 0, 4)")
            a("s_lshl_b32 s57, s43, 8")
            a(f"s_add_u32 s57, s57, {XI}")
            a("v_lshlrev_b32 v44, 4, v0")
            a("v_mov_b32 v40, s99")
            a("v_mov_b32 v43, s47")
            a("s_lshl3_add_u32 s48, s42, s44")
            a("s_lshl_b64 exec, 1, s48")
            a("buffer_store_dwordx4 v[40:43], v44, s[12:15], s57 offen sc1")
            if self.tlbwarm:
                a(f"s_mul_i32 s48, s43, {2 * 10240}")
                a(f"s_add_u32 s48, s48, {E1 + 9216}")
                a("buffer_load_dword v45, v44, s[12:15], s48 offen")
            a("s_mov_b64 exec, -1")
        if self.h0_mlp_early:
            a("s_cmp_lg_u32 s45, 0")
            a("s_cbranch_scc1 L_h0_nomlp")
            a("s_mov_b32 s48, 0")
            self.issue_mlp(6, 14)
            a("L_h0_nomlp:")
        a("s_lshl_b32 s48, s43, 14")
        a("s_lshl_b32 s49, s42, 13")
        a("s_add_u32 s48, s48, s49")
        a(f"s_add_u32 s48, s48, {QX}")
        a("s_add_u32 s49, s48, 4096")
        a("v_lshlrev_b32 v1, 4, v0")
        a("s_mov_b32 s50, 0")
        if self.q_sleep0:
            a(f"s_sleep {self.q_sleep0}")
        a("L_qpoll:")
        for u in range(8):
            so = "s48" if u < 4 else "s49"
            a(f"buffer_load_dwordx4 v[{8 + 4 * u}:{11 + 4 * u}], v1, s[12:15], {so} offen offset:{1024 * (u & 3)} sc1")
        if self.xlocal:
            a("v_mov_b32 v43, s47")
            a("s_mov_b64 exec, 0xffff")
            a("buffer_load_dwordx4 v[40:43], v44, s[12:15], s57 offen sc1")
            a("s_mov_b64 exec, -1")
        a("s_waitcnt vmcnt(0)")
        self.tags_bad([11 + 4 * u for u in range(8)] + ([43] if self.xlocal else []), 2, 3)
        a("s_cbranch_vccz L_qgot")
        self.retry("L_qpoll", self.q_sleep)
        a("L_qgot:")
        if self.pollcnt:
            a("s_mul_i32 s84, s50, 100")
            a("s_add_u32 s84, s84, s70")
            a("s_addc_u32 s85, s71, 0")
        for u in range(8):
            self.unpack4th(8 + 4 * u)
        for hh in range(2):
            for e in range(4):
                g = 8 + 16 * hh + e
                a(f"v_add_f32 v{g}, v{g}, v{g + 4}")
                a(f"v_add_f32 v{g + 8}, v{g + 8}, v{g + 12}")
            for e in range(4):
                g = 8 + 16 * hh + e
                a(f"v_add_f32 v{g}, v{g}, v{g + 8}")
        for e in range(4):
            a(f"v_permlane32_swap_b32 v{8 + e}, v{24 + e}")
        for e in range(4):
            a(f"v_add_f32 v{8 + e}, v{8 + e}, v{24 + e}")
        a("v_cvt_pk_bf16_f32 v12, v8, v9")
        a("v_cvt_pk_bf16_f32 v13, v10, v11")
        a("v_lshrrev_b32 v1, 5, v0")
        a("v_lshlrev_b32 v1, 8, v1")
        a("v_and_b32 v2, 15, v0")
        a("v_lshl_add_u32 v1, v2, 4, v1")
        a("v_bfe_u32 v2, v0, 4, 1")
        a("v_lshl_add_u32 v1, v2, 3, v1")
        a(f"ds_write_b64 v1, v[12:13] offset:{L_Q}")
        a("v_mov_b32 v14, s47")
        a("v_mov_b32 v15, s55")
        a("v_mov_b32 v2, 0")
        a("v_mov_b32 v3, 1")
        a(f"ds_write_b64 v2, v[14:15] offset:{L_TAG}")
        if self.xlocal:
            a("v_cmp_ne_u32 vcc, s99, v40")
            a("s_and_b32 s48, vcc_lo, 0xffff")
            a("v_mov_b32 v16, s48")
            a(f"ds_write_b32 v2, v16 offset:{L_SAME}")
        a("s_waitcnt lgkmcnt(0)")
        a(f"ds_write_b32 v2, v3 offset:{L_FLAG}")
        self.stamp(2)
        self.load_wo("L_nowo_b", "L_pre_b2")
        if not self.h0_mlp_early:
            a("s_mov_b32 s48, 0")
            self.issue_mlp(6, 14)
            a("s_waitcnt vmcnt(0)")
        self.unpack_mlp(6, 14)

    def table(self):
        a = self.a
        rb = self.rb
        a("L_table:")
        a(f"s_setprio {self.tprio}")
        a("s_lshr_b32 s48, s2, 3")
        a("s_mul_i32 s48, s48, 7")
        a("s_add_u32 s48, s48, s44")
        a("s_and_b32 s49, s43, 7")
        a("s_cmp_gt_u32 s44, s49")
        a("s_cselect_b32 s49, 1, 0")
        a("s_sub_u32 s54, s48, s49")
        a(f"s_mul_i32 s53, s54, {TPW}")
        self.gelu_consts(28)
        a(f"s_mul_i32 s48, s56, {4 * TPW}")
        a("v_mov_b32 v3, s48")
        a(f"s_mov_b32 s57, {1 if self.no_table else TPW}")
        a("L_tloop:")
        a(f"s_cmp_ge_u32 s53, {TAB_N}")
        a(f"s_cselect_b32 s48, {0x8000 - TAB_N}, 0")
        a("s_add_u32 s48, s48, s53")
        a(f"s_add_u32 s48, s48, {TAB_LO}")
        a("s_lshl_b32 s58, s48, 16")
        a("v_mov_b32 v26, 0")
        a("v_mov_b32 v27, 0")
        for (p0, n) in ((0, 3), (3, 3), (6, 4)):
            if p0 == 6:
                a("s_cmp_eq_u32 s56, 0")
                a("s_cbranch_scc1 L_tskip")
            items = [(W1 + 2 * (p0 + i), B1 + 2 * (p0 + i), W2 + 2 * (p0 + i), 8 + 4 * i, 10 + 4 * i) for i in range(n)]
            self.gelu_pk(items, 28, 30, 32, 26, "s[58:59]")
        a("L_tskip:")
        a("v_add_f32 v26, v26, v27")
        self.red16("v_add_f32", "v26")
        self.xrow(16, "v_add_f32", "v26", "v27")
        self.xrow(32, "v_add_f32", "v26", "v27")
        a(f"ds_write_b32 v3, v26 offset:{L_TP}")
        a("v_add_u32 v3, 4, v3")
        a("s_add_u32 s53, s53, 1")
        a("s_sub_u32 s57, s57, 1")
        a("s_cmp_lg_u32 s57, 0")
        a("s_cbranch_scc1 L_tloop")
        a("v_mov_b32 v2, 0")
        self.wait_flag("tflag", 2, 8)
        a(f"ds_read_b64 v[10:11], v2 offset:{L_TAG}")
        a("v_mov_b32 v8, 1")
        a("s_mov_b64 exec, 1")
        a(f"ds_add_rtn_u32 v9, v2, v8 offset:{L_CNT}")
        a("s_mov_b64 exec, -1")
        a("s_waitcnt lgkmcnt(0)")
        a("v_readfirstlane_b32 s47, v10")
        a("v_readfirstlane_b32 s55, v11")
        a("v_readfirstlane_b32 s48, v9")
        a("s_cmp_eq_u32 s48, 3")
        a("s_cbranch_scc0 L_tdone")
        a("v_lshlrev_b32 v3, 2, v0")
        a(f"s_mov_b64 exec, {hex((1 << TPW) - 1)}")
        for w in range(4):
            a(f"ds_read_b32 v{8 + w}, v3 offset:{L_TP + 4 * TPW * w}")
        a("v_lshlrev_b32 v3, 1, v0")
        a("s_lshl_b32 s48, s69, 16")
        a("s_waitcnt lgkmcnt(0)")
        a("v_add_f32 v8, v8, v9")
        a("v_add_f32 v10, v10, v11")
        a("v_add_f32 v8, v8, v10")
        rb("v8", "v8")
        a("v_add_f32 v8, s48, v8")
        a("v_cvt_pk_bf16_f32 v8, v8, 0")
        a(f"ds_write_b16 v3, v8 offset:{L_TY}")
        a("s_mov_b64 exec, 15")
        a("v_mul_u32_u24 v3, 12, v0")
        a("s_waitcnt lgkmcnt(0)")
        for i in range(3):
            a(f"ds_read_b32 v{8 + i}, v3 offset:{L_TY + 4 * i}")
        a("v_mov_b32 v11, s47")
        a("v_lshlrev_b32 v3, 4, v0")
        a("s_lshl_b32 s48, s54, 6")
        a(f"s_add_u32 s48, s48, {TAB}")
        a("s_waitcnt lgkmcnt(0)")
        a("buffer_store_dwordx4 v[8:11], v3, s[12:15], s48 offen sc1")
        a("s_mov_b64 exec, -1")
        a("L_tdone:")
        self.stamp(3)
        a("s_cmp_lg_u32 s46, 0")
        a("s_cbranch_scc1 L_final")
        if self.dry:
            a("s_cmp_eq_u32 s56, 1")
            a("s_cbranch_scc0 L_nowarm")
            a("s_mov_b32 s98, 1")
            a("v_mov_b32 v2, 0")
            a("v_mov_b32 v87, 0")
            a("s_branch L_pub")
            a("L_nowarm:")
        if self.stamps:
            a("s_cmp_eq_u32 s56, 0")
            a("s_cbranch_scc0 L_end")
            a("s_setprio 0")
            a("v_mov_b32 v2, 0")
            self.wait_flag("stdone", 2, 3, L_DONE, 8)
            self.stamp_flush(0, 7, 8)
        a("s_endpgm")

    def grab(self):
        a = self.a
        a("s_mov_b64 exec, 1")
        a(f"ds_add_rtn_u32 v57, v56, v59 offset:{L_NEXT}")
        a("s_mov_b64 exec, -1")

    def issue_k(self, slot):
        a = self.a
        a(f"s_add_u32 m0, s56, {4096 * slot}")
        for c in range(4):
            a(f"buffer_load_dwordx4 v{60 + c}, s[4:7], s52 offen offset:{1024 * c}{self.kvpol} lds")

    def issue_tile(self, slot, grab=True, mid=None, xslot=None):
        a = self.a
        vb = VRING + 16 * slot
        so = "s52"
        if grab:
            a("s_waitcnt lgkmcnt(0)")
            a("v_readfirstlane_b32 s48, v57")
            if self.kahead:
                a("s_mov_b32 s96, s52")
                so = "s96"
            self.grab()
            a("s_lshl_b32 s52, s48, 12")
            a("s_add_u32 s52, s52, s51")
            a("s_cmp_lt_u32 s48, s49")
            a("s_addc_u32 s54, s54, 0")
        self.issue_k((slot + 1) % self.ring if (self.kahead and grab) else slot)
        if self.kahead and not grab:
            return
        if mid is not None:
            a(f"s_waitcnt vmcnt({mid})")
        for c in range(4):
            a(f"buffer_load_dwordx4 v[{vb + 4 * c}:{vb + 3 + 4 * c}], v2, s[8:11], {so} offen offset:{1024 * c}{self.kvpol}")

    def loop_plain(self):
        a = self.a
        rb = self.rb
        ring = self.ring
        L = self.look
        a("s_getreg_b32 s97, hwreg(HW_REG_XCC_ID, 0, 4)")
        a("L_loop:")
        for slot in range(ring):
            kb = KREG
            vb = VRING + 16 * slot
            if slot < ring - L:
                a("s_cmp_lg_u32 s53, 0")
                a(f"s_cbranch_scc1 L_noissue{slot}")
            if self.xthr is not None:
                a("s_bitcmp1_b32 s97, 0")
                a(f"s_cbranch_scc1 L_xo{slot}")
                a(f"s_waitcnt vmcnt({self.xthr})")
                a(f"L_xo{slot}:")
            self.issue_tile((slot + L) % ring, xslot=slot)
            if slot < ring - L:
                a("s_add_u32 s53, s53, 1")
                a(f"L_noissue{slot}:")
                a("s_sub_u32 s53, s53, 1")
            a(f"s_waitcnt vmcnt({8 * L + 4})")
            if self.dynprio:
                a("s_setprio 3")
            for c in range(4):
                a(f"ds_read_b128 v[{kb + 4 * c}:{kb + 4 * c + 3}], v{80 + c} offset:{4096 * slot}")
            for c in range(4):
                a(f"s_waitcnt lgkmcnt({3 - c})")
                cc = "0" if c == 0 else "v[12:15]"
                a(f"v_mfma_f32_16x16x32_bf16 v[12:15], v[{kb + 4 * c}:{kb + 4 * c + 3}], v[{40 + 4 * c}:{43 + 4 * c}], {cc}")
            a("s_sub_u32 s54, s54, 1")
            for r in range(4):
                rb(f"v{12 + r}", f"v{12 + r}")
            for r in range(4):
                a(f"v_mul_f32 v{12 + r}, s63, v{12 + r}")
            for r in range(4):
                rb(f"v{12 + r}", f"v{12 + r}")
            a("v_max3_f32 v18, v12, v13, v14")
            a("v_max3_f32 v18, v18, v15, v16")
            self.xrow(32, "v_max_f32", "v18", "v19")
            self.xrow(16, "v_max_f32", "v18", "v19")
            a("v_sub_f32 v20, v16, v18")
            a("v_mul_f32 v21, s62, v18")
            a("v_mul_f32 v20, s62, v20")
            a("v_mov_b32 v16, v18")
            a("v_exp_f32 v20, v20")
            for r in range(4):
                a(f"v_fma_f32 v{12 + r}, v{12 + r}, s62, -v21")
            for r in range(4):
                a(f"v_exp_f32 v{12 + r}, v{12 + r}")
            a("v_cndmask_b32_dpp v22, v20, v20, vcc row_ror:8 row_mask:0xf bank_mask:0xf")
            a("v_add_f32 v18, v12, v13")
            a("v_add_f32 v19, v14, v15")
            for r in range(4):
                a(f"v_cvt_pk_bf16_f32 v{12 + r}, v{12 + r}, v{12 + r}")
            a("v_add_f32 v18, v18, v19")
            for r in range(4):
                a(f"v_mul_f32 v{8 + r}, v22, v{8 + r}")
            a("v_fma_f32 v17, v17, v20, v18")
            for r in range(4):
                for q in range(4):
                    a(f"v_and_b32 v{24 + 4 * r + q}, v{12 + r}, v{4 + q}")
            a(f"s_waitcnt vmcnt({8 * L})")
            for r in range(4):
                a(f"v_mfma_f32_16x16x32_bf16 v[8:11], v[{24 + 4 * r}:{27 + 4 * r}], v[{vb + 4 * r}:{vb + 4 * r + 3}], v[8:11]")
            self.trace_pt()
            a("s_cmp_eq_u32 s54, 0")
            a("s_cbranch_scc1 L_sdone")
            if self.dynprio:
                a("s_setprio 0")
        a("s_branch L_loop")

    def softmax_part(self, slot, ab, al):
        a = self.a
        rb = self.rb
        kb = KREG
        for c in range(4):
            a(f"ds_read_b128 v[{kb + 4 * c}:{kb + 4 * c + 3}], v{80 + c} offset:{4096 * slot}")
        for c in range(4):
            a(f"s_waitcnt lgkmcnt({3 - c})")
            cc = "0" if c == 0 else "v[12:15]"
            a(f"v_mfma_f32_16x16x32_bf16 v[12:15], v[{kb + 4 * c}:{kb + 4 * c + 3}], v[{40 + 4 * c}:{43 + 4 * c}], {cc}")
        for r in range(4):
            rb(f"v{12 + r}", f"v{12 + r}")
        for r in range(4):
            a(f"v_mul_f32 v{12 + r}, s63, v{12 + r}")
        for r in range(4):
            rb(f"v{12 + r}", f"v{12 + r}")
        a("v_max3_f32 v18, v12, v13, v14")
        a("v_max3_f32 v18, v18, v15, v16")
        self.xrow(32, "v_max_f32", "v18", "v19")
        self.xrow(16, "v_max_f32", "v18", "v19")
        a("v_sub_f32 v20, v16, v18")
        a("v_mul_f32 v21, s62, v18")
        a("v_mul_f32 v20, s62, v20")
        a("v_mov_b32 v16, v18")
        a("v_exp_f32 v20, v20")
        for r in range(4):
            a(f"v_fma_f32 v{12 + r}, v{12 + r}, s62, -v21")
        for r in range(4):
            a(f"v_exp_f32 v{12 + r}, v{12 + r}")
        a(f"v_cndmask_b32_dpp v{al}, v20, v20, vcc row_ror:8 row_mask:0xf bank_mask:0xf")
        a("v_add_f32 v18, v12, v13")
        a("v_add_f32 v19, v14, v15")
        for r in range(4):
            a(f"v_cvt_pk_bf16_f32 v{12 + r}, v{12 + r}, v{12 + r}")
        a("v_add_f32 v18, v18, v19")
        a("v_fma_f32 v17, v17, v20, v18")
        for r in range(4):
            for q in range(4):
                a(f"v_and_b32 v{ab + 4 * r + q}, v{12 + r}, v{4 + q}")

    def stats_out(self):
        a = self.a
        self.xrow(32, "v_add_f32", "v17", "v19")
        self.xrow(16, "v_add_f32", "v17", "v19")
        a("v_cndmask_b32_dpp v18, v16, v16, vcc row_ror:8 row_mask:0xf bank_mask:0xf")
        a("v_cndmask_b32_dpp v19, v17, v17, vcc row_ror:8 row_mask:0xf bank_mask:0xf")
        a(f"ds_write_b64 v85, v[18:19] offset:{L_PS}")

    def loop_kahead(self):
        a = self.a
        ring = self.ring
        L = self.look
        AB = (24, 96)
        AL = (22, 23)
        a(f"s_waitcnt vmcnt({8 * L})")
        a("s_setprio 3")
        self.softmax_part(0, AB[0], AL[0])
        a("s_setprio 0")
        a("L_loop:")
        for slot in range(ring):
            vb = VRING + 16 * slot
            cur, nxt = AB[slot & 1], AB[(slot + 1) & 1]
            if slot < ring - 1 - L:
                a("s_cmp_lg_u32 s53, 0")
                a(f"s_cbranch_scc1 L_noissue{slot}")
            self.issue_tile((slot + L) % ring)
            if slot < ring - 1 - L:
                a("s_add_u32 s53, s53, 1")
                a(f"L_noissue{slot}:")
                a("s_sub_u32 s53, s53, 1")
            for r in range(4):
                a(f"v_mul_f32 v{8 + r}, v{AL[slot & 1]}, v{8 + r}")
            a("s_cmp_eq_u32 s54, 1")
            a(f"s_cbranch_scc1 L_last{slot}")
            a(f"s_waitcnt vmcnt({8 * L + 4})")
            a("s_setprio 3")
            self.softmax_part((slot + 1) % ring, nxt, AL[(slot + 1) & 1])
            a("s_sub_u32 s54, s54, 1")
            a(f"s_waitcnt vmcnt({8 * L})")
            for r in range(4):
                a(f"v_mfma_f32_16x16x32_bf16 v[8:11], v[{cur + 4 * r}:{cur + 3 + 4 * r}], v[{vb + 4 * r}:{vb + 4 * r + 3}], v[8:11]")
            self.trace_pt()
            a("s_setprio 0")
        a("s_branch L_loop")
        for slot in range(ring):
            vb = VRING + 16 * slot
            cur = AB[slot & 1]
            a(f"L_last{slot}:")
            a("s_setprio 3")
            self.stats_out()
            a(f"s_waitcnt vmcnt({8 * L})")
            for r in range(4):
                a(f"v_mfma_f32_16x16x32_bf16 v[8:11], v[{cur + 4 * r}:{cur + 3 + 4 * r}], v[{vb + 4 * r}:{vb + 4 * r + 3}], v[8:11]")
            self.trace_pt()
            if slot < ring - 1:
                a("s_branch L_sdone")

    def stream(self):
        a = self.a
        rb = self.rb
        ring = self.ring
        L = self.look
        a("L_stream:")
        if self.h0_first and not (self.b0_early or self.b0_fast):
            self.issue_tile(0, grab=False)
        if self.trace:
            a("s_mov_b32 s59, 0")
            a("v_mov_b32 v58, 0")
        self.trace_pt()
        a("v_mov_b32 v56, 0")
        a("v_mov_b32 v59, 1")
        self.grab()
        a("s_mov_b32 s54, 1")
        if self.kahead:
            self.issue_tile(0)
        if self.half_thr is not None:
            a(f"s_waitcnt vmcnt({self.half_thr})")
        self.issue_tile(1, mid=self.half_thr)
        self.trace_pt()
        self.masks(4, 18, 19)
        for r in range(4):
            a(f"v_mov_b32 v{8 + r}, 0")
        a("v_mov_b32 v16, 0xff7fffff")
        a("v_mov_b32 v17, 0")
        a("v_bfe_u32 v3, v0, 3, 1")
        a("v_lshlrev_b32 v3, 8, v3")
        a("v_lshrrev_b32 v18, 4, v0")
        a("v_lshl_add_u32 v3, v18, 4, v3")
        if self.blkswz:
            a("v_and_b32 v19, 3, v0")
            a("v_lshl_add_u32 v18, v19, 2, v18")
            a("v_lshlrev_b32 v18, 4, v18")
        else:
            a("v_and_b32 v19, 15, v0")
            a("v_xor_b32 v18, v18, v19")
            a("v_lshlrev_b32 v18, 4, v18")
        a("v_and_b32 v19, 3, v0")
        a("v_lshl_add_u32 v18, v19, 10, v18")
        a("v_bfe_u32 v19, v0, 2, 2")
        a("v_lshl_add_u32 v18, v19, 8, v18")
        for c in range(4):
            a(f"v_xor_b32 v{80 + c}, {64 * c}, v18")
        for c in range(4):
            a(f"v_add_u32 v{80 + c}, s56, v{80 + c}")
        a("s_lshl_b32 s48, s3, 10")
        a("v_add_u32 v84, s48, v2")
        a("v_lshlrev_b32 v87, 3, v0")
        a("s_lshl_b32 s48, s3, 9")
        a("v_add_u32 v85, s48, v87")
        a(f"s_mul_i32 s57, s43, {2 * 10240}")
        a("s_lshl_b32 s48, s44, 4")
        a("s_add_u32 s57, s57, s48")
        a(f"s_add_u32 s57, s57, {E1}")
        a("v_lshrrev_b32 v88, 5, v0")
        a("v_mul_u32_u24 v88, 10240, v88")
        a("v_and_b32 v89, 15, v0")
        a("v_lshl_add_u32 v89, v89, 8, v88")
        a("v_bfe_u32 v18, v0, 4, 1")
        a("v_lshl_add_u32 v89, v18, 7, v89")
        a("s_lshl_b32 s48, s42, 12")
        a("v_add_u32 v89, s48, v89")
        a("s_lshl_b32 s48, s42, 7")
        a("s_add_u32 s48, s48, 8192")
        a("v_add_u32 v88, s48, v88")
        a("v_mov_b32 v18, 0")
        npre = ring - 1 if self.kahead else ring
        for t in range(2, npre):
            a(f"s_waitcnt vmcnt({self.pre_throttle if self.half_thr is None else self.half_thr})")
            if self.early and t > L:
                a(f"ds_read_b32 v19, v18 offset:{L_FLAG}")
                a(f"s_mov_b32 s53, {t - L}")
                a("s_waitcnt lgkmcnt(0)")
                a("v_readfirstlane_b32 s48, v19")
                a("s_cmp_lg_u32 s48, 0")
                a("s_cbranch_scc1 L_qwait_ok")
            self.issue_tile(t, mid=self.half_thr)
            self.trace_pt()
        a(f"s_mov_b32 s53, {npre - L}")
        self.wait_flag("qwait", 18, 19)
        self.stamp(1)
        for c in range(4):
            a(f"ds_read_b128 v[{40 + 4 * c}:{43 + 4 * c}], v3 offset:{L_Q + 64 * c}")
        a(f"ds_read_b64 v[20:21], v18 offset:{L_TAG}")
        if self.xlocal:
            a(f"ds_read_b32 v22, v18 offset:{L_SAME}")
        a("s_mov_b64 vcc, s[60:61]")
        a("s_waitcnt lgkmcnt(0)")
        if self.xlocal:
            a("v_readfirstlane_b32 s99, v22")
        a("v_readfirstlane_b32 s47, v20")
        a("v_readfirstlane_b32 s55, v21")
        self.stamp(2)
        if self.kahead:
            self.loop_kahead()
        else:
            self.loop_plain()
        a("L_sdone:")
        self.stamp(3)
        if not self.kahead:
            self.stats_out()
        a(f"ds_write_b128 v84, v[8:11] offset:{L_P}")
        a("s_mov_b64 exec, 1")
        a(f"ds_add_rtn_u32 v50, v56, v59 offset:{L_CNT2}")
        a("s_mov_b64 exec, -1")
        if not self.spec:
            a("s_waitcnt lgkmcnt(0)")
            a("v_readfirstlane_b32 s48, v50")
            a("s_cmp_eq_u32 s48, 3")
            a("s_cbranch_scc0 L_after_pub")
        a("L_pub:")
        for w in range(4):
            a(f"ds_read_b64 v[{24 + 2 * w}:{25 + 2 * w}], v87 offset:{L_PS + 512 * w}")
        for w in range(4):
            a(f"ds_read_b128 v[{32 + 4 * w}:{35 + 4 * w}], v2 offset:{L_P + 1024 * w}")
        if self.spec:
            a("s_waitcnt lgkmcnt(8)")
            a("v_readfirstlane_b32 s48, v50")
            a("s_cmp_eq_u32 s48, 3")
            a("s_cselect_b32 s48, 1, s98")
            a("s_cmp_lg_u32 s48, 0")
            a("s_cbranch_scc0 L_after_pub")
        a("s_waitcnt lgkmcnt(4)")
        a("v_max_f32 v12, v24, v26")
        a("v_max3_f32 v12, v12, v28, v30")
        for w in range(4):
            a(f"v_sub_f32 v{24 + 2 * w}, v{24 + 2 * w}, v12")
        for w in range(4):
            a(f"v_mul_f32 v{24 + 2 * w}, s62, v{24 + 2 * w}")
        for w in range(4):
            a(f"v_exp_f32 v{24 + 2 * w}, v{24 + 2 * w}")
        a("v_mul_f32 v13, v24, v25")
        a("s_waitcnt lgkmcnt(0)")
        for r in range(4):
            a(f"v_mul_f32 v{8 + r}, v24, v{32 + r}")
        for w in range(1, 4):
            for r in range(4):
                a(f"v_fmac_f32 v{8 + r}, v{24 + 2 * w}, v{32 + 4 * w + r}")
        for w in range(1, 4):
            a(f"v_fmac_f32 v13, v{24 + 2 * w}, v{25 + 2 * w}")
        self.pack3(16, 8)
        a("v_mov_b32 v19, s47")
        a("v_mov_b32 v14, 0")
        a("v_mov_b32 v15, s47")
        a("v_mov_b32 v20, 0")
        a("v_mov_b32 v21, 1")
        if self.dry:
            a("s_cmp_lg_u32 s98, 0")
            a("s_cbranch_scc1 L_pub_dry_ret")
        if self.xlocal:
            a("s_cmp_lg_u32 s99, 0")
            a("s_cbranch_scc1 L_pub_far")
            a("buffer_store_dwordx4 v[16:19], v89, s[12:15], s57 offen")
            a("s_mov_b32 exec_lo, 1")
            a("s_mov_b32 exec_hi, 1")
            a("buffer_store_dwordx4 v[12:15], v88, s[12:15], s57 offen")
            a("s_branch L_pub_end")
            a("L_pub_far:")
        a("buffer_store_dwordx4 v[16:19], v89, s[12:15], s57 offen sc1")
        a("s_mov_b32 exec_lo, 1")
        a("s_mov_b32 exec_hi, 1")
        a("buffer_store_dwordx4 v[12:15], v88, s[12:15], s57 offen sc1")
        a("L_pub_end:")
        a("s_mov_b64 exec, -1")
        a(f"ds_write_b32 v20, v21 offset:{L_DONE}")
        self.stamp(4)
        self.stamp_flush(0, 7 if self.sdiag else 4, 0)
        a("L_after_pub:")
        if self.trace:
            a("v_mov_b32 v60, 0")
            self.wait_flag("trdone", 60, 61, L_DONE, 4)
            a("s_lshl_b32 s48, s2, 2")
            a("s_add_u32 s48, s48, s3")
            a("s_lshl_b32 s48, s48, 8")
            a(f"s_add_u32 s48, s48, {STAMP + 0x20000}")
            a("v_lshlrev_b32 v57, 2, v0")
            a("buffer_store_dword v58, v57, s[12:15], s48 offen")
        a("s_cmp_lg_u32 s46, 0")
        a("s_cbranch_scc1 L_final")
        a("s_endpgm")
        if self.dry:
            a("L_pub_dry_ret:")
            a("s_cmp_eq_u32 s98, 2")
            a("s_cbranch_scc1 L_owner_setup")
            a("s_endpgm")

    def owner(self):
        a = self.a
        a("L_pre_b2:")
        a("v_mov_b32 v3, 0")
        self.wait_flag("oflag", 3, 8)
        a(f"ds_read_b64 v[10:11], v3 offset:{L_TAG}")
        a("s_waitcnt vmcnt(0) lgkmcnt(0)")
        a("v_readfirstlane_b32 s47, v10")
        a("s_setprio 0")
        if self.dry:
            a("s_cmp_eq_u32 s56, 1")
            a("s_cbranch_scc0 L_owner_setup")
            a("s_mov_b32 s98, 2")
            a("v_mov_b32 v2, 0")
            a("v_mov_b32 v87, 0")
            a("s_branch L_pub")
        a("L_owner_setup:")
        a("v_and_b32 v4, 3, v0")
        a("v_xor_b32 v5, 1, v4")
        a("v_lshl_add_u32 v4, v5, 2, v4")
        a("v_mul_u32_u24 v4, 0x1111, v4")
        a("s_mov_b32 s90, 0x0f0f0f0f")
        a("s_mov_b32 s91, 0x0f0f0f0f")
        a("s_lshl_b32 s57, s43, 1")
        a("s_add_u32 s57, s57, s42")
        a(f"s_mul_i32 s49, s57, {16 * 640}")
        a(f"s_add_u32 s49, s49, {E1}")
        a("v_and_b32 v1, 15, v0")
        a("v_lshlrev_b32 v1, 4, v1")
        a("v_add_u32 v1, 8192, v1")
        a("v_lshrrev_b32 v2, 4, v0")
        a("s_lshl_b32 s50, s56, 3")
        a("v_add_lshl_u32 v2, v2, s50, 7")
        a("v_bfe_u32 v5, v0, 3, 1")
        a("v_lshl_add_u32 v2, v5, 12, v2")
        a("v_and_b32 v5, 7, v0")
        a("v_lshl_add_u32 v2, v5, 4, v2")
        a("s_mul_i32 s50, s56, 4608")
        a(f"s_add_u32 s50, s50, {L_R}")
        a("v_lshrrev_b32 v36, 5, v0")
        a("v_mul_u32_u24 v36, 2304, v36")
        a("v_and_b32 v37, 15, v0")
        a("v_lshl_add_u32 v36, v37, 5, v36")
        a("v_bfe_u32 v37, v0, 4, 1")
        a("v_lshl_add_u32 v36, v37, 4, v36")
        a("v_add_u32 v36, s50, v36")
        a("s_mul_i32 s50, s56, 48")
        a("v_add_u32 v37, s50, v0")
        a("v_mul_u32_u24 v37, 24, v37")
        a(f"v_add_u32 v37, {L_R}, v37")
        a("v_lshlrev_b32 v38, 4, v0")
        a("s_lshr_b32 s50, s56, 1")
        a("s_lshl_b32 s53, s50, 3")
        a("s_lshl_b32 s50, s50, 5")
        a("s_add_u32 s50, s50, s57")
        a("s_mul_i32 s50, s50, 1536")
        a("s_and_b32 s51, s56, 1")
        a("s_mul_i32 s51, s51, 768")
        a("s_add_u32 s51, s50, s51")
        a(f"s_add_u32 s51, s51, {FIN}")
        a("v_mov_b32 v35, s47")
        a("v_mov_b32 v3, 0")
        if self.dry:
            a("s_mov_b32 s98, 1")
            a("s_branch L_ogot")
            a("L_owner_real:")
            a("s_mov_b64 exec, -1")
            a("s_mov_b32 s98, 0")
        self.stamp(4)

        def oload(b):
            r = (8, 12, 16) if b == 8 else (92, 24, 28)
            a(f"buffer_load_dwordx4 v[{r[0]}:{r[0] + 3}], v1, s[12:15], s49 offen{self.opol}")
            a(f"buffer_load_dwordx4 v[{r[1]}:{r[1] + 3}], v2, s[12:15], s49 offen{self.opol}")
            a(f"buffer_load_dwordx4 v[{r[2]}:{r[2] + 3}], v2, s[12:15], s49 offen offset:512{self.opol}")

        if self.pretouch:
            oload(8)
        if self.tlbwarm:
            a("s_mov_b64 exec, 1")
            a("buffer_load_dword v20, v38, s[12:15], s51 offen")
            a("s_mov_b64 exec, -1")
        for i in range(20):
            a(f"v_mov_b32 v{72 + i}, 0")
        self.wait_flag("odone", 3, 22, L_DONE, self.done_sleep)
        a("s_setprio 3")
        a("s_mov_b32 s50, 0")
        def head(st, d0, d1):
            a(f"v_max_f32_dpp v21, v{st}, v{st} quad_perm:[1,0,3,2] row_mask:0xf bank_mask:0xf")
            a(f"v_perm_b32 v22, v{d0 + 2}, v{d0 + 1}, s67")
            a(f"v_perm_b32 v23, v{d1 + 2}, v{d1 + 1}, s67")
            self.dpp("v_max_f32", "v21", "quad_perm:[2,3,0,1]")
            a(f"v_perm_b32 v22, v22, v{d0}, s68")
            a(f"v_perm_b32 v23, v23, v{d1}, s68")
            self.dpp("v_max_f32", "v21", "row_half_mirror")
            a(f"v_sub_f32 v21, v{st}, v21")
            a("v_mul_f32 v21, s62, v21")
            a("v_exp_f32 v21, v21")
            for e in range(3):
                a(f"v_mul_f32 v{56 + e}, v21, v{d0 + e}")
            a("v_mul_f32 v59, v21, v22")
            for e in range(3):
                a(f"v_mul_f32 v{60 + e}, v21, v{d1 + e}")
            a("v_mul_f32 v63, v21, v23")
            a(f"v_mul_f32 v64, v21, v{st + 1}")

        if self.opipe:
            oload(8)
            if self.opipe > 1:
                a(f"s_sleep {self.opipe - 1}")
            a("L_opoll:")
            oload(40)
            a("s_waitcnt vmcnt(3)")
            self.tags_bad([11, 15, 19], 20, 21)
            a("s_cbranch_vccz L_ogot")
            oload(8)
            a("s_waitcnt vmcnt(3)")
            self.tags_bad([95, 27, 31], 20, 21)
            a("s_cbranch_vccz L_ogot_b")
            self.retry("L_opoll", 0)
            a("L_ogot_b:")
            self.stamp(5)
            head(92, 24, 28)
            a("s_branch L_osum")
        else:
            a("L_opoll:")
            oload(8)
            a("s_waitcnt vmcnt(0)")
            self.tags_bad([11, 15, 19], 20, 21)
            a("s_cbranch_vccz L_ogot")
            self.retry("L_opoll", self.tail_sleep)
        a("L_ogot:")
        self.stamp(5)
        if self.odiag:
            a("s_memtime s[72:73]")
        head(8, 12, 16)
        a("L_osum:")
        for c in ("quad_perm:[1,0,3,2]", "quad_perm:[2,3,0,1]"):
            for e in range(9):
                self.dpp("v_add_f32", f"v{56 + e}", c)

        def mf(P, cg):
            r = 96 + 8 * (5 * P + cg)
            d = 72 + 4 * cg
            ab = 40 + 4 * P
            a(f"v_smfmac_f32_16x16x64_bf16 v[{d}:{d + 3}], v[{ab}:{ab + 3}], v[{r}:{r + 7}], v4")

        def prep(P):
            ops = []
            for h in range(2):
                v = f"v{56 + 2 * P + h}"
                ops.append(f"v_add_f32_dpp {v}, {v}, {v} row_half_mirror row_mask:0xf bank_mask:0xf")
            for h in range(2):
                v = f"v{56 + 2 * P + h}"
                ops.append(f"v_cvt_pk_bf16_f32 {v}, {v}, 0")
            for h in range(2):
                v = f"v{56 + 2 * P + h}"
                ops.append(f"v_cndmask_b32 v{40 + 4 * P + 2 * h}, 0, {v}, s[90:91]")
                ops.append(f"v_cndmask_b32 v{41 + 4 * P + 2 * h}, {v}, 0, s[90:91]")
            return ops

        def wr(cg):
            if cg == 4:
                a("s_mov_b32 exec_lo, 0x00ff00ff")
                a("s_mov_b32 exec_hi, 0x00ff00ff")
            a(f"ds_write_b128 v36, v[{72 + 4 * cg}:{75 + 4 * cg}] offset:{512 * cg}")

        if self.odiag:
            a("s_memtime s[74:75]")
        for op in prep(0):
            a(op)
        for P in range(4):
            nxt = prep(P + 1) if P < 3 else ["v_add_f32_dpp v64, v64, v64 row_half_mirror row_mask:0xf bank_mask:0xf", "v_rcp_f32 v64, v64"]
            for cg in range(3):
                mf(P, cg)
                for op in nxt[3 * cg:3 * cg + 3]:
                    a(op)
        for P in range(4):
            mf(P, 3)
        wr(0)
        wr(1)
        for P in range(4):
            mf(P, 4)
            if P == 0:
                wr(2)
            if P == 2:
                a("v_readlane_b32 s52, v64, s53")
        wr(3)
        wr(4)
        if self.odiag:
            a("s_memtime s[76:77]")
        a("s_mov_b32 exec_lo, -1")
        a("s_mov_b32 exec_hi, 0xffff")
        a("s_waitcnt vmcnt(0) lgkmcnt(0)")
        if self.dry:
            a("s_cmp_lg_u32 s98, 0")
            a("s_cbranch_scc1 L_o_nobar")
        a("s_barrier")
        a("L_o_nobar:")
        if self.odiag:
            a("s_memtime s[78:79]")
        for w in range(4):
            for i in range(3):
                a(f"ds_read_b64 v[{8 + 6 * w + 2 * i}:{9 + 6 * w + 2 * i}], v37 offset:{4608 * w + 8 * i}")
        a("s_waitcnt lgkmcnt(6)")
        for i in range(6):
            a(f"v_add_f32 v{8 + i}, v{8 + i}, v{14 + i}")
        a("s_waitcnt lgkmcnt(3)")
        for i in range(6):
            a(f"v_add_f32 v{8 + i}, v{8 + i}, v{20 + i}")
        a("s_waitcnt lgkmcnt(0)")
        for i in range(6):
            a(f"v_add_f32 v{8 + i}, v{8 + i}, v{26 + i}")
        for i in range(6):
            a(f"v_mul_f32 v{8 + i}, s52, v{8 + i}")
        for i in range(3):
            a(f"v_cvt_pk_bf16_f32 v{32 + i}, v{8 + 2 * i}, v{9 + 2 * i}")
        if self.dry:
            a("s_cmp_lg_u32 s98, 0")
            a("s_cbranch_scc1 L_owner_real")
        a("buffer_store_dwordx4 v[32:35], v38, s[12:15], s51 offen sc1")
        if self.odiag:
            a("s_memtime s[84:85]")
        a("s_mov_b64 exec, -1")
        self.stamp(6)
        if self.stamps:
            a("s_cmp_eq_u32 s56, 0")
            a("s_cbranch_scc0 L_end")
            self.stamp_flush(0, 7, 8)
        a("s_endpgm")

    def gather(self):
        a = self.a
        a("s_sub_u32 s48, s3, 4")
        a("s_mul_i32 s86, s48, 224")
        a("s_mul_i32 s48, s48, 3584")
        a(f"s_add_u32 s48, s48, {TAB}")
        a("v_lshlrev_b32 v100, 4, v0")
        a("s_mov_b32 s50, 0")
        a("L_gpoll:")
        a("v_mov_b32 v79, s47")
        for u in range(3):
            a(f"buffer_load_dwordx4 v[{64 + 4 * u}:{67 + 4 * u}], v100, s[12:15], s48 offen offset:{1024 * u} sc1")
        a("s_mov_b32 exec_hi, 0")
        a("buffer_load_dwordx4 v[76:79], v100, s[12:15], s48 offen offset:3072 sc1")
        a("s_mov_b32 exec_hi, -1")
        a("v_add_u32 v101, s86, v0")
        a("v_lshrrev_b32 v102, 2, v101")
        a(f"v_mul_u32_u24 v102, {2 * TPW}, v102")
        a("v_and_b32 v101, 3, v101")
        a("v_mad_u32_u24 v102, v101, 12, v102")
        a(f"v_add_u32 v102, {L_TAB}, v102")
        a("v_cmp_ne_u32 s[90:91], 3, v101")
        a("s_waitcnt vmcnt(0)")
        self.tags_bad([67, 71, 75, 79], 103, 104)
        a("s_cbranch_vccz L_ggot")
        self.retry("L_gpoll", 4)
        a("L_ggot:")
        for half in range(2):
            for u in range(4):
                if u == 3:
                    a("s_mov_b32 exec_hi, 0")
                for i in range(3 * half, 3 * half + 3):
                    op = "ds_write_b16_d16_hi" if i & 1 else "ds_write_b16"
                    a(f"{op} v102, v{64 + 4 * u + i // 2} offset:{16 * 2 * TPW * u + 2 * i}")
            a("s_mov_b64 exec, s[90:91]" if half == 0 else "s_mov_b64 exec, -1")

    def final(self):
        a = self.a
        rb = self.rb
        a("L_final:")
        a("s_sub_u32 s46, s46, 1")
        a("s_waitcnt lgkmcnt(0)")
        a("v_and_b32 v8, 1, v0")
        a("v_cmp_eq_u32 vcc, 1, v8")
        a("v_mov_b32 v8, 0x3f80")
        a("v_mov_b32 v9, 0x3f800000")
        a("v_cndmask_b32 v8, v8, v9, vcc")
        a("v_and_b32 v9, 14, v0")
        for q in range(3):
            a(f"v_cmp_eq_u32 vcc, {4 * q}, v9")
            a(f"v_cndmask_b32 v{4 + q}, 0, v8, vcc")
        a("v_mov_b32 v7, 0")
        a("v_and_b32 v1, 15, v0")
        a("s_mul_i32 s52, s46, 1152")
        a("s_mul_i32 s48, s3, 192")
        a("s_add_u32 s52, s52, s48")
        a("v_mul_u32_u24 v3, 12, v1")
        a("v_lshrrev_b32 v2, 4, v0")
        a("v_lshl_add_u32 v3, v2, 2, v3")
        self.srd(4, 16, 2304)
        self.srd(8, 36, 2304)
        a("buffer_load_dword v56, v3, s[4:7], s52 offen")
        if self.tlbwarm:
            a("buffer_load_dword v57, v3, s[8:11], s52 offen")
        a("v_mul_u32_u24 v2, 1536, v2")
        a("v_lshl_add_u32 v34, v1, 4, v2")
        a("s_lshl_b32 s48, s3, 3")
        a("v_mov_b32 v1, s48")
        a("v_mov_b32 v2, 0")
        a(f"s_mul_i32 s57, s46, {32 * 1536}")
        a("s_lshl_b32 s49, s3, 8")
        a("s_add_u32 s57, s57, s49")
        a(f"s_add_u32 s57, s57, {FIN}")
        a("s_mov_b32 s88, -1")
        a("s_mov_b32 s89, 0xffff")
        a(f"s_movk_i32 s56, {2 * TAB_N}")
        a(f"s_mov_b32 s54, {L_TAB - 2 * TAB_LO}")
        a("s_waitcnt vmcnt(0)")
        a("v_lshlrev_b32 v40, 16, v56")
        a("v_and_b32 v41, 0xffff0000, v56")
        a("v_cndmask_b32 v40, 0, v40, s[88:89]")
        a("v_cndmask_b32 v41, 0, v41, s[88:89]")
        a("v_mov_b32 v35, s55")
        a("s_or_b32 s99, s46, s3")
        if self.dry:
            a("s_cmp_lt_u32 s3, 4")
            a("s_cbranch_scc1 L_final_real")
            a("s_mov_b32 s98, 1")
            a("s_branch L_fgot")
        a("L_final_real:")
        a("s_mov_b64 exec, -1")
        a("s_mov_b32 s98, 0")
        for r in range(4):
            a(f"v_mov_b32 v{8 + r}, 0")
        for r in range(2):
            a(f"v_mov_b32 v{48 + r}, 0")
        self.wait_flag("fdone", 2, 13, L_DONE, self.done_sleep)
        a("s_setprio 3")
        a("s_cmp_lt_u32 s3, 4")
        a("s_cbranch_scc1 L_nogather")
        self.gather()
        a("s_cmp_ge_u32 s3, 6")
        a("s_cbranch_scc1 L_end")
        a("L_nogather:")
        a("s_mov_b32 s53, 0xff")
        a("s_mov_b32 s50, 0")
        for pg in range(8):
            a(f"s_add_u32 s49, s57, {pg * 4 * 1536}")
            a(f"buffer_load_dwordx4 v[{64 + 4 * pg}:{67 + 4 * pg}], v34, s[12:15], s49 offen sc1")
        a("L_fpoll:")
        for pg in range(8):
            a("s_waitcnt vmcnt(7)")
            a(f"s_bitcmp1_b32 s53, {pg}")
            a(f"s_cbranch_scc0 L_fidle{pg}")
            a(f"v_cmp_ne_u32 vcc, s47, v{67 + 4 * pg}")
            a(f"v_mov_b32 v{67 + 4 * pg}, 0")
            a(f"s_cbranch_vccz L_ftake{pg}")
            a(f"s_add_u32 s49, s57, {pg * 4 * 1536}")
            a(f"buffer_load_dwordx4 v[{64 + 4 * pg}:{67 + 4 * pg}], v34, s[12:15], s49 offen sc1")
            a(f"s_branch L_fnext{pg}")
            a(f"L_ftake{pg}:")
            a(f"v_mfma_f32_16x16x32_bf16 v[8:11], v[4:7], v[{64 + 4 * pg}:{67 + 4 * pg}], v[8:11]")
            a(f"s_bitset0_b32 s53, {pg}")
            a("s_cmp_eq_u32 s53, 0")
            a("s_cbranch_scc1 L_fgot")
            a(f"L_fidle{pg}:")
            a("buffer_load_dword v100, v2, s[12:15], s14 offen")
            a(f"L_fnext{pg}:")
        self.retry("L_fpoll", self.froll_sleep)
        a("L_fgot:")
        self.stamp(5)
        if self.fdiag:
            a("s_memtime s[72:73]")
        rb("v8", "v8")
        rb("v9", "v9")
        a("v_add_f32 v12, v40, v8")
        a("v_add_f32 v13, v41, v9")
        rb("v12", "v12")
        rb("v13", "v13")
        a("v_mul_f32 v17, v12, v12")
        a("v_add_f32 v16, v12, v13")
        a("v_fmac_f32 v17, v13, v13")
        for c in ("quad_perm:[1,0,3,2]", "quad_perm:[2,3,0,1]", "row_half_mirror", "row_ror:8"):
            self.dpp("v_add_f32", "v16", c)
            self.dpp("v_add_f32", "v17", c)
        for c in ("row_bcast:15 row_mask:0xa", "row_bcast:31 row_mask:0xc"):
            a(f"v_add_f32_dpp v16, v16, v16 {c} bank_mask:0xf")
            a(f"v_add_f32_dpp v17, v17, v17 {c} bank_mask:0xf")
        a("s_mov_b32 exec_lo, 0")
        a("s_mov_b32 exec_hi, 0x80000000")
        a(f"ds_write_b64 v1, v[16:17] offset:{L_ST}")
        if self.fdiag:
            a("s_memtime s[74:75]")
        a("s_cmp_lg_u32 s99, 0")
        a("s_cbranch_scc1 L_noepoch")
        a(f"buffer_store_dword v35, v2, s[12:15], 0 offen offset:{EPOCH} sc1")
        a("L_noepoch:")
        a("s_mov_b64 exec, -1")
        a("s_waitcnt lgkmcnt(0)")
        if self.dry:
            a("s_cmp_lg_u32 s98, 0")
            a("s_cbranch_scc1 L_f_nobar")
        a("s_barrier")
        a("L_f_nobar:")
        if self.fdiag:
            a("s_memtime s[76:77]")
        for i, d in enumerate((24, 28, 20)):
            a(f"ds_read_b128 v[{d}:{d + 3}], v2 offset:{L_ST + 16 * i}")
        a("s_waitcnt lgkmcnt(1)")
        a("v_add_f32 v16, v24, v26")
        a("v_add_f32 v17, v25, v27")
        a("v_add_f32 v18, v28, v30")
        a("v_add_f32 v19, v29, v31")
        a("s_waitcnt lgkmcnt(0)")
        a("v_add_f32 v24, v20, v22")
        a("v_add_f32 v25, v21, v23")
        a("v_add_f32 v16, v16, v18")
        a("v_add_f32 v17, v17, v19")
        a("v_add_f32 v16, v16, v24")
        a("v_add_f32 v17, v17, v25")
        a(f"v_mul_f32 v16, {hx(1.0 / 576)}, v16")
        a(f"v_mul_f32 v17, {hx(1.0 / 576)}, v17")
        rb("v18", "v16")
        a("v_fma_f32 v17, -v16, v16, v17")
        a("v_sub_f32 v20, v12, v18")
        a("v_max_f32 v17, 0, v17")
        a("v_sub_f32 v21, v13, v18")
        rb("v19", "v17")
        a("v_sub_f32 v16, v16, v18")
        a(f"v_add_f32 v19, {hx(1e-5)}, v19")
        rb("v19", "v19")
        a("v_sqrt_f32 v19, v19")
        rb("v20", "v20")
        rb("v19", "v19")
        a("v_rcp_f32 v19, v19")
        rb("v21", "v21")
        a("v_mul_f32 v17, v17, v19")
        a("v_mul_f32 v16, v16, v19")
        a("v_mul_f32 v17, v17, v19")
        a("v_mul_f32 v20, v20, v19")
        rb("v17", "v17")
        a("v_mul_f32 v21, v21, v19")
        a(f"v_add_f32 v17, {hx(1e-5)}, v17")
        rb("v16", "v16")
        rb("v17", "v17")
        rb("v20", "v20")
        a("v_sqrt_f32 v17, v17")
        rb("v21", "v21")
        rb("v17", "v17")
        a("v_sub_f32 v20, v20, v16")
        a("v_rcp_f32 v17, v17")
        a("v_sub_f32 v21, v21, v16")
        rb("v20", "v20")
        rb("v21", "v21")
        a("v_mul_f32 v20, v20, v17")
        a("v_mul_f32 v21, v21, v17")
        rb("v20", "v20")
        rb("v21", "v21")
        for r in range(2):
            a(f"v_ashrrev_i32 v{44 + r}, 31, v{20 + r}")
            a(f"v_bfe_u32 v{24 + r}, v{20 + r}, 15, 16")
        for r in range(2):
            a(f"v_and_b32 v{44 + r}, s56, v{44 + r}")
        for r in range(2):
            a(f"v_add3_u32 v{44 + r}, v{44 + r}, v{24 + r}, s54")
        for r in range(2):
            a(f"v_min_u32 v{44 + r}, {LDS_BYTES - 2}, v{44 + r}")
        for r in range(2):
            a(f"ds_read_u16_d16_hi v{48 + r}, v{44 + r}")
        if self.fdiag:
            a("s_memtime s[78:79]")
        for r in range(2):
            a(f"v_subrev_u32 v{24 + r}, {2 * (self.slow_lo or TAB_LO)}, v{24 + r}")
        a("s_mov_b64 exec, s[88:89]")
        for r in range(2):
            a(f"v_cmp_le_u32 s[{90 + 2 * r}:{91 + 2 * r}], s56, v{24 + r}")
        a("s_or_b64 s[86:87], s[90:91], s[92:93]")
        a("s_cbranch_scc1 L_slow")
        a("L_slow_ret:")
        a("s_waitcnt lgkmcnt(0)")
        a("v_add_f32 v12, v12, v48")
        a("v_add_f32 v13, v13, v49")
        a("v_cvt_pk_bf16_f32 v16, v12, v13")
        if self.dry:
            a("s_cmp_lg_u32 s98, 0")
            a("s_cbranch_scc1 L_final_real")
        if self.qprobe or self.probe:
            i, d = self.probe
            a("s_cmp_eq_u32 s3, 0")
            a("s_cbranch_scc0 L_probe_done")
            a("L_probe:")
            a("s_memrealtime s[86:87]")
            a("s_waitcnt lgkmcnt(0)")
            a(f"s_sub_u32 s86, s86, s{70 + 2 * i}")
            a(f"s_cmp_lt_u32 s86, {d}")
            a("s_cbranch_scc1 L_probe")
            a("L_probe_done:")
        a(f"buffer_store_dword v16, v3, s[8:11], s52 offen{self.outpol}")
        if self.fdiag:
            a("s_memtime s[84:85]")
        a("s_mov_b64 exec, -1")
        self.stamp(6)
        if self.stamps:
            a("s_cmp_eq_u32 s3, 1")
            a("s_cbranch_scc0 L_end")
            self.stamp_flush(1 if self.fdiag else 5, 7 if self.fdiag else 6, 16)
        a("L_end:")
        a("s_endpgm")

    def slow(self):
        a = self.a
        rb = self.rb
        a("L_slow:")
        if self.dry:
            a("s_cmp_lg_u32 s98, 0")
            a("s_cbranch_scc1 L_slow_ret")
        a("s_mov_b64 exec, -1")
        self.gelu_consts(28)
        a("s_load_dword s69, s[34:35], 0")
        a("v_lshlrev_b32 v1, 4, v0")
        a("s_waitcnt lgkmcnt(0)")
        a("s_lshl_b32 s69, s69, 16")
        for r in range(2):
            m = f"s[{90 + 2 * r}:{91 + 2 * r}]"
            a(f"L_slow_r{r}:")
            a(f"s_cmp_eq_u64 {m}, 0")
            a(f"s_cbranch_scc1 L_slow_n{r}")
            a(f"s_ff1_i32_b64 s54, {m}")
            a(f"s_bitset0_b64 {m}, s54")
            a(f"v_readlane_b32 s58, v{20 + r}, s54")
            a("v_mov_b32 v26, 0")
            a("v_mov_b32 v27, 0")
            a("s_mov_b32 s53, 0")
            a(f"L_slow_l{r}:")
            for sp, dst in ((28, 64), (30, 68), (32, 72)):
                self.srd(4, sp, 9216)
                a(f"buffer_load_dwordx4 v[{dst}:{dst + 3}], v1, s[4:7], s53 offen")
            a("s_waitcnt vmcnt(0)")
            for (src, out) in ((64, 80), (68, 88), (72, 96)):
                for k in range(4):
                    a(f"v_lshlrev_b32 v{out + 2 * k}, 16, v{src + k}")
                    a(f"v_and_b32 v{out + 2 * k + 1}, 0xffff0000, v{src + k}")
            items = [(80 + 2 * i, 88 + 2 * i, 96 + 2 * i, 104 + 4 * i, 106 + 4 * i) for i in range(4)]
            self.gelu_pk(items, 28, 30, 32, 26, "s[58:59]")
            a("s_add_u32 s53, s53, 1024")
            a("s_cmp_lt_u32 s53, 9216")
            a(f"s_cbranch_scc1 L_slow_l{r}")
            a("v_add_f32 v26, v26, v27")
            self.red16("v_add_f32", "v26")
            self.xrow(16, "v_add_f32", "v26", "v27")
            self.xrow(32, "v_add_f32", "v26", "v27")
            rb("v26", "v26")
            a("v_add_f32 v26, s69, v26")
            rb("v26", "v26")
            a("s_lshl_b64 exec, 1, s54")
            a(f"v_mov_b32 v{48 + r}, v26")
            a("s_mov_b64 exec, -1")
            a(f"s_branch L_slow_r{r}")
            a(f"L_slow_n{r}:")
        a("s_mov_b64 exec, s[88:89]")
        a("s_branch L_slow_ret")
        a("L_code_end:")

    def build(self):
        a = self.a
        a.raw(f"; @launch grid=(256,1,1) block=(512,1,1) lds={LDS_BYTES}")
        a.raw('.amdgcn_target "amdgcn-amd-amdhsa--gfx950"')
        a.raw(".text")
        a.raw(f".globl {NAME}_kernel")
        a.raw(".p2align 8")
        a.raw(f".type {NAME}_kernel,@function")
        a.raw(f"{NAME}_kernel:")
        self.prologue()
        self.helper_start()
        self.stream()
        self.qphase()
        self.table()
        self.owner()
        self.final()
        self.slow()
        a.raw('.section .rodata,"a"')
        a.raw(".p2align 6")
        a.raw(f".amdhsa_kernel {NAME}_kernel")
        a.raw("  .amdhsa_next_free_vgpr 256")
        a.raw("  .amdhsa_next_free_sgpr 102")
        a.raw("  .amdhsa_accum_offset 256")
        a.raw("  .amdhsa_group_segment_fixed_size 0")
        a.raw("  .amdhsa_kernarg_size 104")
        a.raw("  .amdhsa_user_sgpr_count 2")
        a.raw("  .amdhsa_user_sgpr_kernarg_segment_ptr 1")
        a.raw("  .amdhsa_system_sgpr_workgroup_id_x 1")
        a.raw("  .amdhsa_float_denorm_mode_32 3")
        a.raw(".end_amdhsa_kernel")
        return a.finish()


HEADER = open("cdna_kernels/" + NAME + ".s.ref").read().split("; Override launch geometry")[0]

if __name__ == "__main__":
    out = sys.argv[1] if len(sys.argv) > 1 else "k.s"
    kw = eval(sys.argv[2]) if len(sys.argv) > 2 else {}
    open(out, "w").write(HEADER + Gen(**kw).build())
```
